```python
import torch

def _softmax(x, axis=-1):
    return torch.softmax(x, dim=axis)

def _gelu(x):
    return torch.nn.functional.gelu(x, approximate='tanh')

def _silu(x):
    return torch.nn.functional.silu(x)

def _sigmoid(x):
    return torch.sigmoid(x)

def _layernorm(x, axis=-1, eps=1e-05):
    m = x.mean(dim=axis, keepdim=True)
    v = x.var(dim=axis, keepdim=True, unbiased=False)
    return (x - m) / torch.sqrt(v + eps)

def _scatter_add(tgt, idx, src, axis=0):
    return tgt.clone().index_add_(axis, idx, src)

def _segment_sum(src, seg, n):
    out = torch.zeros((n,) + src.shape[1:], dtype=src.dtype)
    return out.index_add_(0, seg, src)

def _pad(x, pw):
    flat = tuple((v for pair in reversed(pw) for v in pair))
    return torch.nn.functional.pad(x, flat)
kernel_name = 'adaLN_cond__memory_aug_recurrent_mem_tr__mixer_token_mlp__prompt'

def setup_inputs():

    _w = lambda a: (lambda t: t.to(torch.bfloat16) if t.is_floating_point() else t)(torch.as_tensor(a))

    def _A_setup():
        B, S, Dm = (1, 2048, 512)
        H, Dh = (32, 128)
        M, seg = (8, 32)
        seg = min(seg, S)
        S = S // seg * seg
        return {'x': _w((lambda *s: torch.randn(*s, dtype=torch.bfloat16) * 0.05)(B, S, Dm)), 'mem0': _w((lambda *s: torch.randn(*s, dtype=torch.bfloat16) * 0.4)(B, M, Dm)), 'Wq': _w((lambda *s: torch.randn(*s, dtype=torch.bfloat16) * 1.6)(Dm, H, Dh) * Dm ** (-0.5)), 'Wk': _w((lambda *s: torch.randn(*s, dtype=torch.bfloat16) * 1.6)(Dm, H, Dh) * Dm ** (-0.5)), 'Wv': _w((lambda *s: torch.randn(*s, dtype=torch.bfloat16) * 0.4)(Dm, H, Dh) * Dm ** (-0.5)), 'Wo': _w((lambda *s: torch.randn(*s, dtype=torch.bfloat16) * 0.4)(H, Dh, Dm) * (H * Dh) ** (-0.5)), 'seg_len': seg}
    _A_in = _A_setup()

    def _B_setup():
        B, S, D, F = (1, 2048, 512, 1792)
        return {'x': _w((lambda *s: torch.randn(*s, dtype=torch.bfloat16) * 0.05)(B, S, D)), 'w1': _w((lambda *s: torch.randn(*s, dtype=torch.bfloat16) * 0.8)(S, F) * S ** (-0.5)), 'b1': _w((lambda *s: torch.randn(*s, dtype=torch.bfloat16) * 12.8)(F) * 0.02), 'w2': _w((lambda *s: torch.randn(*s, dtype=torch.bfloat16) * 0.2)(F, S) * F ** (-0.5)), 'b2': _w((lambda *s: torch.randn(*s, dtype=torch.bfloat16) * 1.6)(S) * 0.02)}
    _B_in = _B_setup()
    return {'A_x': _A_in['x'], 'A_mem0': _A_in['mem0'], 'A_Wq': _A_in['Wq'], 'A_Wk': _A_in['Wk'], 'A_Wv': _A_in['Wv'], 'A_Wo': _A_in['Wo'], 'A_seg_len': _A_in['seg_len'], 'B_x': _B_in['x'], 'B_w1': _B_in['w1'], 'B_b1': _B_in['b1'], 'B_w2': _B_in['w2'], 'B_b2': _B_in['b2'], 'c': _w((lambda *s: torch.randn(*s, dtype=torch.bfloat16) * 0.1)(1, 512) * 8.0), 'w_mod': _w((lambda *s: torch.randn(*s, dtype=torch.bfloat16) * 0.1)(512, 6 * 512) * 512 ** (-0.5) * 8.0)}

def reference(A_x, A_mem0, A_Wq, A_Wk, A_Wv, A_Wo, A_seg_len, B_x, B_w1, B_b1, B_w2, B_b2, c, w_mod):

    def _A_ref(x, mem0, Wq, Wk, Wv, Wo, seg_len):
        B, S, Dm = x.shape
        H, Dh = (Wq.shape[1], Wq.shape[2])
        M = mem0.shape[1]
        scale = Dh ** (-0.5)
        n_seg = S // seg_len
        L = M + seg_len
        idx = torch.arange(L)
        mask = (idx[:, None] < M) | (idx[:, None] >= idx[None, :])
        mem = mem0
        outs = []
        for s in range(n_seg):
            xs = x[:, s * seg_len:(s + 1) * seg_len, :].clone()
            h = torch.concatenate([mem, xs], axis=1)
            q = torch.einsum('btd,dhe->bhte', h, Wq)
            k = torch.einsum('btd,dhe->bhte', h, Wk)
            v = torch.einsum('btd,dhe->bhte', h, Wv)
            scores = torch.einsum('bhqe,bhke->bhqk', q, k) * scale
            scores = torch.where(mask[None, None], scores, -1000000000.0)
            p = _softmax(scores, axis=-1)
            o = torch.einsum('bhqk,bhke->bhqe', p, v)
            o = torch.einsum('bhte,hed->btd', o, Wo)
            mem = o[:, :M, :].clone()
            outs.append(o[:, M:, :])
        return torch.concatenate(outs, axis=1)

    def _B_ref(x, w1, b1, w2, b2):
        B, S, D = x.shape
        h = _layernorm(x, axis=-1)
        u = torch.einsum('bsd,sf->bdf', h, w1) + b1
        u = _gelu(u)
        y = torch.einsum('bdf,fs->bds', u, w2) + b2
        return (lambda x, *d: x.permute(*d))(y, 0, 2, 1)
    x = A_x
    mod = (_silu(c) @ w_mod).reshape(c.shape[0], 6, 1, -1)
    sa, ca, ga, sb, cb, gb = (mod[:, 0].clone(), mod[:, 1].clone(), mod[:, 2].clone(), mod[:, 3].clone(), mod[:, 4].clone(), mod[:, 5].clone())
    h = _layernorm(x, axis=-1) * (1 + ca) + sa
    x = x + ga * _A_ref(h, A_mem0, A_Wq, A_Wk, A_Wv, A_Wo, A_seg_len)
    h = _layernorm(x, axis=-1) * (1 + cb) + sb
    x = x + gb * _B_ref(h, B_w1, B_b1, B_w2, B_b2)
    return x
```

```python
import re

_REG = re.compile(r'^(-|\|)?(v|a|s)(\d+)$')
_RNG = re.compile(r'^(-|\|)?(v|a|s)\[(\d+):(\d+)\]$')

def regs_of(tok):
    tok = tok.strip()
    tok = tok.replace('abs(', '').replace(')', '').replace('neg(', '').strip('|')
    if tok.startswith('-'): tok = tok[1:]
    m = _REG.match(tok)
    if m: return {(m.group(2), int(m.group(3)))}
    m = _RNG.match(tok)
    if m: return {(m.group(2), i) for i in range(int(m.group(3)), int(m.group(4)) + 1)}
    if tok == 'vcc': return {('s', 106), ('s', 107)}
    if tok == 'vcc_lo': return {('s', 106)}
    if tok == 'vcc_hi': return {('s', 107)}
    if tok == 'exec': return {('s', 126), ('s', 127)}
    if tok == 'm0': return {('s', 124)}
    return set()

TRANS = ('v_exp_f32', 'v_log_f32', 'v_rcp_f32', 'v_rsq_f32', 'v_sqrt_f32', 'v_sin_f32', 'v_cos_f32', 'v_rcp_iflag_f32')

class Ins:
    __slots__ = ('op', 'kind', 'w', 'r', 'ws', 'passes', 'srcc', 'ab', 'text', 'wide_store_data', 'dpp')
    def __init__(self, text):
        self.text = text
        t = text.split(';')[0].strip()
        parts = t.split(None, 1)
        self.op = parts[0]
        rest = parts[1] if len(parts) > 1 else ''
        ops = []; cur = ''; depth = 0
        for ch in rest:
            if ch == '[': depth += 1
            if ch == ']': depth -= 1
            if ch == ',' and depth == 0:
                ops.append(cur.strip()); cur = ''
            else: cur += ch
        if cur.strip(): ops.append(cur.strip())
        mods = ''
        if ops:
            sp = ops[-1].split(None, 1)
            ops[-1] = sp[0]
            if len(sp) > 1: mods = sp[1]
        op = self.op
        self.w = set(); self.r = set(); self.ws = 1; self.passes = 0; self.srcc = set(); self.ab = set()
        self.wide_store_data = set(); self.dpp = ('dpp' in op) or ('row_' in mods) or ('quad_perm' in mods)
        R = lambda i: regs_of(ops[i]) if i < len(ops) else set()
        allr = lambda a: set().union(*[regs_of(o) for o in ops[a:]]) if len(ops) > a else set()
        if op == 's_nop':
            self.kind = 'nop'; self.ws = int(ops[0], 0) + 1
        elif op.startswith('v_mfma') or op.startswith('v_smfmac'):
            self.kind = 'mfma'
            self.w = R(0); self.ab = R(1) | R(2)
            if op.startswith('v_smfmac'):
                self.srcc = R(0); self.ab |= R(3)
            else:
                self.srcc = R(3)
            self.r = self.ab | self.srcc
            self.passes = 8 if '32x32' in op else 4
        elif op.startswith('v_'):
            self.kind = 'valu'
            if op.startswith('v_cmp'):
                self.w = R(0); self.r = allr(1)
                if op.startswith('v_cmpx'): self.w |= regs_of('exec')
            elif op.startswith('v_permlane') and 'swap' in op:
                self.w = R(0) | R(1); self.r = R(0) | R(1)
            elif '_co_' in op or op.startswith('v_div_scale') or op.startswith('v_mad_u64'):
                self.w = R(0) | R(1); self.r = allr(2)
            else:
                self.w = R(0); self.r = allr(1)
                if op.startswith('v_fmac') or op.startswith('v_dot2c') or op.startswith('v_pk_fmac') or self.dpp or op.startswith('v_writelane'):
                    self.r |= R(0)
                if op.startswith('v_cndmask') and len(ops) == 3: self.r |= regs_of('vcc')
        elif op.startswith('ds_'):
            self.kind = 'ds'
            if op.startswith('ds_read') or op.startswith('ds_bpermute') or op.startswith('ds_permute') or op.startswith('ds_swizzle') or '_rtn' in op:
                self.w = R(0); self.r = allr(1)
            else:
                self.r = allr(0)
        elif op.startswith('global_') or op.startswith('buffer_') or op.startswith('flat_'):
            self.kind = 'vmem'
            islds = ('_lds_' in op) or (' lds' in (' ' + mods)) or (ops and ops[-1] == 'lds')
            if op in ('buffer_inv', 'buffer_wbl2'):
                pass
            elif islds:
                self.r = allr(0) | regs_of('m0')
            elif '_load' in op:
                self.w = R(0); self.r = allr(1)
            elif '_atomic' in op and 'sc0' in mods.split():
                self.w = R(0); self.r = allr(1)
            else:
                self.r = allr(0)
                if 'x3' in op or 'x4' in op:
                    self.wide_store_data = R(1) if op.startswith('global_') or op.startswith('flat_') else R(0)
        elif op.startswith('s_'):
            self.kind = 'salu'
            if op.startswith('s_cmp') or op.startswith('s_cbranch') or op in ('s_branch', 's_barrier', 's_waitcnt', 's_endpgm', 's_sleep', 's_setprio', 's_bitcmp1_b32', 's_bitcmp0_b32'):
                self.r = allr(0)
            else:
                self.w = R(0); self.r = allr(1)
                if 'saveexec' in op: self.w |= regs_of('exec')
        else:
            self.kind = 'other'

def need(p, c):
    n = 0
    isv = lambda s: {x for x in s if x[0] in 'va'}
    iss = lambda s: {x for x in s if x[0] == 's'}
    if p.kind == 'valu':
        pv = isv(p.w); ps = iss(p.w)
        if c.kind == 'mfma' and (pv & c.r): n = max(n, 2)
        if c.kind == 'valu':
            if c.op.startswith('v_permlane') and (pv & c.r): n = max(n, 2)
            if c.dpp and (pv & c.r): n = max(n, 2)
            if (c.op.startswith('v_readlane') or c.op.startswith('v_readfirstlane')) and (pv & c.r): n = max(n, 1)
            if p.op.replace('_e32','').replace('_e64','') in TRANS and (pv & (c.r | c.w)): n = max(n, 1)
            if ps & c.r:
                n = max(n, 4 if (c.op.startswith('v_readlane') or c.op.startswith('v_writelane') or c.op.startswith('v_div_fmas')) else 2)
            if regs_of('exec') & ps:
                if c.dpp: n = max(n, 5)
                if c.op.startswith('v_permlane') or c.op.startswith('v_read') or c.op.startswith('v_writelane'): n = max(n, 4)
        if c.kind in ('ds', 'vmem') and p.op.replace('_e32','').replace('_e64','') in TRANS and (pv & c.r): n = max(n, 1)
        if c.kind == 'vmem' and (ps & c.r): n = max(n, 5)
        if c.kind == 'mfma' and (regs_of('exec') & ps): n = max(n, 4)
        if c.kind == 'salu' and (ps & c.r) and not c.op.startswith('s_cbranch'): n = max(n, 1)
    if p.kind == 'mfma':
        big = {4: 8, 8: 12}[p.passes]; ovl = {4: 6, 8: 10}[p.passes]; war = {4: 3, 8: 7}[p.passes]
        if c.kind == 'mfma':
            if p.w & c.ab: n = max(n, big)
            if p.w & c.srcc:
                if not (p.w == c.srcc and p.passes == c.passes): n = max(n, ovl)
            if (p.w & c.w) and not (p.w & c.srcc): n = max(n, big)
        elif c.kind in ('valu', 'ds', 'vmem'):
            if p.w & (c.r | c.w): n = max(n, big)
            if c.kind == 'valu' and (p.srcc & c.w): n = max(n, war)
            if c.kind in ('ds', 'vmem') and (p.srcc & c.w): n = max(n, war)
    if p.kind == 'vmem' and p.wide_store_data:
        if p.wide_store_data & c.w: n = max(n, 2)
    if p.kind == 'ds' and p.op in ('ds_write_b128', 'ds_write_b96') and c.kind == 'valu':
        pass
    if p.kind == 'salu' and (('s', 124) in p.w):
        if ('s', 124) in c.r and c.kind in ('vmem', 'ds'): n = max(n, 1)
    return n

class Asm:
    def __init__(self):
        self.lines = []
        self.hist = []
        self.nops_added = 0
        self._uid = 0
    def raw(self, s):
        self.lines.append(s)
    def comment(self, s):
        self.lines.append('    ; ' + s)
    def label(self, name, flush=True):
        self.lines.append(name + ':')
    def uid(self, p='L'):
        self._uid += 1
        return f'{p}_{self._uid}'
    def __call__(self, text):
        for t in text.strip().split('\n'):
            t = t.strip()
            if not t: continue
            if t.startswith(';'):
                self.lines.append('    ' + t); continue
            if t.endswith(':'):
                self.label(t[:-1]); continue
            ins = Ins(t)
            dist = 0; req = 0
            for p in reversed(self.hist):
                n = need(p, ins)
                if n - dist > req: req = n - dist
                dist += p.ws
                if dist >= 24: break
            while req > 0:
                k = min(req, 16)
                nop = Ins(f's_nop {k-1}')
                self.lines.append(f'    s_nop {k-1}')
                self.hist.append(nop); self.nops_added += k
                req -= k
            self.lines.append('    ' + t)
            self.hist.append(ins)
            if len(self.hist) > 64: self.hist = self.hist[-40:]
    def fence(self, n=12):
        while n > 0:
            k = min(n, 16); self(f's_nop {k-1}'); n -= k
    def text(self):
        return '\n'.join(self.lines) + '\n'

def vr(b, n=1, p='v'):
    return f'{p}{b}' if n == 1 else f'{p}[{b}:{b+n-1}]'
def ar(b, n=1): return vr(b, n, 'a')
def sr(b, n=1): return vr(b, n, 's')

def kernel_desc(name, vgpr=512, sgpr=102, accum=256, extra=''):
    return f'''.section .rodata,"a"
.p2align 6
.amdhsa_kernel {name}
  .amdhsa_next_free_vgpr {vgpr}
  .amdhsa_next_free_sgpr {sgpr}
  .amdhsa_accum_offset {accum}
  .amdhsa_group_segment_fixed_size 0
  .amdhsa_kernarg_size 136
  .amdhsa_user_sgpr_count 2
  .amdhsa_user_sgpr_kernarg_segment_ptr 1
  .amdhsa_system_sgpr_workgroup_id_x 1
{extra}.end_amdhsa_kernel
.text
'''
```

```python
from asmlib import *
from layout import *
from pre import add64, header, f2u, LOG2E, unpack8, ln_stats, round_bf16
QSCALE = (128 ** -0.5) * LOG2E
OROW = 272

def mf(a, d, A, B, C):
    a(f'v_mfma_f32_16x16x32_bf16 {vr(d,4)}, {vr(A,4)}, {vr(B,4)}, {C if isinstance(C,str) else vr(C,4)}')
def mf16(a, d, A, B, C):
    a(f'v_mfma_f32_16x16x16_bf16 {vr(d,4)}, {vr(A,2)}, {vr(B,2)}, {vr(C,4)}')

class ATT:
    def __init__(self, a, sWo, sWs, sWave, sH, st='', ld=''):
        self.a = a; self.sWo, self.sWs, self.sWave, self.sH = sWo, sWs, sWave, sH
        self.st, self.ld = st, ld
        self.vL16, self.vKm, self.vVm, self.vDl, self.vOW, self.vOR, self.vSt, self.vT = 1, 2, 3, 4, 5, 6, 7, 8
        self.sB, self.sT, self.sQs = 40, 46, 50
    def setup(self):
        a = self.a; t = self.vT; T = self.sT
        a(f'v_lshlrev_b32 v{self.vL16}, 4, v0')
        a(f's_lshl_b32 s{T}, s{self.sH}, 17')
        a(f's_lshl_b32 s{T+1}, s{self.sWave}, 14')
        a(f's_add_u32 s{T}, s{T}, s{T+1}')
        add64(a, self.sB, self.sWo, f's{T}')
        for i in range(16):
            if i % 4 == 0:
                a(f's_add_u32 m0, s{T+1}, {i*1024}')
                if i: add64(a, self.sB, self.sB, 4096)
            a(f'global_load_lds_dwordx4 v{self.vL16}, s[{self.sB}:{self.sB+1}] offset:{(i%4)*1024}')
        n, g = t + 2, t + 3
        a(f'v_and_b32 v{n}, 15, v0'); a(f'v_lshrrev_b32 v{g}, 4, v0')
        a(f'v_lshrrev_b32 v{t}, 2, v{n}'); a(f'v_and_b32 v{t+1}, 1, v{n}')
        a(f'v_lshl_add_u32 v{t}, v{t}, 1, v{t+1}'); a(f'v_lshlrev_b32 v{t}, 8, v{t}')
        a(f'v_lshl_add_u32 v{self.vKm}, v{g}, 4, v{t}')
        a(f's_and_b32 s{T}, s{self.sWave}, 3')
        a(f's_lshl_b32 s{T+1}, s{T}, 9')
        a(f'v_lshlrev_b32 v{t}, 4, v{n}'); a(f'v_lshl_add_u32 v{t}, v{g}, 2, v{t}')
        a(f'v_add_u32 v{self.vVm}, s{T+1}, v{t}')
        a(f's_lshr_b32 s{T+2}, s{self.sWave}, 2')
        a(f's_lshl_b32 s{T+1}, s{T+2}, 4')
        a(f'v_lshlrev_b32 v{t}, 2, v{g}'); a(f'v_sub_u32 v{t}, v{n}, v{t}')
        a(f'v_add_u32 v{self.vDl}, s{T+1}, v{t}')
        a(f'v_add_u32 v{t}, s{T+1}, v{n}'); a(f'v_mul_u32_u24 v{t}, {OROW}, v{t}')
        a(f'v_lshl_add_u32 v{t}, v{g}, 4, v{t}')
        a(f's_lshl_b32 s{T+1}, s{T}, 6')
        a(f'v_add_u32 v{self.vOW}, s{T+1}, v{t}')
        a(f'v_and_b32 v{t}, 31, v0'); a(f'v_mul_u32_u24 v{t+1}, {OROW}, v{t}')
        a(f'v_lshrrev_b32 v{n}, 5, v0')
        a(f'v_lshl_add_u32 v{self.vOR}, v{n}, 4, v{t+1}')
        a(f'v_lshlrev_b32 v{t}, 10, v{t}'); a(f'v_lshl_add_u32 v{t}, v{n}, 5, v{t}')
        a(f's_lshl_b32 s{T+1}, s{self.sWave}, 7')
        a(f'v_add_u32 v{self.vSt}, s{T+1}, v{t}')
        a(f'v_bfe_u32 v{t}, v0, 2, 2'); a(f'v_lshl_add_u32 v{t}, v{n}, 2, v{t}'); a(f'v_lshlrev_b32 v{t}, 10, v{t}')
        a(f'v_and_b32 v{t+1}, 1, v0'); a(f'v_lshl_add_u32 v{t}, v{t+1}, 5, v{t}')
        a(f'v_bfe_u32 v{t+1}, v0, 4, 1'); a(f'v_lshl_add_u32 v{t}, v{t+1}, 4, v{t}')
        a(f'v_bfe_u32 v{t+1}, v0, 1, 1'); a(f'v_lshl_add_u32 v{t}, v{t+1}, 3, v{t}')
        a(f'v_add_u32 v{t}, s{T+1}, v{t}')
        a(f'v_add_u32 v{t+1}, 0x10000, v{t}')
        a(f's_mov_b32 s{self.sQs}, {hex(f2u(QSCALE))}')
        a('s_waitcnt vmcnt(0)')
        a('s_barrier')
        for mt in range(2):
            for ks in range(8):
                for j in range(2):
                    imm = (32 * ((ks >> 1) & 1) + 8 * (ks & 1) + 16 * j) * 1024 + 64 * mt
                    a(f'ds_read_b64_tr_b16 {ar((mt*8+ks)*4 + 2*j, 2)}, v{t + (ks >> 2)} offset:{imm}')
                if ks % 4 == 3: a('s_waitcnt lgkmcnt(0)')
        a('s_barrier')
    def task(self, sSeg):
        a = self.a; T = self.sT; ld = self.ld
        QB, KX, KM, VX, VM = 16, 32, 64, 80, 88
        S0, S1, SM, O, LS, ONE, PM = 92, 96, 100, 104, 112, 116, 120
        a(f's_lshl_b32 s{T}, s{sSeg}, 5')
        a(f's_add_u32 s{T}, s{T}, s{self.sH}')
        a(f's_lshl_b32 s{T+1}, s{T}, 13')
        a(f's_add_u32 s{T+2}, s{T+1}, {WS_K + 4096}')
        add64(a, self.sB, self.sWs, f's{T+2}')
        for f in range(8): a(f'global_load_dwordx4 {vr(KX+4*f,4)}, v{self.vL16}, s[{self.sB}:{self.sB+1}] offset:{f*1024-4096}{ld}')
        a(f's_lshr_b32 s{T+2}, s{self.sWave}, 2')
        a(f's_lshl_b32 s{T+2}, s{T+2}, 12')
        a(f's_add_u32 s{T+2}, s{T+2}, s{T+1}')
        a(f's_add_u32 s{T+2}, s{T+2}, {WS_Q}')
        add64(a, self.sB, self.sWs, f's{T+2}')
        for kk in range(4): a(f'global_load_dwordx4 {vr(QB+4*kk,4)}, v{self.vL16}, s[{self.sB}:{self.sB+1}] offset:{kk*1024}{ld}')
        a(f's_and_b32 s{T+2}, s{self.sWave}, 3')
        a(f's_lshl_b32 s{T+2}, s{T+2}, 11')
        a(f's_add_u32 s{T+2}, s{T+2}, s{T+1}')
        a(f's_add_u32 s{T+2}, s{T+2}, {WS_V}')
        add64(a, self.sB, self.sWs, f's{T+2}')
        for tau in range(2): a(f'global_load_dwordx4 {vr(VX+4*tau,4)}, v{self.vL16}, s[{self.sB}:{self.sB+1}] offset:{tau*1024}{ld}')
        self.mem_loads = lambda: self._mem_loads(KM, VM)
        self._mem_loads(KM, VM)
        a(f'v_mov_b32 v{VM+1}, 0'); a(f'v_mov_b32 v{VM+3}, 0'); a(f'v_mov_b32 v{PM+1}, 0')
        for i in range(4): a(f'v_mov_b32 v{ONE+i}, 0x3f803f80')
        a('s_waitcnt vmcnt(8)')
        for kk in range(4):
            mf(a, S0, KX + 4 * kk, QB + 4 * kk, '0' if kk == 0 else S0)
            mf(a, S1, KX + 16 + 4 * kk, QB + 4 * kk, '0' if kk == 0 else S1)
        a('s_waitcnt vmcnt(2)')
        for kk in range(4): mf(a, SM, KM + 4 * kk, QB + 4 * kk, '0' if kk == 0 else SM)
        mx, t = self.vT, self.vT + 1
        a(f'v_mov_b32 v{t+1}, 0xff800000')
        SX = [S0 + i for i in range(4)] + [S1 + i for i in range(4)]
        for i in range(8):
            a(f'v_cmp_le_i32 vcc, {16*(i>>2) + (i&3)}, v{self.vDl}')
            a(f'v_cndmask_b32 v{SX[i]}, v{t+1}, v{SX[i]}, vcc')
        a(f'v_max3_f32 v{mx}, v{SX[0]}, v{SX[1]}, v{SX[2]}')
        a(f'v_max3_f32 v{t}, v{SX[3]}, v{SX[4]}, v{SX[5]}')
        a(f'v_max3_f32 v{mx}, v{mx}, v{SX[6]}, v{SX[7]}')
        a(f'v_max3_f32 v{t}, v{t}, v{SM}, v{SM+1}')
        a(f'v_max_f32 v{mx}, v{mx}, v{t}')
        a(f'v_mov_b32 v{t}, v{mx}'); a(f'v_permlane32_swap_b32 v{mx}, v{t}'); a(f'v_max_f32 v{mx}, v{mx}, v{t}')
        a(f'v_mov_b32 v{t}, v{mx}'); a(f'v_permlane16_swap_b32 v{mx}, v{t}'); a(f'v_max_f32 v{mx}, v{mx}, v{t}')
        a(f'v_mul_f32 v{mx}, s{self.sQs}, v{mx}')
        for r in SX + [SM, SM + 1]:
            a(f'v_fma_f32 v{r}, v{r}, s{self.sQs}, -v{mx}')
            a(f'v_exp_f32 v{r}, v{r}')
        PX = S0
        for i in range(4): a(f'v_cvt_pk_bf16_f32 v{PX+i}, v{SX[2*i]}, v{SX[2*i+1]}')
        a(f'v_cvt_pk_bf16_f32 v{PM}, v{SM}, v{SM+1}')
        a('s_waitcnt vmcnt(0)')
        mf(a, LS, ONE, PX, '0'); mf(a, O, VX, PX, '0'); mf(a, O + 4, VX + 4, PX, '0')
        mf16(a, LS, ONE, PM, LS); mf16(a, O, VM, PM, O); mf16(a, O + 4, VM + 2, PM, O + 4)
        a(f'v_rcp_f32 v{t}, v{LS}')
        for i in range(8): a(f'v_mul_f32 v{O+i}, v{O+i}, v{t}')
        for i in range(4): a(f'v_cvt_pk_bf16_f32 v{S1+i}, v{O+2*i}, v{O+2*i+1}')
        a('s_barrier')
        a(f'ds_write_b128 v{self.vOW}, {vr(S1,4)}')
        a('s_waitcnt lgkmcnt(0)')
        a('s_barrier')
        OF = 16
        for ks in range(8): a(f'ds_read_b128 {vr(OF+4*ks,4)}, v{self.vOR} offset:{ks*32}')
        D = 48
        for ks in range(8):
            a(f's_waitcnt lgkmcnt({7-ks})')
            for mt in range(2):
                a(f'v_mfma_f32_32x32x16_bf16 {vr(D+16*mt,16)}, {ar((mt*8+ks)*4,4)}, {vr(OF+4*ks,4)}, {"0" if ks == 0 else vr(D+16*mt,16)}')
        a(f's_lshl_b32 s{T+1}, s{T}, 15')
        a(f's_add_u32 s{T+1}, s{T+1}, {WS_ATTP}')
        add64(a, self.sB, self.sWs, f's{T+1}')
        P = 80
        for mt in range(2):
            for i in range(8): a(f'v_cvt_pk_bf16_f32 v{P+8*mt+i}, v{D+16*mt+2*i}, v{D+16*mt+2*i+1}')
            a(f'global_store_dwordx4 v{self.vSt}, {vr(P+8*mt,4)}, s[{self.sB}:{self.sB+1}] offset:{64*mt}{self.st}')
            a(f'global_store_dwordx4 v{self.vSt}, {vr(P+8*mt+4,4)}, s[{self.sB}:{self.sB+1}] offset:{64*mt+16}{self.st}')
    def _mem_loads(self, KM, VM):
        a = self.a; T = self.sT; ld = self.ld
        a(f's_lshl_b32 s{T+2}, s{T}, 11')
        a(f's_add_u32 s{T+3}, s{T+2}, {WS_KM}')
        add64(a, self.sB, self.sWs, f's{T+3}')
        for kk in range(4): a(f'global_load_dwordx4 {vr(KM+4*kk,4)}, v{self.vKm}, s[{self.sB}:{self.sB+1}] offset:{kk*64}{ld}')
        a(f's_add_u32 s{T+3}, s{T+2}, {WS_VM}')
        add64(a, self.sB, self.sWs, f's{T+3}')
        for tau in range(2): a(f'global_load_dword v{VM+2*tau}, v{self.vVm}, s[{self.sB}:{self.sB+1}] offset:{tau*256}{ld}')

def build_att_kernel(a):
    header(a, 'att_kernel')
    a('s_cmp_ge_u32 s2, 256'); a('s_cbranch_scc1 L_att_end')
    a(f's_load_dwordx2 s[4:5], s[0:1], {KA["Wo"]}')
    a(f's_load_dwordx2 s[10:11], s[0:1], {KA["ws"]}')
    a('v_lshrrev_b32 v1, 6, v0'); a('v_and_b32 v0, 63, v0'); a('v_readfirstlane_b32 s12, v1')
    a('s_and_b32 s13, s2, 31')
    a('s_lshr_b32 s14, s2, 5')
    a('s_waitcnt lgkmcnt(0)')
    g = ATT(a, 4, 10, 12, 13)
    g.setup()
    a('L_att_loop:')
    g.task(14)
    a('s_add_u32 s14, s14, 8')
    a('s_cmp_lt_u32 s14, 64')
    a.fence(4)
    a('s_cbranch_scc1 L_att_loop')
    a('L_att_end:'); a('s_endpgm')
    a.raw(kernel_desc('att_kernel', vgpr=256, accum=128))

def emit_red_task(a, sRow4, sWave, sX, sWs, st='', ld='', lds=0):
    L16, t, m, r = 1, 2, 3, 4
    P, ACC, XR, MD = 16, 80, 88, 96
    a(f'v_lshlrev_b32 v{L16}, 4, v0')
    a(f's_lshr_b32 s40, s{sWave}, 1')
    a(f's_lshl_b32 s41, s{sRow4}, 2')
    a(f's_add_u32 s40, s40, s41')
    a(f's_lshr_b32 s41, s40, 5')
    a(f's_lshl_b32 s41, s41, 20')
    a(f's_and_b32 s42, s{sWave}, 1')
    a(f's_lshl_b32 s43, s42, 19')
    a(f's_add_u32 s41, s41, s43')
    a(f's_and_b32 s43, s40, 31')
    a(f's_lshl_b32 s43, s43, 10')
    a(f's_add_u32 s41, s41, s43')
    a(f's_add_u32 s41, s41, {WS_ATTP}')
    add64(a, 44, sWs, 's41')
    for i in range(16):
        a(f'global_load_dwordx4 {vr(P+4*i,4)}, v{L16}, s[44:45]{ld}')
        if i < 15: add64(a, 44, 44, 32768)
    a(f's_lshl_b32 s41, s40, 10')
    a(f'v_add_u32 v5, s41, v{L16}')
    a(f'global_load_dwordx4 {vr(XR,4)}, v5, s[{sX}:{sX+1}]')
    add64(a, 44, sWs, WS_MOD + 4096 + 2048)
    a(f'v_lshlrev_b32 v{t}, 5, v0')
    for k, off in enumerate((-2048, 0, 2048)):
        a(f'global_load_dwordx4 {vr(MD+8*k,4)}, v{t}, s[44:45] offset:{off}{ld}')
        a(f'global_load_dwordx4 {vr(MD+8*k+4,4)}, v{t}, s[44:45] offset:{off+16}{ld}')
    a('s_mov_b32 s46, 0x00003f80')
    a('s_mov_b32 s47, 0x3f800000')
    for i in range(8): a(f'v_mov_b32 v{ACC+i}, 0')
    for i in range(16):
        a(f's_waitcnt vmcnt({15 - i + 7})')
        for d in range(4):
            a(f'v_dot2_f32_bf16 v{ACC+2*d}, v{P+4*i+d}, s46, v{ACC+2*d}')
            a(f'v_dot2_f32_bf16 v{ACC+2*d+1}, v{P+4*i+d}, s47, v{ACC+2*d+1}')
    a(f's_lshr_b32 s41, s{sWave}, 1')
    a(f's_lshl_b32 s41, s41, 11')
    a(f'v_add_u32 v{t}, s41, v{L16}')
    Lodd = a.uid('red_odd'); Lend = a.uid('red_end')
    a(f's_cmp_eq_u32 s42, 0')
    a(f's_cbranch_scc1 {Lodd}_skip')
    a.fence(3)
    a(f'ds_write_b128 v{t}, {vr(ACC,4)} offset:{lds}')
    a(f'ds_write_b128 v{t}, {vr(ACC+4,4)} offset:{lds+1024}')
    a('s_waitcnt lgkmcnt(0)')
    a(f'{Lodd}_skip:')
    a('s_barrier')
    a(f's_cmp_lg_u32 s42, 0')
    a(f's_cbranch_scc1 {Lend}')
    a(f'ds_read_b128 {vr(P,4)}, v{t} offset:{lds}')
    a(f'ds_read_b128 {vr(P+4,4)}, v{t} offset:{lds+1024}')
    X = 32
    a('s_waitcnt vmcnt(0)')
    unpack8(a, XR, X)
    a('s_waitcnt lgkmcnt(0)')
    for i in range(8):
        a(f'v_add_f32 v{ACC+i}, v{ACC+i}, v{P+i}')
        a(f'v_fmac_f32 v{X+i}, v{ACC+i}, v{MD+i}')
    for i in range(4): a(f'v_cvt_pk_bf16_f32 v{XR+i}, v{X+2*i}, v{X+2*i+1}')
    add64(a, 44, sWs, WS_X1)
    a(f'global_store_dwordx4 v5, {vr(XR,4)}, s[44:45]{st}')
    unpack8(a, XR, X)
    ln_stats(a, X, m, r, t)
    for i in range(8):
        a(f'v_add_f32 v{MD+16+i}, 1.0, v{MD+16+i}')
        a(f'v_fma_f32 v{X+i}, v{X+i}, v{MD+16+i}, v{MD+8+i}')
    ln_stats(a, X, m, r, t)
    for i in range(4): a(f'v_cvt_pk_bf16_f32 v{P+i}, v{X+2*i}, v{X+2*i+1}')
    add64(a, 44, sWs, WS_H2)
    a(f'global_store_dwordx4 v5, {vr(P,4)}, s[44:45]{st}')
    a(f'{Lend}:')

def build_red_kernel(a):
    header(a, 'red_kernel')
    a('s_cmp_ge_u32 s2, 512'); a('s_cbranch_scc1 L_red_end')
    a(f's_load_dwordx2 s[4:5], s[0:1], {KA["x"]}')
    a(f's_load_dwordx2 s[10:11], s[0:1], {KA["ws"]}')
    a('v_lshrrev_b32 v1, 6, v0'); a('v_and_b32 v0, 63, v0'); a('v_readfirstlane_b32 s12, v1')
    a('s_waitcnt lgkmcnt(0)')
    emit_red_task(a, 2, 12, 4, 10)
    a('L_red_end:'); a('s_endpgm')
    a.raw(kernel_desc('red_kernel', vgpr=128, accum=128))
```

```python
WS_MOD   = 0x0000000
WS_H     = 0x0100000
WS_X1    = 0x0400000
WS_H2    = 0x0700000
WS_G     = 0x0A00000
WS_Q     = 0x1000000
WS_K     = 0x2000000
WS_V     = 0x3000000
WS_MEM   = 0x4000000
WS_PART  = 0x4100000
WS_KM    = 0x4200000
WS_VM    = 0x4600000
WS_MEMDBG= 0x4A00000
WS_ATTP  = 0x5000000
KA = dict(x=0, mem0=8, Wq=16, Wk=24, Wv=32, Wo=40, seg=48, Bx=56, w1=64, b1=72, w2=80, b2=88, c=96, wmod=104, out=112, dbg=120, ws=128)
```

```python
from asmlib import *
from layout import *
from pre import add64, header, f2u, LOG2E

def tr_lane_base(a, dst, t, perm_cols):
    a(f'v_lshrrev_b32 v{t}, 5, v0')
    a(f'v_bfe_u32 v{t+1}, v0, 2, 2')
    a(f'v_lshl_add_u32 v{t}, v{t}, 3, v{t+1}')
    a(f'v_lshlrev_b32 v{t}, 7, v{t}')
    a(f'v_bfe_u32 v{t+1}, v0, 3, 1')
    a(f'v_lshl_add_u32 v{t}, v{t+1}, 6, v{t}')
    if perm_cols:
        a(f'v_and_b32 v{t+1}, 1, v0'); a(f'v_lshl_add_u32 v{t}, v{t+1}, 5, v{t}')
        a(f'v_bfe_u32 v{t+1}, v0, 4, 1'); a(f'v_lshl_add_u32 v{t}, v{t+1}, 4, v{t}')
        a(f'v_bfe_u32 v{t+1}, v0, 1, 1'); a(f'v_lshl_add_u32 v{dst}, v{t+1}, 3, v{t}')
    else:
        a(f'v_bfe_u32 v{t+1}, v0, 4, 1'); a(f'v_lshl_add_u32 v{t}, v{t+1}, 5, v{t}')
        a(f'v_and_b32 v{t+1}, 3, v0'); a(f'v_lshl_add_u32 v{dst}, v{t+1}, 3, v{t}')

def dma_lane(a, dst, t, stride):
    a(f'v_and_b32 v{t}, 7, v0')
    a(f'v_bfe_u32 v{t+1}, v0, 4, 1')
    a(f'v_lshlrev_b32 v{t+1}, 2, v{t+1}')
    a(f'v_xor_b32 v{t}, v{t}, v{t+1}')
    a(f'v_lshrrev_b32 v{t+1}, 3, v0')
    a(f'v_mul_u32_u24 v{t+1}, {stride}, v{t+1}')
    a(f'v_lshl_add_u32 v{dst}, v{t}, 4, v{t+1}')

def combine_halves(a, D, sKh, sTile, t, lds):
    a(f's_lshl_b32 s48, s{sTile}, 12')
    a(f'v_lshlrev_b32 v{t}, 4, v0')
    a(f'v_add_u32 v{t}, s48, v{t}')
    L = a.uid('ch')
    a('s_barrier')
    a(f's_cmp_eq_u32 s{sKh}, 0')
    a(f's_cbranch_scc1 {L}')
    for i in range(4): a(f'ds_write_b128 v{t}, {vr(D+4*i,4)} offset:{lds + 1024*i}')
    a('s_waitcnt lgkmcnt(0)')
    a(f'{L}:')
    a('s_barrier')

def build_g1_kernel(a):
    header(a, 'g1_kernel')
    a('s_cmp_ge_u32 s2, 224'); a('s_cbranch_scc1 L_g1_end')
    a(f's_load_dwordx4 s[4:7], s[0:1], {KA["w1"]}')
    a(f's_load_dwordx2 s[10:11], s[0:1], {KA["ws"]}')
    a('v_lshrrev_b32 v1, 6, v0'); a('v_and_b32 v0, 63, v0'); a('v_readfirstlane_b32 s12, v1')
    sFt, sDt, sKh, sTile = 13, 14, 15, 16
    a(f's_lshr_b32 s{sFt}, s2, 3'); a(f's_and_b32 s{sDt}, s2, 7')
    a(f's_lshr_b32 s{sKh}, s12, 2'); a(f's_and_b32 s{sTile}, s12, 3')
    a('s_waitcnt lgkmcnt(0)')
    vDW, vDH, vTA, vTB, t = 1, 2, 3, 4, 6
    dma_lane(a, vDW, t, 3584); dma_lane(a, vDH, t, 1024)
    tr_lane_base(a, vTA, t, True); tr_lane_base(a, vTB, t, False)
    a(f's_lshr_b32 s40, s{sTile}, 1'); a('s_lshl_b32 s40, s40, 6')
    a(f'v_xor_b32 v{vTA}, s40, v{vTA}')
    a(f's_and_b32 s40, s{sTile}, 1'); a('s_lshl_b32 s40, s40, 6')
    a(f'v_xor_b32 v{vTB}, s40, v{vTB}')
    a(f's_lshl_b32 s40, s{sKh}, 11')
    a(f'v_add_u32 v{vTA}, s40, v{vTA}')
    a(f's_add_u32 s40, s40, 16384')
    a(f'v_add_u32 v{vTB}, s40, v{vTB}')
    a(f's_mul_i32 s40, s12, {16*3584}'); a(f's_lshl_b32 s41, s{sFt}, 7'); a('s_add_u32 s40, s40, s41')
    add64(a, 20, 4, 's40')
    a('s_lshl_b32 s40, s12, 14'); a(f's_lshl_b32 s41, s{sDt}, 7'); a('s_add_u32 s40, s40, s41'); a(f's_add_u32 s40, s40, {WS_H2}')
    add64(a, 22, 10, 's40')
    a('s_lshl_b32 s24, s12, 11')
    NB = 4
    def dma(c):
        b = (c % NB) * 32768
        for i in range(2):
            a(f's_add_u32 m0, s24, {b + i*1024}')
            a(f'global_load_lds_dwordx4 v{vDW}, s[20:21]')
            add64(a, 20, 20, 8 * 3584 if i == 0 else 120 * 3584)
            a(f's_add_u32 m0, s24, {b + 16384 + i*1024}')
            a(f'global_load_lds_dwordx4 v{vDH}, s[22:23]')
            add64(a, 22, 22, 8 * 1024 if i == 0 else 120 * 1024)
    D, FA, FB = 16, 32, 48
    for c in range(NB - 1): dma(c)
    for c in range(16):
        a(f's_waitcnt vmcnt({4 * min(NB - 2, 15 - c)})')
        a('s_barrier')
        if c + NB - 1 < 16: dma(c + NB - 1)
        b = (c % NB) * 32768
        a(f'v_add_u32 v{t}, {b}, v{vTA}')
        a(f'v_add_u32 v{t+1}, {b}, v{vTB}')
        for sgm in range(4):
            for j in range(2):
                a(f'ds_read_b64_tr_b16 {vr(FA+4*sgm+2*j,2)}, v{t} offset:{sgm*4096 + j*512}')
                a(f'ds_read_b64_tr_b16 {vr(FB+4*sgm+2*j,2)}, v{t+1} offset:{sgm*4096 + j*512}')
        for sgm in range(4):
            a(f's_waitcnt lgkmcnt({12 - 4*sgm})')
            a(f'v_mfma_f32_32x32x16_bf16 {vr(D,16)}, {vr(FA+4*sgm,4)}, {vr(FB+4*sgm,4)}, {"0" if (c == 0 and sgm == 0) else vr(D,16)}')
    combine_halves(a, D, sKh, sTile, t, 0)
    a(f's_cmp_lg_u32 s{sKh}, 0'); a('s_cbranch_scc1 L_g1_end')
    for i in range(4): a(f'ds_read_b128 {vr(FA+4*i,4)}, v{t} offset:{1024*i}')
    a(f'v_lshrrev_b32 v{t+2}, 5, v0'); a(f'v_lshlrev_b32 v{t+2}, 5, v{t+2}')
    a(f's_lshr_b32 s40, s{sTile}, 1'); a('s_lshl_b32 s40, s40, 6'); a(f's_lshl_b32 s41, s{sFt}, 7'); a('s_add_u32 s40, s40, s41')
    a(f'v_add_u32 v{t+2}, s40, v{t+2}')
    a(f'global_load_dwordx4 {vr(FB,4)}, v{t+2}, s[6:7]')
    a(f'global_load_dwordx4 {vr(FB+4,4)}, v{t+2}, s[6:7] offset:16')
    gelu_store(a, D, FA, FB, t, sDt, sTile, 10, '')
    a('L_g1_end:'); a('s_endpgm')
    a.raw(kernel_desc('g1_kernel', vgpr=128, accum=128))

def gelu_store(a, D, FA, FB, t, sDt, sTile, sWs, st):
    a('s_waitcnt vmcnt(0) lgkmcnt(0)')
    a(f's_mov_b32 s42, {hex(f2u(0.044715))}')
    a(f's_mov_b32 s43, {hex(f2u(-2 * LOG2E * 0.7978845608028654))}')
    x, y = t, t + 1
    for i in range(16):
        if FA is not None: a(f'v_add_f32 v{D+i}, v{D+i}, v{FA+i}')
        if i % 2 == 0: a(f'v_lshlrev_b32 v{x}, 16, v{FB+i//2}')
        else: a(f'v_and_b32 v{x}, 0xffff0000, v{FB+i//2}')
        a(f'v_add_f32 v{D+i}, v{D+i}, v{x}')
        a(f'v_mul_f32 v{x}, v{D+i}, v{D+i}')
        a(f'v_fma_f32 v{x}, v{x}, s42, 1.0')
        a(f'v_mul_f32 v{x}, v{x}, v{D+i}')
        a(f'v_mul_f32 v{x}, s43, v{x}')
        a(f'v_exp_f32 v{x}, v{x}')
        a(f'v_add_f32 v{x}, 1.0, v{x}')
        a(f'v_rcp_f32 v{x}, v{x}')
        a(f'v_mul_f32 v{D+i}, v{D+i}, v{x}')
    for i in range(8): a(f'v_cvt_pk_bf16_f32 v{FB+i}, v{D+2*i}, v{D+2*i+1}')
    a(f'v_and_b32 v{x}, 31, v0')
    a(f's_and_b32 s40, s{sTile}, 1'); a('s_lshl_b32 s40, s40, 5'); a(f's_lshl_b32 s41, s{sDt}, 6'); a('s_add_u32 s40, s40, s41')
    a(f'v_add_u32 v{x}, s40, v{x}')
    a(f'v_mul_u32_u24 v{x}, 3584, v{x}')
    a(f'v_add_u32 v{x}, v{x}, v{t+2}')
    add64(a, 44, sWs, WS_G)
    a(f'global_store_dwordx4 v{x}, {vr(FB,4)}, s[44:45]{st}')
    a(f'global_store_dwordx4 v{x}, {vr(FB+4,4)}, s[44:45] offset:16{st}')

def build_g2_kernel(a):
    header(a, 'g2_kernel')
    a('s_cmp_ge_u32 s2, 256'); a('s_cbranch_scc1 L_g2_end')
    a(f's_load_dwordx4 s[4:7], s[0:1], {KA["w2"]}')
    a(f's_load_dwordx2 s[8:9], s[0:1], {KA["out"]}')
    a(f's_load_dwordx2 s[10:11], s[0:1], {KA["ws"]}')
    a('v_lshrrev_b32 v1, 6, v0'); a('v_and_b32 v0, 63, v0'); a('v_readfirstlane_b32 s12, v1')
    sSt, sDt, sKh, sTile = 13, 14, 15, 16
    a(f's_and_b32 s{sSt}, s2, 7'); a(f's_lshl_b32 s{sSt}, s{sSt}, 2'); a('s_bfe_u32 s40, s2, 0x20003'); a(f's_add_u32 s{sSt}, s{sSt}, s40')
    a(f's_lshr_b32 s{sDt}, s2, 5')
    a(f's_lshr_b32 s{sKh}, s12, 2'); a(f's_and_b32 s{sTile}, s12, 3')
    a('s_waitcnt lgkmcnt(0)')
    vDW, vG, vTB, t = 1, 2, 4, 6
    dma_lane(a, vDW, t, 4096)
    tr_lane_base(a, vTB, t, False)
    a(f's_and_b32 s40, s{sTile}, 1'); a('s_lshl_b32 s40, s40, 6')
    a(f'v_xor_b32 v{vTB}, s40, v{vTB}')
    a(f's_lshl_b32 s40, s{sKh}, 11')
    a(f'v_add_u32 v{vTB}, s40, v{vTB}')
    a(f'v_bfe_u32 v{t}, v0, 2, 1'); a(f'v_lshlrev_b32 v{t}, 4, v{t}')
    a(f'v_bfe_u32 v{t+1}, v0, 3, 2'); a(f'v_lshl_add_u32 v{t}, v{t+1}, 2, v{t}')
    a(f'v_and_b32 v{t+1}, 3, v0'); a(f'v_add_u32 v{t}, v{t}, v{t+1}')
    a(f's_lshr_b32 s40, s{sTile}, 1'); a('s_lshl_b32 s40, s40, 5'); a(f's_lshl_b32 s41, s{sDt}, 6'); a('s_add_u32 s40, s40, s41')
    a(f'v_add_u32 v{t}, s40, v{t}')
    a(f'v_mul_u32_u24 v{t}, 3584, v{t}')
    a(f'v_lshrrev_b32 v{t+1}, 5, v0'); a(f'v_lshl_add_u32 v{t}, v{t+1}, 4, v{t}')
    a(f's_lshl_b32 s40, s{sKh}, 5')
    a(f'v_add_u32 v{vG}, s40, v{t}')
    add64(a, 22, 10, WS_G)
    a(f's_lshl_b32 s40, s12, {5+12}'); a(f's_lshl_b32 s41, s{sSt}, 7'); a('s_add_u32 s40, s40, s41')
    add64(a, 20, 4, 's40')
    a('s_lshl_b32 s24, s12, 12')
    NB = 4
    def dma(c):
        b = (c % NB) * 32768
        for i in range(4):
            a(f's_add_u32 m0, s24, {b + i*1024}')
            a(f'global_load_lds_dwordx4 v{vDW}, s[20:21]')
            add64(a, 20, 20, 8 * 4096 if i < 3 else (256 - 24) * 4096)
        for i in range(8):
            a(f'global_load_dwordx4 {ar((c % NB) * 32 + 4*i, 4)}, v{vG}, s[22:23] offset:{c*512 + i*64}')
    D, FB = 16, 32
    for c in range(NB - 1): dma(c)
    for c in range(7):
        a(f's_waitcnt vmcnt({12 * min(NB - 2, 6 - c)})')
        a('s_barrier')
        if c + NB - 1 < 7: dma(c + NB - 1)
        b = (c % NB) * 32768
        a(f'v_add_u32 v{t}, {b}, v{vTB}')
        for half in range(2):
            for i in range(4):
                for j in range(2):
                    a(f'ds_read_b64_tr_b16 {vr(FB+16*half+4*i+2*j,2)}, v{t} offset:{(4*half+i)*4096 + j*512}')
            if half == 1: pass
        for i in range(8):
            a(f's_waitcnt lgkmcnt({min(15, 14 - 2*i)})')
            a(f'v_mfma_f32_32x32x16_bf16 {vr(D,16)}, {ar((c % NB)*32 + 4*i,4)}, {vr(FB+4*i,4)}, {"0" if (c == 0 and i == 0) else vr(D,16)}')
    combine_halves(a, D, sKh, sTile, t, 0)
    a(f's_cmp_lg_u32 s{sKh}, 0'); a('s_cbranch_scc1 L_g2_end')
    FA = 32
    for i in range(4): a(f'ds_read_b128 {vr(FA+4*i,4)}, v{t} offset:{1024*i}')
    g2_epilogue(a, D, FA, t, sSt, sDt, sTile, 6, 8, 10, '')
    a('L_g2_end:'); a('s_endpgm')
    a.raw(kernel_desc('g2_kernel', vgpr=256, accum=128))

def g2_epilogue(a, D, FA, t, sSt, sDt, sTile, sB2, sOut, sWs, ld):
    X1, GB, B2 = 48, 56, 72
    a(f'v_and_b32 v{t+1}, 31, v0')
    a(f's_and_b32 s40, s{sTile}, 1'); a('s_lshl_b32 s40, s40, 5'); a(f's_lshl_b32 s41, s{sSt}, 6'); a('s_add_u32 s40, s40, s41')
    a(f'v_add_u32 v{t+1}, s40, v{t+1}')
    a(f'v_lshlrev_b32 v{t+2}, 1, v{t+1}')
    a(f'global_load_ushort v{B2}, v{t+2}, s[{sB2}:{sB2+1}]')
    a(f'v_lshrrev_b32 v{t+2}, 5, v0'); a(f'v_lshlrev_b32 v{t+2}, 4, v{t+2}')
    a(f's_lshr_b32 s40, s{sTile}, 1'); a('s_lshl_b32 s40, s40, 5'); a(f's_lshl_b32 s41, s{sDt}, 6'); a('s_add_u32 s40, s40, s41')
    a(f'v_add_u32 v{t+2}, s40, v{t+2}')
    a(f'v_lshlrev_b32 v{t+1}, 10, v{t+1}')
    a(f'v_lshl_add_u32 v{t+1}, v{t+2}, 1, v{t+1}')
    add64(a, 44, sWs, WS_X1)
    a(f'global_load_dwordx4 {vr(X1,4)}, v{t+1}, s[44:45]{ld}')
    a(f'global_load_dwordx4 {vr(X1+4,4)}, v{t+1}, s[44:45] offset:16{ld}')
    a(f'v_lshlrev_b32 v{t+2}, 2, v{t+2}')
    add64(a, 44, sWs, WS_MOD + 10240)
    for i in range(4): a(f'global_load_dwordx4 {vr(GB+4*i,4)}, v{t+2}, s[44:45] offset:{16*i}{ld}')
    a('s_waitcnt vmcnt(0) lgkmcnt(0)')
    a(f'v_lshlrev_b32 v{B2}, 16, v{B2}')
    x = t
    for i in range(16):
        if FA is not None: a(f'v_add_f32 v{D+i}, v{D+i}, v{FA+i}')
        a(f'v_add_f32 v{D+i}, v{D+i}, v{B2}')
        if i % 2 == 0: a(f'v_lshlrev_b32 v{x}, 16, v{X1+i//2}')
        else: a(f'v_and_b32 v{x}, 0xffff0000, v{X1+i//2}')
        a(f'v_fma_f32 v{D+i}, v{D+i}, v{GB+i}, v{x}')
    for i in range(8): a(f'v_cvt_pk_bf16_f32 v{X1+i}, v{D+2*i}, v{D+2*i+1}')
    a(f'global_store_dwordx4 v{t+1}, {vr(X1,4)}, s[{sOut}:{sOut+1}]')
    a(f'global_store_dwordx4 v{t+1}, {vr(X1+4,4)}, s[{sOut}:{sOut+1}] offset:16')
```

```python
from asmlib import *
from layout import *
import struct
def f2u(f): return struct.unpack('<I', struct.pack('<f', f))[0]
LOG2E = 1.4426950408889634

def add64(a, dst, src, val):
    a(f's_add_u32 s{dst}, s{src}, {val}')
    a(f's_addc_u32 s{dst+1}, s{src+1}, 0')

def wave_sum(a, x, t):
    a(f'v_add_f32_dpp v{x}, v{x}, v{x} quad_perm:[1,0,3,2] row_mask:0xf bank_mask:0xf')
    a(f'v_add_f32_dpp v{x}, v{x}, v{x} quad_perm:[2,3,0,1] row_mask:0xf bank_mask:0xf')
    a(f'v_add_f32_dpp v{x}, v{x}, v{x} row_ror:4 row_mask:0xf bank_mask:0xf')
    a(f'v_add_f32_dpp v{x}, v{x}, v{x} row_ror:8 row_mask:0xf bank_mask:0xf')
    a(f'v_mov_b32 v{t}, v{x}')
    a(f'v_permlane16_swap_b32 v{x}, v{t}')
    a(f'v_add_f32 v{x}, v{x}, v{t}')
    a(f'v_mov_b32 v{t}, v{x}')
    a(f'v_permlane32_swap_b32 v{x}, v{t}')
    a(f'v_add_f32 v{x}, v{x}, v{t}')

def unpack8(a, src, dst):
    for i in range(4):
        a(f'v_lshlrev_b32 v{dst+2*i}, 16, v{src+i}')
        a(f'v_and_b32 v{dst+2*i+1}, 0xffff0000, v{src+i}')

def round_bf16(a, x, t=None):
    a(f'v_cvt_pk_bf16_f32 v{x}, v{x}, v{x}')
    a(f'v_lshlrev_b32 v{x}, 16, v{x}')

def emit_mod_task(a, sTask, sWv, sC, sWm, sModOut, st, lds_base=0, V=0):
    lane = 0
    v = lambda i: V + i
    row, col, off, t = v(1), v(2), v(3), v(4)
    a(f'v_lshrrev_b32 v{row}, 3, v{lane}')
    a(f's_lshl_b32 s40, s{sWv}, 6')
    a(f'v_add_u32 v{row}, s40, v{row}')
    a(f'v_and_b32 v{col}, 7, v{lane}')
    a(f'v_mul_u32_u24 v{off}, 6144, v{row}')
    a(f'v_lshl_add_u32 v{off}, v{col}, 4, v{off}')
    a(f's_lshl_b32 s40, s{sTask}, 7')
    a(f'v_add_u32 v{off}, s40, v{off}')
    W = v(8)
    C = v(40)
    a(f'v_lshlrev_b32 v{t}, 1, v{row}')
    for i in range(8):
        a(f'global_load_ushort v{C+i}, v{t}, s[{sC}:{sC+1}] offset:{16*i}')
    for i in range(8):
        a(f'global_load_dwordx4 {vr(W+4*i,4)}, v{off}, s[{sWm}:{sWm+1}]')
        if i < 7: a(f'v_add_u32 v{off}, {8*6144}, v{off}')
    a('s_waitcnt vmcnt(8)')
    for i in range(8):
        a(f'v_lshlrev_b32 v{C+i}, 16, v{C+i}')
        a(f'v_mul_f32 v{t}, {hex(f2u(-LOG2E))}, v{C+i}')
        a(f'v_exp_f32 v{t}, v{t}')
        a(f'v_add_f32 v{t}, 1.0, v{t}')
        a(f'v_rcp_f32 v{t}, v{t}')
        a(f'v_mul_f32 v{C+i}, v{C+i}, v{t}')
        round_bf16(a, C + i)
    ACC = v(48)
    for j in range(8): a(f'v_mov_b32 v{ACC+j}, 0')
    for i in range(8):
        a(f's_waitcnt vmcnt({7-i})')
        for d in range(4):
            a(f'v_lshlrev_b32 v{t}, 16, v{W+4*i+d}')
            a(f'v_fmac_f32 v{ACC+2*d}, v{t}, v{C+i}')
            a(f'v_and_b32 v{t}, 0xffff0000, v{W+4*i+d}')
            a(f'v_fmac_f32 v{ACC+2*d+1}, v{t}, v{C+i}')
    for j in range(8):
        x = ACC + j
        a(f'v_add_f32_dpp v{x}, v{x}, v{x} row_ror:8 row_mask:0xf bank_mask:0xf')
        a(f'v_mov_b32 v{t}, v{x}')
        a(f'v_permlane16_swap_b32 v{x}, v{t}')
        a(f'v_add_f32 v{x}, v{x}, v{t}')
        a(f'v_mov_b32 v{t}, v{x}')
        a(f'v_permlane32_swap_b32 v{x}, v{t}')
        a(f'v_add_f32 v{x}, v{x}, v{t}')
    a(f's_lshl_b32 s40, s{sWv}, 8')
    a(f'v_lshlrev_b32 v{t}, 5, v{col}')
    a(f'v_add_u32 v{t}, s40, v{t}')
    a(f'ds_write_b128 v{t}, {vr(ACC,4)} offset:{lds_base}')
    a(f'ds_write_b128 v{t}, {vr(ACC+4,4)} offset:{lds_base+16}')
    a('s_waitcnt lgkmcnt(0)')
    a('s_barrier')
    L = a.uid('mod_skip')
    a(f's_cmp_lg_u32 s{sWv}, 0')
    a(f's_cbranch_scc1 {L}')
    a(f'v_lshlrev_b32 v{t}, 2, v{lane}')
    for w in range(8): a(f'ds_read_b32 v{W+w}, v{t} offset:{lds_base + 256*w}')
    a('s_waitcnt lgkmcnt(0)')
    for w in range(1, 8): a(f'v_add_f32 v{W}, v{W}, v{W+w}')
    round_bf16(a, W)
    a(f's_lshl_b32 s40, s{sTask}, 8')
    a(f'v_add_u32 v{t}, s40, v{t}')
    a(f'global_store_dword v{t}, v{W}, s[{sModOut}:{sModOut+1}]{st}')
    a(f'{L}:')

def ln_stats(a, X, m, r, t):
    a(f'v_add_f32 v{m}, v{X}, v{X+1}')
    a(f'v_add_f32 v{t}, v{X+2}, v{X+3}')
    a(f'v_add_f32 v{r}, v{X+4}, v{X+5}')
    a(f'v_add_f32 v{m}, v{m}, v{t}')
    a(f'v_add_f32 v{t}, v{X+6}, v{X+7}')
    a(f'v_add_f32 v{r}, v{r}, v{t}')
    a(f'v_add_f32 v{m}, v{m}, v{r}')
    wave_sum(a, m, t)
    a(f'v_mul_f32 v{m}, {hex(f2u(1/512))}, v{m}')
    for i in range(8): a(f'v_sub_f32 v{X+i}, v{X+i}, v{m}')
    a(f'v_mul_f32 v{r}, v{X}, v{X}')
    for i in range(1, 8): a(f'v_fmac_f32 v{r}, v{X+i}, v{X+i}')
    wave_sum(a, r, t)
    a(f'v_mov_b32 v{t}, {hex(f2u(1e-5))}')
    a(f'v_fmac_f32 v{t}, {hex(f2u(1/512))}, v{r}')
    a(f'v_rsq_f32 v{r}, v{t}')
    for i in range(8): a(f'v_mul_f32 v{X+i}, v{X+i}, v{r}')

def header(a, name):
    a.raw(f'.globl {name}\n.p2align 8\n.type {name},@function\n{name}:')

def build_mod_kernel(a):
    header(a, 'mod_kernel')
    a('s_cmp_ge_u32 s2, 48'); a('s_cbranch_scc1 L_mod_end')
    a(f's_load_dwordx4 s[4:7], s[0:1], {KA["c"]}')
    a(f's_load_dwordx2 s[8:9], s[0:1], {KA["ws"]}')
    a('v_lshrrev_b32 v1, 6, v0'); a('v_and_b32 v0, 63, v0'); a('v_readfirstlane_b32 s10, v1')
    a('s_waitcnt lgkmcnt(0)')
    add64(a, 8, 8, WS_MOD)
    emit_mod_task(a, 2, 10, 4, 6, 8, '')
    a('L_mod_end:'); a('s_endpgm')
    a.raw(kernel_desc('mod_kernel', vgpr=64, accum=64))

def emit_ln1_rows(a, sRow, sX, sMod, sHout, st, ld=''):
    off, m, r, t = 1, 2, 3, 4
    R, X, SA, CA = 8, 16, 24, 32
    a(f's_lshl_b32 s40, s{sRow}, 10')
    a(f'v_lshlrev_b32 v{t}, 4, v0')
    a(f'v_add_u32 v{off}, s40, v{t}')
    a(f'global_load_dwordx4 {vr(R,4)}, v{off}, s[{sX}:{sX+1}]')
    a(f'v_lshlrev_b32 v{t}, 5, v0')
    a(f'global_load_dwordx4 {vr(SA,4)}, v{t}, s[{sMod}:{sMod+1}]{ld}')
    a(f'global_load_dwordx4 {vr(SA+4,4)}, v{t}, s[{sMod}:{sMod+1}] offset:16{ld}')
    a(f'global_load_dwordx4 {vr(CA,4)}, v{t}, s[{sMod}:{sMod+1}] offset:2048{ld}')
    a(f'global_load_dwordx4 {vr(CA+4,4)}, v{t}, s[{sMod}:{sMod+1}] offset:2064{ld}')
    a('s_waitcnt vmcnt(4)')
    unpack8(a, R, X)
    ln_stats(a, X, m, r, t)
    a('s_waitcnt vmcnt(0)')
    for i in range(8):
        a(f'v_add_f32 v{CA+i}, 1.0, v{CA+i}')
        a(f'v_fma_f32 v{X+i}, v{X+i}, v{CA+i}, v{SA+i}')
    for i in range(4): a(f'v_cvt_pk_bf16_f32 v{R+i}, v{X+2*i}, v{X+2*i+1}')
    a(f'global_store_dwordx4 v{off}, {vr(R,4)}, s[{sHout}:{sHout+1}]{st}')

def build_ln_kernel(a):
    header(a, 'ln_kernel')
    a('s_cmp_ge_u32 s2, 256'); a('s_cbranch_scc1 L_ln_end')
    a(f's_load_dwordx2 s[4:5], s[0:1], {KA["x"]}')
    a(f's_load_dwordx2 s[8:9], s[0:1], {KA["ws"]}')
    a('v_lshrrev_b32 v1, 6, v0'); a('v_and_b32 v0, 63, v0'); a('v_readfirstlane_b32 s10, v1')
    a('s_waitcnt lgkmcnt(0)')
    add64(a, 6, 8, WS_MOD); add64(a, 8, 8, WS_H)
    a('s_lshl_b32 s11, s2, 3'); a('s_add_u32 s11, s11, s10')
    emit_ln1_rows(a, 11, 4, 6, 8, '')
    a('L_ln_end:'); a('s_endpgm')
    a.raw(kernel_desc('ln_kernel', vgpr=64, accum=64))
```

```python
from asmlib import *
from layout import *
from pre import add64, header

class QKV:
    def __init__(self, a, sWq, sWk, sWv, sWs, sWave, st=''):
        self.a = a; self.sWq, self.sWk, self.sWv, self.sWs, self.sWave = sWq, sWk, sWv, sWs, sWave
        self.st = st
        self.vDma, self.vTr0, self.vTr1, self.vSK, self.vSV, self.vT = 1, 2, 3, 4, 5, 6
        self.WF = 16
        self.ACC = 48
        self.PK = 80
        self.sSrc, self.sOut, self.sBuf, self.sTmp = 40, 42, 44, 46
    def setup(self):
        a = self.a; t = self.vT
        a(f'v_and_b32 v{t}, 7, v0')
        a(f'v_bfe_u32 v{t+1}, v0, 4, 1')
        a(f'v_lshlrev_b32 v{t+1}, 2, v{t+1}')
        a(f'v_xor_b32 v{t}, v{t}, v{t+1}')
        a(f'v_lshrrev_b32 v{t+1}, 3, v0')
        a(f'v_lshlrev_b32 v{t+1}, 13, v{t+1}')
        a(f'v_lshl_add_u32 v{self.vDma}, v{t}, 4, v{t+1}')
        a(f'v_lshrrev_b32 v{t}, 5, v0')
        a(f'v_bfe_u32 v{t+1}, v0, 2, 2')
        a(f'v_lshl_add_u32 v{t}, v{t}, 3, v{t+1}')
        a(f'v_lshlrev_b32 v{t}, 7, v{t}')
        a(f'v_bfe_u32 v{t+1}, v0, 3, 1')
        a(f'v_lshl_add_u32 v{t}, v{t+1}, 6, v{t}')
        a(f'v_bfe_u32 v{t+1}, v0, 4, 1')
        a(f'v_lshl_add_u32 v{t}, v{t+1}, 5, v{t}')
        a(f'v_and_b32 v{t+1}, 3, v0')
        a(f'v_lshl_add_u32 v{self.vTr0}, v{t+1}, 3, v{t}')
        a(f'v_xor_b32 v{self.vTr1}, 64, v{self.vTr0}')
        a(f'v_and_b32 v{t}, 15, v0')
        a(f'v_lshlrev_b32 v{t}, 4, v{t}')
        a(f'v_lshrrev_b32 v{t+1}, 5, v0')
        a(f'v_lshl_add_u32 v{t}, v{t+1}, 8, v{t}')
        a(f'v_bfe_u32 v{t+1}, v0, 4, 1')
        a(f'v_lshl_add_u32 v{self.vSK}, v{t+1}, 12, v{t}')
        a(f'v_lshl_add_u32 v{self.vSV}, v{t+1}, 10, v{t}')
        a(f's_mov_b32 s{self.sBuf}, 0')
    def load_h(self, sRb, ld=''):
        a = self.a; t = self.vT
        a(f'v_and_b32 v{t}, 31, v0')
        a(f'v_lshlrev_b32 v{t}, 10, v{t}')
        a(f'v_lshrrev_b32 v{t+1}, 5, v0')
        a(f'v_lshl_add_u32 v{t}, v{t+1}, 4, v{t}')
        a(f's_lshl_b32 s{self.sTmp}, s{sRb}, 3')
        a(f's_add_u32 s{self.sTmp}, s{self.sTmp}, s{self.sWave}')
        a(f's_lshl_b32 s{self.sTmp}, s{self.sTmp}, 15')
        a(f's_add_u32 s{self.sTmp}, s{self.sTmp}, {WS_H}')
        add64(a, self.sSrc, self.sWs, f's{self.sTmp}')
        for ks in range(32):
            a(f'global_load_dwordx4 {ar(4*ks,4)}, v{t}, s[{self.sSrc}:{self.sSrc+1}] offset:{32*ks}{ld}')
    def dma(self, sCt):
        a = self.a; T = self.sTmp
        a(f's_cmp_lt_u32 s{sCt}, 64')
        a(f's_cselect_b32 s{self.sSrc}, s{self.sWk}, s{self.sWv}')
        a(f's_cselect_b32 s{self.sSrc+1}, s{self.sWk+1}, s{self.sWv+1}')
        a(f's_cmp_lt_u32 s{sCt}, 128')
        a(f's_cselect_b32 s{self.sSrc}, s{self.sSrc}, s{self.sWq}')
        a(f's_cselect_b32 s{self.sSrc+1}, s{self.sSrc+1}, s{self.sWq+1}')
        a(f's_and_b32 s{T}, s{sCt}, 63')
        a(f's_lshl_b32 s{T}, s{T}, 7')
        a(f's_lshl_b32 s{T+1}, s{self.sWave}, 19')
        a(f's_add_u32 s{T}, s{T}, s{T+1}')
        add64(a, self.sSrc, self.sSrc, f's{T}')
        a(f's_lshl_b32 s{T}, s{self.sWave}, 13')
        a(f's_add_u32 s{T}, s{T}, s{self.sBuf}')
        for t in range(8):
            a(f's_add_u32 m0, s{T}, {t*1024}')
            a(f'global_load_lds_dwordx4 v{self.vDma}, s[{self.sSrc}:{self.sSrc+1}]')
            if t < 7: add64(a, self.sSrc, self.sSrc, 8 * 8192)
        a(f's_xor_b32 s{self.sBuf}, s{self.sBuf}, 0x10000')
    def compute(self, isV):
        a = self.a
        NS = 4
        def rd(ks):
            for nt in range(2):
                for j in range(2):
                    d = self.WF + ((ks % NS) * 2 + nt) * 4 + 2 * j
                    a(f'ds_read_b64_tr_b16 {vr(d,2)}, v{self.vTr0 if nt == 0 else self.vTr1} offset:{ks*2048 + j*512}')
        for ks in range(NS - 1): rd(ks)
        for ks in range(32):
            if ks + NS - 1 < 32: rd(ks + NS - 1)
            rem = min(31 - ks, NS - 1)
            a(f's_waitcnt lgkmcnt({4*rem})')
            for nt in range(2):
                W = vr(self.WF + ((ks % NS) * 2 + nt) * 4, 4); H = ar(4 * ks, 4); D = vr(self.ACC + 16 * nt, 16)
                A_, B_ = (H, W) if isV else (W, H)
                a(f'v_mfma_f32_32x32x16_bf16 {D}, {A_}, {B_}, {"0" if ks == 0 else D}')
        a(f'v_xor_b32 v{self.vTr0}, 0x10000, v{self.vTr0}')
        a(f'v_xor_b32 v{self.vTr1}, 0x10000, v{self.vTr1}')
    def out_base(self, sCt, sRb, isV):
        a = self.a; T = self.sTmp
        a(f's_lshl_b32 s{T}, s{sRb}, 3')
        a(f's_add_u32 s{T}, s{T}, s{self.sWave}')
        a(f's_lshl_b32 s{T}, s{T}, 5')
        a(f's_bfe_u32 s{T+1}, s{sCt}, 0x50001')
        a(f's_add_u32 s{T}, s{T}, s{T+1}')
        a(f's_lshl_b32 s{T}, s{T}, 13')
        a(f's_and_b32 s{T+1}, s{sCt}, 1')
        a(f's_lshl_b32 s{T+1}, s{T+1}, {12 if isV else 11}')
        a(f's_add_u32 s{T}, s{T}, s{T+1}')
        if isV:
            a(f's_add_u32 s{T}, s{T}, {WS_V}')
        else:
            a(f's_cmp_lt_u32 s{sCt}, 64')
            a(f's_cselect_b32 s{T+1}, {WS_K - WS_Q}, 0')
            a(f's_add_u32 s{T}, s{T}, s{T+1}')
            a(f's_add_u32 s{T}, s{T}, {WS_Q}')
        add64(a, self.sOut, self.sWs, f's{T}')
    def epilogue(self, isV):
        a = self.a
        for nt in range(2):
            D = self.ACC + 16 * nt
            for q in range(2):
                P = self.PK + (nt * 2 + q) * 4
                if isV:
                    a(f'v_cvt_pk_bf16_f32 v{P}, v{D+4*q}, v{D+4*q+1}')
                    a(f'v_cvt_pk_bf16_f32 v{P+1}, v{D+4*q+2}, v{D+4*q+3}')
                    a(f'v_cvt_pk_bf16_f32 v{P+2}, v{D+4*(q+2)}, v{D+4*(q+2)+1}')
                    a(f'v_cvt_pk_bf16_f32 v{P+3}, v{D+4*(q+2)+2}, v{D+4*(q+2)+3}')
                    a(f'global_store_dwordx4 v{self.vSV}, {vr(P,4)}, s[{self.sOut}:{self.sOut+1}] offset:{nt*2048 + q*512}{self.st}')
                else:
                    for j in range(4):
                        a(f'v_cvt_pk_bf16_f32 v{P+j}, v{D+4*q+j}, v{D+4*(q+2)+j}')
                    a(f'global_store_dwordx4 v{self.vSK}, {vr(P,4)}, s[{self.sOut}:{self.sOut+1}] offset:{nt*1024 + q*512}{self.st}')

def build_qkv_kernel(a):
    header(a, 'qkv_kernel')
    a('s_cmp_ge_u32 s2, 256'); a('s_cbranch_scc1 L_qkv_end')
    a(f's_load_dwordx4 s[4:7], s[0:1], {KA["Wq"]}')
    a(f's_load_dwordx2 s[8:9], s[0:1], {KA["Wv"]}')
    a(f's_load_dwordx2 s[10:11], s[0:1], {KA["ws"]}')
    a('v_lshrrev_b32 v1, 6, v0'); a('v_and_b32 v0, 63, v0'); a('v_readfirstlane_b32 s12, v1')
    a('s_waitcnt lgkmcnt(0)')
    g = QKV(a, 4, 6, 8, 10, 12)
    sRb, sCt, sNext, sEnd = 13, 14, 15, 16
    a(f's_bfe_u32 s{sRb}, s2, 0x30003')
    a(f's_and_b32 s{sCt}, s2, 7')
    a(f's_lshl_b32 s{sCt}, s{sCt}, 2')
    a(f's_lshr_b32 s{sNext}, s2, 6')
    a(f's_add_u32 s{sCt}, s{sCt}, s{sNext}')
    a(f's_mul_i32 s{sCt}, s{sCt}, 6')
    a(f's_add_u32 s{sEnd}, s{sCt}, 6')
    g.setup()
    g.dma(sCt)
    g.load_h(sRb)
    a('s_waitcnt vmcnt(0)')
    a('L_qkv_loop:')
    a('s_waitcnt vmcnt(4)')
    a('s_barrier')
    a(f's_add_u32 s{sNext}, s{sCt}, 1')
    a(f's_cmp_ge_u32 s{sNext}, s{sEnd}')
    a('s_cbranch_scc1 L_qkv_nodma')
    g.dma(sNext)
    a('L_qkv_nodma:')
    a(f's_sub_u32 s46, s{sCt}, 64')
    a('s_cmp_lt_u32 s46, 64')
    a('s_cbranch_scc1 L_qkv_v')
    g.compute(False); g.out_base(sCt, sRb, False); g.epilogue(False)
    a('s_branch L_qkv_next')
    a('L_qkv_v:')
    g.compute(True); g.out_base(sCt, sRb, True); g.epilogue(True)
    a('L_qkv_next:')
    a(f's_mov_b32 s{sCt}, s{sNext}')
    a(f's_cmp_lt_u32 s{sCt}, s{sEnd}')
    a.fence(4)
    a('s_cbranch_scc1 L_qkv_loop')
    a('L_qkv_end:'); a('s_endpgm')
    a.raw(kernel_desc('qkv_kernel', vgpr=256, accum=128))
```

```python
from asmlib import *
from layout import *
import struct
def f2u(f): return struct.unpack('<I', struct.pack('<f', f))[0]

L_MEM, L_KX, L_VX, L_QB, L_KB, L_OB, L_VB, L_MISC, L_W = 0, 8192, 16384, 24576, 26880, 29184, 31488, 32512, 32768
L_FQ, L_FK, L_FV = L_MISC + 16, L_MISC + 32, L_MISC + 48
ROWB = 288
LOG2E = 1.4426950408889634
QSCALE = (128 ** -0.5) * LOG2E
POLL_LIMIT = 60000

sWq, sWk, sWv, sWo, sM0in, sDbg, sWs = 4, 6, 8, 10, 12, 14, 16
sH, sW, sS, sT2, sT0, sT1, sT3, sCnt = 18, 19, 20, 21, 22, 23, 24, 25
sMemR, sMemW, sPartW, sPartR, sKx, sVx, sKm, sVm, sMemC, sDbgM = 26, 28, 30, 32, 34, 36, 38, 40, 42, 44
sQs, sRole = 46, 47
sEx = 48
sMemB, sPartB = 50, 52
sPrevR, sPrevM = 54, 56
sPubM = 58
sWv8 = 60
sS1 = 61
sTm = 96

vIdx, vL16, vWQ, vRO, vP, vWB, vVmo, vFW = range(8)
vRQ, vRK, vWO = 8, 9, 10
vPR, vPub, vKmo = 8, 9, 10
vT = 11
vDummy = 14
vFR = 15
vA = 16
vAc = 48
vAv = 56
vE = 60
WvR = 64

def wa_reg(tau, sig): return ar((tau * 8 + sig) * 8, 8)
def wv_reg(sig): return vr(WvR + sig * 8, 8)
def wo_off(t, c, hh): return c * 16384 + t * 2048 + hh * 1024

def add64(a, dst, src, val):
    a(f's_add_u32 s{dst}, s{src}, {val}')
    a(f's_addc_u32 s{dst+1}, s{src+1}, 0')

def emit_rec_setup(a):
    a(f's_and_b32 s{sW}, s{sWv8}, 3')
    a(f's_lshr_b32 s{sRole}, s{sWv8}, 2')
    lane = 40
    T = lambda i: 41 + i
    a(f'v_mov_b32 v{lane}, v0')
    a(f'v_lshlrev_b32 v{vL16}, 4, v{lane}')
    n, g = T(0), T(1)
    a(f'v_and_b32 v{n}, 15, v{lane}')
    a(f'v_lshrrev_b32 v{g}, 4, v{lane}')
    vWrow, vTrQ, vTrO = T(2), T(3), T(7)
    a(f'v_lshlrev_b32 v{vWrow}, 13, v{g}')
    a(f'v_lshl_add_u32 v{vWrow}, v{n}, 4, v{vWrow}')
    a(f's_lshl_b32 s{sT0}, s{sH}, 8')
    a(f's_lshl_b32 s{sT1}, s{sW}, 19')
    a(f's_add_u32 s{sT0}, s{sT0}, s{sT1}')
    a(f's_lshl_b32 s{sT1}, s{sRole}, 18')
    a(f's_add_u32 s{sT0}, s{sT0}, s{sT1}')
    for p in (sWq, sWk, sWv): add64(a, p, p, f's{sT0}')
    a(f's_lshl_b32 s{sT0}, s{sH}, 17')
    a(f's_lshl_b32 s{sT1}, s{sW}, 14')
    a(f's_add_u32 s{sT0}, s{sT0}, s{sT1}')
    a(f's_lshl_b32 s{sT1}, s{sRole}, 13')
    a(f's_add_u32 s{sT0}, s{sT0}, s{sT1}')
    add64(a, sWo, sWo, f's{sT0}')
    a(f's_lshl_b32 s{sT3}, s{sW}, 15')
    a(f's_add_u32 s{sT3}, s{sT3}, {L_W}')
    a(f'v_add_u32 v{vWB}, s{sT3}, v{vL16}')
    a(f's_lshl_b32 s{sT1}, s{sRole}, 13')
    a(f's_add_u32 s{sT3}, s{sT3}, s{sT1}')
    a(f'v_add_u32 v{vWB}, s{sT1}, v{vWB}')
    stages = [('q', 0), ('k', 1), ('q', 1), ('k', 0), ('v', 0), ('v', 1), ('o', 0), ('o', 1)]
    stages = [('q', 0), ('q', 1), ('k', 0), ('k', 1), ('v', 0), ('v', 1), ('o', 0), ('o', 1)]
    def dma(st):
        m, hf = stages[st]
        base = {'q': sWq, 'k': sWk, 'v': sWv, 'o': sWo}[m]
        for t in range(8):
            if m == 'o':
                goff = hf * 65536 + t * 1024; va = vL16
            else:
                goff = hf * 256 * 8192 + t * 32768; va = vWrow
            add64(a, sT0, base, goff)
            a(f's_add_u32 m0, s{sT3}, {hf * 16384 + t * 1024}')
            a(f'global_load_lds_dwordx4 v{va}, s[{sT0}:{sT0+1}]')
    r_, cc, t0, t1, m0a, m0b = T(9), T(10), T(11), T(12), T(13), T(14)
    a(f'v_lshrrev_b32 v{t0}, 3, v{lane}')
    a(f'v_lshlrev_b32 v{t0}, 10, v{t0}')
    a(f'v_bfe_u32 v{t1}, v{lane}, 1, 2')
    a(f'v_lshl_add_u32 v{t0}, v{t1}, 1, v{t0}')
    a(f'v_and_b32 v{t1}, 1, v{lane}')
    a(f'v_lshl_add_u32 v{t0}, v{t1}, 4, v{t0}')
    a(f's_lshl_b32 s{sT2}, s{sH}, 5')
    a(f'v_add_u32 v{t0}, s{sT2}, v{t0}')
    a(f'global_load_ushort v{m0a}, v{t0}, s[{sM0in}:{sM0in+1}]')
    a(f'global_load_ushort v{m0b}, v{t0}, s[{sM0in}:{sM0in+1}] offset:8')
    dma(0); dma(1)
    a(f'v_lshrrev_b32 v{r_}, 2, v{n}')
    a(f'v_and_b32 v{cc}, 3, v{n}')
    a(f'v_lshrrev_b32 v{t0}, 1, v{g}')
    a(f'v_lshlrev_b32 v{t0}, 4, v{t0}')
    a(f'v_and_b32 v{t1}, 1, v{g}')
    a(f'v_add_u32 v{t0}, v{t0}, v{t1}')
    a(f'v_and_b32 v{t1}, 1, v{r_}')
    a(f'v_lshl_add_u32 v{t0}, v{t1}, 2, v{t0}')
    a(f'v_lshrrev_b32 v{t1}, 1, v{r_}')
    a(f'v_lshl_add_u32 v{t0}, v{t1}, 1, v{t0}')
    a(f'v_lshlrev_b32 v{t0}, 8, v{t0}')
    a(f'v_lshl_add_u32 v{t0}, v{cc}, 3, v{t0}')
    a(f's_lshl_b32 s{sT2}, s{sW}, 6')
    a(f's_add_u32 s{sT2}, s{sT2}, {L_W}')
    a(f'v_add_u32 v{t0}, s{sT2}, v{t0}')
    for sp in range(4):
        a(f's_xor_b32 s{sT2}, s{sW}, {sp}')
        a(f's_lshl_b32 s{sT2}, s{sT2}, 15')
        a(f'v_add_u32 v{vTrQ+sp}, s{sT2}, v{t0}')
    a(f'v_lshrrev_b32 v{t0}, 1, v{g}')
    a(f'v_lshlrev_b32 v{t0}, 3, v{t0}')
    a(f'v_lshrrev_b32 v{t1}, 1, v{r_}')
    a(f'v_lshl_add_u32 v{t0}, v{t1}, 2, v{t0}')
    a(f'v_and_b32 v{t1}, 1, v{r_}')
    a(f'v_add_u32 v{t0}, v{t0}, v{t1}')
    a(f'v_lshlrev_b32 v{t0}, 10, v{t0}')
    a(f'v_and_b32 v{t1}, 1, v{g}')
    a(f'v_lshl_add_u32 v{t0}, v{t1}, 15, v{t0}')
    a(f'v_lshl_add_u32 v{t0}, v{cc}, 5, v{t0}')
    a(f's_lshl_b32 s{sT2}, s{sW}, 8')
    a(f's_lshl_b32 s{sCnt}, s{sRole}, 7')
    a(f's_add_u32 s{sT2}, s{sT2}, s{sCnt}')
    a(f's_add_u32 s{sT2}, s{sT2}, {L_W}')
    a(f'v_add_u32 v{vTrO}, s{sT2}, v{t0}')
    a(f'v_add_u32 v{vTrO+1}, 0x10000, v{vTrO}')
    a(f'v_and_b32 v{t0}, 1, v{lane}')
    a(f'v_mul_u32_u24 v{t0}, 0xAAAA, v{t0}')
    a(f'v_add_u32 v{vIdx}, 0x4444, v{t0}')
    a(f'v_mul_u32_u24 v{t0}, {2*ROWB}, v{g}')
    a(f'v_lshl_add_u32 v{t0}, v{n}, 2, v{t0}')
    a(f's_mul_i32 s{sCnt}, s{sRole}, {L_KB-L_QB}')
    a(f's_lshl_b32 s{sT2}, s{sW}, 6')
    a(f's_add_u32 s{sT2}, s{sT2}, s{sCnt}')
    a(f's_add_u32 s{sT2}, s{sT2}, {L_QB}')
    a(f'v_add_u32 v{vWQ}, s{sT2}, v{t0}')
    a(f'v_lshrrev_b32 v{t0}, 1, v{n}')
    a(f'v_mul_u32_u24 v{t0}, {ROWB}, v{t0}')
    a(f'v_lshl_add_u32 v{t0}, v{g}, 5, v{t0}')
    a(f'v_and_b32 v{t1}, 1, v{n}')
    a(f'v_lshl_add_u32 v{t0}, v{t1}, 4, v{t0}')
    a(f'v_add_u32 v{vRO}, {L_OB}, v{t0}')
    a(f'v_lshlrev_b32 v{t0}, 13, v{r_}')
    a(f'v_lshl_add_u32 v{t0}, v{g}, 10, v{t0}')
    a(f'v_lshl_add_u32 v{t0}, v{cc}, 4, v{t0}')
    a(f's_lshl_b32 s{sT2}, s{sW}, 16')
    a(f's_lshl_b32 s{sCnt}, s{sRole}, 15')
    a(f's_add_u32 s{sT2}, s{sT2}, s{sCnt}')
    a(f's_lshr_b32 s{sCnt}, s{sH}, 4')
    a(f's_lshl_b32 s{sCnt}, s{sCnt}, 12')
    a(f's_add_u32 s{sT2}, s{sT2}, s{sCnt}')
    a(f's_and_b32 s{sCnt}, s{sH}, 15')
    a(f's_lshl_b32 s{sCnt}, s{sCnt}, 6')
    a(f's_add_u32 s{sT2}, s{sT2}, s{sCnt}')
    a(f'v_add_u32 v{vP}, s{sT2}, v{t0}')
    a(f'v_lshlrev_b32 v{t0}, 4, v{n}')
    a(f'v_lshl_add_u32 v{t0}, v{g}, 2, v{t0}')
    a(f's_lshl_b32 s{sT2}, s{sW}, 9')
    a(f's_lshl_b32 s{sCnt}, s{sRole}, 8')
    a(f's_add_u32 s{sT2}, s{sT2}, s{sCnt}')
    a(f'v_add_u32 v{vVmo}, s{sT2}, v{t0}')
    a(f's_lshl_b32 s{sT2}, s{sW}, 2')
    a(f'v_mov_b32 v{vFW}, s{sT2}')
    LB = a.uid('su_b'); LE = a.uid('su_e')
    a(f's_cmp_lg_u32 s{sRole}, 0')
    a(f's_cbranch_scc1 {LB}')
    a(f'v_and_b32 v{t0}, 7, v{n}')
    a(f'v_mul_u32_u24 v{t0}, {ROWB}, v{t0}')
    a(f'v_lshl_add_u32 v{t0}, v{g}, 4, v{t0}')
    a(f'v_add_u32 v{vRQ}, {L_QB}, v{t0}')
    a(f's_lshl_b32 s{sT2}, s{sW}, 6')
    a(f's_add_u32 s{sT2}, s{sT2}, {L_OB}')
    a(f'v_add_u32 v{vWO}, s{sT2}, v{t0}')
    a(f'v_and_b32 v{t1}, 1, v{n}')
    a(f'v_lshl_add_u32 v{t1}, v{r_}, 1, v{t1}')
    a(f'v_mul_u32_u24 v{t0}, {ROWB}, v{t1}')
    a(f'v_lshl_add_u32 v{t0}, v{g}, 4, v{t0}')
    a(f'v_add_u32 v{vRK}, {L_KB}, v{t0}')
    a(f'v_lshlrev_b32 v{vFR}, 2, v{cc}')
    a(f's_branch {LE}')
    a(f'{LB}:')
    a(f's_lshl_b32 s{sT2}, s{sW}, 10')
    a(f'v_add_u32 v{vPR}, s{sT2}, v{vL16}')
    a(f'v_lshlrev_b32 v{t0}, 5, v{g}')
    a(f'v_lshl_add_u32 v{t0}, v{cc}, 3, v{t0}')
    a(f'v_and_b32 v{t0}, 63, v{t0}')
    a(f's_lshl_b32 s{sT2}, s{sW}, 6')
    a(f's_lshl_b32 s{sCnt}, s{sH}, 8')
    a(f's_add_u32 s{sT2}, s{sT2}, s{sCnt}')
    a(f'v_add_u32 v{vPub}, s{sT2}, v{t0}')
    a(f'v_lshlrev_b32 v{t0}, 9, v{g}')
    a(f'v_lshl_add_u32 v{t0}, v{n}, 2, v{t0}')
    a(f's_lshl_b32 s{sT2}, s{sW}, 6')
    a(f'v_add_u32 v{vKmo}, s{sT2}, v{t0}')
    a(f'v_and_b32 v{t0}, 31, v{lane}')
    a(f'v_lshlrev_b32 v{t0}, 6, v{t0}')
    a(f'v_lshrrev_b32 v{t1}, 5, v{lane}')
    a(f'v_lshl_add_u32 v15, v{t1}, 24, v{t0}')
    a(f'{LE}:')
    add64(a, sMemB, sWs, WS_MEM)
    add64(a, sPartB, sWs, WS_PART)
    a(f's_lshl_b32 s{sT2}, s{sH}, 13')
    a(f's_lshl_b32 s{sCnt}, s{sW}, 11')
    a(f's_add_u32 s{sCnt}, s{sCnt}, s{sT2}')
    add64(a, sKx, sWs, WS_K); add64(a, sKx, sKx, f's{sCnt}')
    add64(a, sVx, sWs, WS_V); add64(a, sVx, sVx, f's{sCnt}')
    a(f's_lshl_b32 s{sT2}, s{sH}, 11')
    add64(a, sKm, sWs, WS_KM); add64(a, sKm, sKm, f's{sT2}')
    add64(a, sVm, sWs, WS_VM); add64(a, sVm, sVm, f's{sT2}')
    add64(a, sDbgM, sWs, WS_MEMDBG)
    a(f's_mov_b32 s{sQs}, {hex(f2u(QSCALE))}')
    a(f's_mov_b32 s{sPubM}, 0x000f000f')
    a(f's_mov_b32 s{sPubM+1}, 0')
    a(f's_mov_b64 s[{sPartR}:{sPartR+1}], s[{sPartB}:{sPartB+1}]')
    a(f's_mov_b64 s[{sMemC}:{sMemC+1}], s[{sMemB}:{sMemB+1}]')
    a(f'v_mov_b32 v{t0}, 0')
    a(f'v_lshlrev_b32 v{t1}, 2, v{n}')
    a(f'ds_write_b32 v{t1}, v{t0} offset:{L_MISC+16}')
    CL = 16
    for i in range(4): a(f'v_mov_b32 v{CL+i}, -1')
    a(f's_lshl_b32 s{sT2}, s{sH}, 13')
    a(f's_lshl_b32 s{sCnt}, s{sWv8}, 10')
    a(f's_add_u32 s{sT2}, s{sT2}, s{sCnt}')
    a(f'v_add_u32 v{t0}, s{sT2}, v{vL16}')
    for par in range(4):
        a(f'global_store_dwordx4 v{t0}, v[{CL}:{CL+3}], s[{sPartB}:{sPartB+1}]')
        a(f'v_add_u32 v{t0}, 0x40000, v{t0}')
    a('s_waitcnt vmcnt(20)')
    a(f'v_lshl_or_b32 v{m0a}, v{m0b}, 16, v{m0a}')
    a(f'v_min_u32 v{m0a}, 0xfffffffe, v{m0a}')
    a(f's_cmp_eq_u32 s{sW}, 0')
    a(f's_cselect_b64 vcc, -1, 0')
    a(f'v_cndmask_b32 v{m0a}, -1, v{m0a}, vcc')
    a(f's_lshl_b32 s{sT2}, s{sW}, 13')
    a(f's_lshl_b32 s{sCnt}, s{sH}, 8')
    a(f's_add_u32 s{sT2}, s{sT2}, s{sCnt}')
    a(f'v_lshlrev_b32 v{t0}, 2, v{lane}')
    a(f'v_add_u32 v{t0}, s{sT2}, v{t0}')
    a(f'global_store_dword v{t0}, v{m0a}, s[{sMemB}:{sMemB+1}]')
    vTrV = T(15)
    a(f's_lshl_b32 s{sT2}, s{sRole}, 5')
    for sp in range(4): a(f'v_add_u32 v{vTrV+sp}, s{sT2}, v{vTrQ+sp}')
    TMP = 8
    for st in range(8):
        m, hf = stages[st]
        n_after = {0: 8 + 5, 7: 0}.get(st, 8)
        a(f's_waitcnt vmcnt({n_after})')
        a('s_barrier')
        if m in 'qk':
            Ls = a.uid('su_skip')
            a(f's_cmp_lg_u32 s{sRole}, {0 if m == "q" else 1}')
            a(f's_cbranch_scc1 {Ls}')
            for tau in range(2):
                for sp in range(4):
                    for j in range(4):
                        imm = (32 * (j >> 1) + 8 * (j & 1)) * 256 + tau * 32 + hf * 16384
                        sig = hf * 4 + sp
                        a(f'ds_read_b64_tr_b16 {ar((tau * 8 + sig) * 8 + 2 * j, 2)}, v{vTrQ+sp} offset:{imm}')
                    if sp % 2 == 1: a('s_waitcnt lgkmcnt(4)')
            a(f'{Ls}:')
        elif m == 'v':
            for sp in range(4):
                for j in range(4):
                    imm = (32 * (j >> 1) + 8 * (j & 1)) * 256 + hf * 16384
                    a(f'ds_read_b64_tr_b16 {vr(WvR + (hf * 4 + sp) * 8 + 2 * j, 2)}, v{vTrV+sp} offset:{imm}')
                if sp % 2 == 1: a('s_waitcnt lgkmcnt(4)')
        else:
            def tmp(t): return 16 + 8 * t if t < 3 else 52
            for t in range(4):
                for j in range(4):
                    imm = hf * 16384 + (j & 1) * 2048 + t * 8
                    a(f'ds_read_b64_tr_b16 {vr(tmp(t) + 2 * j, 2)}, v{vTrO + (j >> 1)} offset:{imm}')
                if t % 2 == 1: a('s_waitcnt lgkmcnt(4)')
        a('s_waitcnt lgkmcnt(0)')
        a('s_barrier')
        if m == 'o':
            Lb = a.uid('su_ob'); Le = a.uid('su_oe')
            a(f's_cmp_lg_u32 s{sRole}, 0')
            a(f's_cbranch_scc1 {Lb}')
            for t in range(4):
                for hh in range(2):
                    a(f'ds_write_b128 v{vWB}, {vr(tmp(t) + 4 * hh, 4)} offset:{wo_off(t, hf, hh)}')
            a(f's_branch {Le}')
            a(f'{Lb}:')
            for sp in range(4):
                for hh in range(2):
                    a(f'ds_write_b128 v{vWB}, {vr(WvR + (hf * 4 + sp) * 8 + 4 * hh, 4)} offset:{wo_off(sp, hf, hh)}')
            a('s_waitcnt lgkmcnt(0)')
            for t in range(4):
                for i in range(0, 8, 2):
                    a(f'v_mov_b64 {vr(WvR + (hf * 4 + t) * 8 + i, 2)}, {vr(tmp(t) + i, 2)}')
            a(f'{Le}:')
        if st + 2 < 8: dma(st + 2)

def emit_heads_barrier(a, Lerr):
    a('s_waitcnt vmcnt(0) lgkmcnt(0)')
    a('s_barrier')
    Lskip = a.uid('hb_skip'); Lp = a.uid('hb_poll')
    a(f's_cmp_lg_u32 s{sWv8}, 0')
    a(f's_cbranch_scc1 {Lskip}')
    a(f'v_mov_b32 v{vT}, 36')
    a(f'v_mov_b32 v{vT+1}, 1')
    a('s_mov_b64 exec, 1')
    a(f'global_atomic_add v{vT}, v{vT+1}, s[{sDbg}:{sDbg+1}] sc1')
    a('s_mov_b64 exec, -1')
    a(f's_mov_b32 s{sCnt}, {POLL_LIMIT}')
    a(f'{Lp}:')
    a(f'global_load_dword v{vT+1}, v{vT}, s[{sDbg}:{sDbg+1}] sc1')
    a(f's_sub_u32 s{sCnt}, s{sCnt}, 1')
    a(f's_cbranch_scc1 {Lerr}')
    a('s_waitcnt vmcnt(0)')
    a(f'v_cmp_gt_u32 vcc, 32, v{vT+1}')
    a(f's_cbranch_vccnz {Lp}')
    a(f'{Lskip}:')
    a('s_barrier')

def smf(a, d, A, B, idx=None):
    a(f'v_smfmac_f32_16x16x64_bf16 {vr(d,4)}, {vr(A,4)}, {B}, v{vIdx if idx is None else idx}')
def mf(a, d, A, B, C):
    a(f'v_mfma_f32_16x16x32_bf16 {vr(d,4)}, {vr(A,4)}, {vr(B,4)}, {C if isinstance(C,str) else vr(C,4)}')
def mf16(a, d, A, B, C):
    a(f'v_mfma_f32_16x16x16_bf16 {vr(d,4)}, {vr(A,2)}, {vr(B,2)}, {vr(C,4)}')

class Stamps:
    def __init__(self, a, on): self.a = a; self.on = on; self.n = 0
    def __call__(self):
        if not self.on: return
        assert self.n < 16
        self.a(f's_memtime s[{64+2*self.n}:{65+2*self.n}]')
        self.n += 1
    def dump(self, step=40):
        if not self.on: return
        a = self.a
        L = a.uid('nodump')
        a(f's_cmp_lg_u32 s{sS}, {step}')
        a(f's_cbranch_scc1 {L}')
        a('s_waitcnt lgkmcnt(0)')
        a(f's_lshl_b32 s{sT2}, s{sH}, 9')
        a(f's_lshl_b32 s{sT3}, s{sWv8}, 6')
        a(f's_add_u32 s{sT2}, s{sT2}, s{sT3}')
        a(f'v_mov_b32 v{vT}, s{sT2}')
        for i in range(self.n):
            a(f'v_mov_b32 v{vT+1}, s{64+2*i}')
            a(f'global_store_dword v{vT}, v{vT+1}, s[{sDbgM}:{sDbgM+1}] offset:{4*i}')
        a(f'{L}:')

def poll2(a, R0, R1, voff, sbase, off0, off1, Lerr, opt, pre=None):
    def loads():
        a(f'global_load_dwordx4 {vr(R0,4)}, v{voff}, s[{sbase}:{sbase+1}] offset:{off0} sc1')
        a(f'global_load_dwordx4 {vr(R1,4)}, v{voff}, s[{sbase}:{sbase+1}] offset:{off1} sc1')
    def check():
        a(f'v_max3_u32 v{vT}, v{R0}, v{R0+1}, v{R0+2}')
        a(f'v_max3_u32 v{vT+1}, v{R1}, v{R1+1}, v{R1+2}')
        a(f'v_max3_u32 v{vT}, v{vT}, v{R0+3}, v{R1+3}')
        a(f'v_max_u32 v{vT}, v{vT}, v{vT+1}')
        a(f'v_cmp_eq_u32 vcc, -1, v{vT}')
    Lok = a.uid('p_ok'); Lp = a.uid('p_loop')
    depth = opt.get('pdepth', 2); gap = opt.get('pgap', 2)
    loads()
    if pre: pre()
    a(f's_mov_b32 s{sCnt}, {POLL_LIMIT}')
    a('s_waitcnt vmcnt(0)')
    check()
    a(f's_cbranch_vccz {Lok}')
    a('s_mov_b64 exec, vcc')
    for d in range(depth - 1):
        loads()
        for _ in range(gap): a('s_nop 7')
    a(f'{Lp}:')
    loads()
    a(f's_sub_u32 s{sCnt}, s{sCnt}, 1')
    a(f's_cbranch_scc1 {Lerr}')
    a(f's_waitcnt vmcnt({2 * (depth - 1)})')
    check()
    a('s_and_b64 exec, exec, vcc')
    a(f's_cbranch_execnz {Lp}')
    a('s_mov_b64 exec, -1')
    a(f'{Lok}:')

def poll1(a, R0, voff, sbase, off0, Lerr, opt, pre=None):
    def loads(): a(f'global_load_dwordx4 {vr(R0,4)}, v{voff}, s[{sbase}:{sbase+1}] offset:{off0} sc1')
    def check():
        a(f'v_max3_u32 v{vT}, v{R0}, v{R0+1}, v{R0+2}')
        a(f'v_max_u32 v{vT}, v{vT}, v{R0+3}')
        a(f'v_cmp_eq_u32 vcc, -1, v{vT}')
    Lok = a.uid('p_ok'); Lp = a.uid('p_loop')
    loads()
    if pre: pre()
    a(f's_mov_b32 s{sCnt}, {POLL_LIMIT}')
    a('s_waitcnt vmcnt(0)')
    check()
    a(f's_cbranch_vccz {Lok}')
    a('s_mov_b64 exec, vcc')
    loads()
    a('s_nop 7'); a('s_nop 7')
    a(f'{Lp}:')
    loads()
    a(f's_sub_u32 s{sCnt}, s{sCnt}, 1')
    a(f's_cbranch_scc1 {Lerr}')
    a('s_waitcnt vmcnt(1)')
    check()
    a('s_and_b64 exec, exec, vcc')
    a(f's_cbranch_execnz {Lp}')
    a('s_mov_b64 exec, -1')
    a(f'{Lok}:')

def step_bases(a):
    a(f's_mov_b64 s[{sPrevR}:{sPrevR+1}], s[{sPartR}:{sPartR+1}]')
    a(f's_mov_b64 s[{sPrevM}:{sPrevM+1}], s[{sMemC}:{sMemC+1}]')
    a(f's_and_b32 s{sT2}, s{sS}, 3')
    a(f's_lshl_b32 s{sT2}, s{sT2}, 13')
    add64(a, sMemC, sMemB, f's{sT2}')
    a(f's_lshl_b32 s{sT3}, s{sW}, 10')
    a(f's_add_u32 s{sT3}, s{sT3}, 2048')
    add64(a, sMemR, sMemC, f's{sT3}')
    a(f's_add_u32 s{sS1}, s{sS}, 1')
    a(f's_and_b32 s{sT2}, s{sS1}, 3')
    a(f's_lshl_b32 s{sT2}, s{sT2}, 13')
    add64(a, sMemW, sMemB, f's{sT2}')
    a(f's_and_b32 s{sT2}, s{sS}, 3')
    a(f's_lshl_b32 s{sT2}, s{sT2}, 18')
    add64(a, sPartW, sPartB, f's{sT2}')
    a(f's_lshl_b32 s{sT2}, s{sH}, 13')
    a(f's_add_u32 s{sT2}, s{sT2}, 2048')
    add64(a, sPartR, sPartW, f's{sT2}')

others = [(1, 0), (1, 1), (2, 0), (2, 1), (3, 0), (3, 1)]
AS = lambda sig: vA + 4 * sig

def wo_phase(a, st, first_bufs_loaded, bufs, OA, ACC, S):
    seq = [(t_, c) for c in range(2) for t_ in range(4)]
    nb = len(bufs)
    def WOL(i):
        t_, c = seq[i]; b = bufs[i % nb]
        a(f'ds_read_b128 {vr(b,4)}, v{vWB} offset:{wo_off(t_, c, 0)}')
        a(f'ds_read_b128 {vr(b+4,4)}, v{vWB} offset:{wo_off(t_, c, 1)}')
    a(f'ds_read_b128 {vr(OA,4)}, v{vRO}')
    a(f'ds_read_b128 {vr(OA+4,4)}, v{vRO} offset:128')
    issued = first_bufs_loaded
    after_oa = 0
    while issued < nb: WOL(issued); issued += 1; after_oa += 1
    order = ['OA0', 'OA1'] + [i for i in range(first_bufs_loaded, nb) for _ in range(2)]
    def wait_for(item):
        if item not in order: return
        idx = len(order) - 1 - order[::-1].index(item)
        a(f's_waitcnt lgkmcnt({min(15, len(order) - 1 - idx)})')
    for i in range(8):
        t_, c = seq[i]
        need_ = []
        if i == 0: need_.append('OA0')
        if i == 4: need_.append('OA1')
        need_.append(i)
        present = [x for x in need_ if x in order]
        if present:
            latest = max(present, key=lambda x: len(order) - 1 - order[::-1].index(x))
            wait_for(latest)
        if i == 0: S()
        smf(a, ACC + 4 * t_, OA + 4 * c, vr(bufs[i % nb], 8))
        if issued < 8:
            WOL(issued); order += [issued, issued]; issued += 1
    for t2 in range(4):
        a(f'v_add_f32 v{ACC+4*t2}, v{ACC+4*t2}, v{ACC+4*t2+1}')
        a(f'v_add_f32 v{ACC+4*t2+2}, v{ACC+4*t2+2}, v{ACC+4*t2+3}')
    a(f'v_cvt_pk_bf16_f32 v{ACC}, v{ACC}, v{ACC+4}')
    a(f'v_cvt_pk_bf16_f32 v{ACC+1}, v{ACC+8}, v{ACC+12}')
    a(f'v_cvt_pk_bf16_f32 v{ACC+2}, v{ACC+2}, v{ACC+6}')
    a(f'v_cvt_pk_bf16_f32 v{ACC+3}, v{ACC+10}, v{ACC+14}')
    a(f'global_store_dwordx4 v{vP}, {vr(ACC,4)}, s[{sPartW}:{sPartW+1}]{st}')
    return WOL


def epilogue_store(a, ACC, st):
    for t2 in range(4):
        a(f'v_add_f32 v{ACC+4*t2}, v{ACC+4*t2}, v{ACC+4*t2+1}')
        a(f'v_add_f32 v{ACC+4*t2+2}, v{ACC+4*t2+2}, v{ACC+4*t2+3}')
    a(f'v_cvt_pk_bf16_f32 v{ACC}, v{ACC}, v{ACC+4}')
    a(f'v_cvt_pk_bf16_f32 v{ACC+1}, v{ACC+8}, v{ACC+12}')
    a(f'v_cvt_pk_bf16_f32 v{ACC+2}, v{ACC+2}, v{ACC+6}')
    a(f'v_cvt_pk_bf16_f32 v{ACC+3}, v{ACC+10}, v{ACC+14}')
    a(f'global_store_dwordx4 v{vP}, {vr(ACC,4)}, s[{sPartW}:{sPartW+1}]{st}')

def emit_loop_A(a, Lerr, Ldone, fast, debug, stamps, opt):
    st = '' if fast else ' sc1'
    S = Stamps(a, stamps)
    a(f's_setprio {opt.get("prioA", 2)}')
    Lloop = a.uid('A_loop')
    a(f'{Lloop}:')
    step_bases(a)
    RA = vE
    a(f's_lshl_b32 s{sT2}, s{sW}, 10')
    a(f'v_add_u32 v{RA+3}, s{sT2}, v{vL16}')
    for sp in range(1, 4): a(f'v_xor_b32 v{RA+sp-1}, {sp*1024}, v{RA+3}')
    for i in range(0, 12, 2): a(f'v_mov_b64 {vr(vAc+i,2)}, 0')
    a(f'v_mov_b32 v14, s{sS1}')
    a('s_barrier')
    S()
    poll1(a, AS(0), vL16, sMemR, -2048, Lerr, opt)
    S()
    a(f'ds_write_b128 v{RA+3}, {vr(AS(0),4)}')
    q = vAc
    smf(a, q, AS(0), wa_reg(0, 0)); smf(a, q + 4, AS(0), wa_reg(1, 0))
    a('s_waitcnt lgkmcnt(0)')
    a('s_barrier')
    S()
    a(f'ds_read_b128 {vr(AS(4), 4)}, v{RA+3} offset:4096')
    for sp, hf in others:
        a(f'ds_read_b128 {vr(AS(hf * 4 + sp), 4)}, v{RA+sp-1} offset:{hf*4096}')
    smf(a, vAv, AS(0), wv_reg(0))
    osig = [hf * 4 + sp for sp, hf in others]
    kxh = [AS(0), AS(4), AS(osig[0]), AS(osig[1]), AS(osig[2]), AS(osig[3])]
    def KXL(f, home):
        kk, T = f >> 1, f & 1
        a(f'ds_read_b128 {vr(home,4)}, v{vL16} offset:{L_KX + T*4096 + kk*1024}')
    for i, sig in enumerate([4] + osig):
        a(f's_waitcnt lgkmcnt({6 - i})')
        for tau in range(2): smf(a, q + 4 * tau, AS(sig), wa_reg(tau, sig))
    S()
    def V(i): smf(a, vAv, AS(osig[i]), wv_reg(osig[i]))
    a('s_waitcnt vmcnt(0)')
    KXL(0, kxh[0])
    smf(a, vAv, AS(4), wv_reg(4))
    KXL(1, kxh[1])
    V(0)
    a(f'v_add_f32 v{q}, v{q}, v{q+1}')
    a(f'v_add_f32 v{q+2}, v{q+2}, v{q+3}')
    a(f'v_add_f32 v{q+4}, v{q+4}, v{q+5}')
    a(f'v_add_f32 v{q+6}, v{q+6}, v{q+7}')
    a(f'v_cvt_pk_bf16_f32 v{q}, v{q}, v{q+4}')
    a(f'v_cvt_pk_bf16_f32 v{q+2}, v{q+2}, v{q+6}')
    a(f'ds_write2_b32 v{vWQ}, v{q}, v{q+2} offset0:0 offset1:{ROWB//4}')
    a(f'ds_write_b32 v{vFW}, v14 offset:{L_FQ}')
    S()
    V(4); V(5)
    V(1)
    KXL(2, kxh[2]); KXL(3, kxh[3])
    qb = [vAc, vAc + 4, AS(osig[4]), AS(osig[5])]
    F = vT
    Lr = a.uid('fwq')
    a(f's_mov_b32 s{sCnt}, {POLL_LIMIT}')
    a(f'{Lr}:')
    a(f'ds_read_b32 v{F}, v{vFR} offset:{L_FQ}')
    for kk in range(4): a(f'ds_read_b128 {vr(qb[kk],4)}, v{vRQ} offset:{kk*64}')
    a(f's_sub_u32 s{sCnt}, s{sCnt}, 1')
    a(f's_cbranch_scc1 {Lerr}')
    a('s_waitcnt lgkmcnt(4)')
    a(f'v_cmp_gt_u32 vcc, s{sS1}, v{F}')
    a(f's_cbranch_vccnz {Lr}')
    V(2); V(3)
    KXL(4, kxh[4]); KXL(5, kxh[5])
    Sx0 = vE; Sx1 = 12 - 0
    S()
    a('s_waitcnt lgkmcnt(5)')
    mf(a, Sx0, kxh[0], qb[0], '0')
    KXL(6, kxh[0])
    a('s_waitcnt lgkmcnt(5)')
    mf(a, Sx0, kxh[2], qb[1], Sx0)
    Sx1 = kxh[2]
    a('s_waitcnt lgkmcnt(2)')
    mf(a, Sx0, kxh[4], qb[2], Sx0)
    KXL(7, kxh[4])
    mf(a, Sx1, kxh[1], qb[0], '0')
    mf(a, Sx1, kxh[3], qb[1], Sx1)
    km = [kxh[1], kxh[3], kxh[5], kxh[0]]
    a('s_waitcnt lgkmcnt(1)')
    mf(a, Sx0, kxh[0], qb[3], Sx0)
    mf(a, Sx1, kxh[5], qb[2], Sx1)
    Lr2 = a.uid('fwk')
    a(f's_mov_b32 s{sCnt}, {POLL_LIMIT}')
    a('s_waitcnt lgkmcnt(0)')
    mf(a, Sx1, kxh[4], qb[3], Sx1)
    S()
    VM0 = vAv
    a(f'{Lr2}:')
    a(f'ds_read_b32 v{F}, v{vFR} offset:{L_FK}')
    for kk in range(4): a(f'ds_read_b128 {vr(km[kk],4)}, v{vRK} offset:{kk*64}')
    a(f's_sub_u32 s{sCnt}, s{sCnt}, 1')
    a(f's_cbranch_scc1 {Lerr}')
    a('s_waitcnt lgkmcnt(4)')
    a(f'v_cmp_gt_u32 vcc, s{sS1}, v{F}')
    a(f's_cbranch_vccnz {Lr2}')
    Sm = kxh[4]
    a(f'v_add_f32 v{vAv}, v{vAv}, v{vAv+1}')
    a(f'v_add_f32 v{vAv+2}, v{vAv+2}, v{vAv+3}')
    a('s_waitcnt lgkmcnt(3)')
    mf(a, Sm, km[0], qb[0], '0')
    a(f'v_cvt_pk_bf16_f32 v{VM0}, v{vAv}, v{vAv+2}')
    a(f'v_mov_b32 v{VM0+1}, 0')
    a('s_waitcnt lgkmcnt(2)')
    mf(a, Sm, km[1], qb[1], Sm)
    mx = vT; t = vAv + 2; u = vAv + 3
    SX = [Sx0 + i for i in range(4)] + [Sx1 + i for i in range(4)]
    a(f'v_max3_f32 v{mx}, v{SX[0]}, v{SX[1]}, v{SX[2]}')
    a(f'v_max3_f32 v{t}, v{SX[4]}, v{SX[5]}, v{SX[6]}')
    a('s_waitcnt lgkmcnt(1)')
    mf(a, Sm, km[2], qb[2], Sm)
    a(f'v_max3_f32 v{mx}, v{mx}, v{SX[3]}, v{SX[7]}')
    a(f'global_store_dword v{vVmo}, v{VM0}, s[{sVm}:{sVm+1}] sc1')
    a('s_waitcnt lgkmcnt(0)')
    mf(a, Sm, km[3], qb[3], Sm)
    add64(a, sVm, sVm, 32 * 2048)
    a(f's_cmp_eq_u32 s{sS}, 63')
    a(f's_cbranch_scc1 {Ldone}')
    VX0, VX1, VM1, F3 = km[0], km[1], km[2], km[3]
    a(f's_lshl_b32 s{sT2}, s{sW}, 11')
    a(f'v_add_u32 v{u}, s{sT2}, v{vL16}')
    a(f'ds_read_b128 {vr(VX0,4)}, v{u} offset:{L_VX}')
    a(f'ds_read_b128 {vr(VX1,4)}, v{u} offset:{L_VX+1024}')
    a(f'v_lshrrev_b32 v{km[3]+1}, 2, v{vL16}')
    a(f's_lshl_b32 s{sT2}, s{sW}, 8')
    a(f'v_add_u32 v{km[3]+1}, s{sT2}, v{km[3]+1}')
    S()
    a(f'v_max3_f32 v{mx}, v{mx}, v{t}, v{Sm}')
    a(f'v_max_f32 v{mx}, v{mx}, v{Sm+1}')
    a(f'v_mov_b32 v{t}, v{mx}')
    a(f'v_permlane32_swap_b32 v{mx}, v{t}')
    a(f'v_max_f32 v{mx}, v{mx}, v{t}')
    a(f'v_mov_b32 v{t}, v{mx}')
    a(f'v_permlane16_swap_b32 v{mx}, v{t}')
    a(f'v_max_f32 v{mx}, v{mx}, v{t}')
    a(f'v_mul_f32 v{mx}, s{sQs}, v{mx}')
    for r in SX:
        a(f'v_fma_f32 v{r}, v{r}, s{sQs}, -v{mx}')
        a(f'v_exp_f32 v{r}, v{r}')
    PX = Sx0
    a(f'v_cvt_pk_bf16_f32 v{PX}, v{SX[0]}, v{SX[1]}')
    a(f'v_cvt_pk_bf16_f32 v{PX+1}, v{SX[2]}, v{SX[3]}')
    a(f'v_cvt_pk_bf16_f32 v{PX+2}, v{SX[4]}, v{SX[5]}')
    a(f'v_cvt_pk_bf16_f32 v{PX+3}, v{SX[6]}, v{SX[7]}')
    O = vAc; LS = qb[2]; ONE = qb[3]
    a(f'v_mov_b32 v{ONE}, 0x3f803f80')
    a(f'v_mov_b32 v{ONE+1}, 0x3f803f80')
    a(f'v_mov_b64 {vr(ONE+2,2)}, {vr(ONE,2)}')
    Lr3 = a.uid('fwv')
    a(f's_mov_b32 s{sCnt}, {POLL_LIMIT}')
    a(f'{Lr3}:')
    a(f'ds_read_b32 v{F3}, v{vFW} offset:{L_FV}')
    a(f'ds_read_b32 v{VM1}, v{km[3]+1} offset:{L_VB}')
    a('s_waitcnt lgkmcnt(2)')
    mf(a, LS, ONE, PX, '0')
    a(f'v_fma_f32 v{t}, v{Sm}, s{sQs}, -v{mx}')
    a(f'v_fma_f32 v{u}, v{Sm+1}, s{sQs}, -v{mx}')
    mf(a, O, VX0, PX, '0')
    a(f'v_exp_f32 v{t}, v{t}')
    a(f'v_exp_f32 v{u}, v{u}')
    mf(a, O + 4, VX1, PX, '0')
    PM = Sm + 2
    a(f'v_mov_b32 v{PM+1}, 0')
    a(f'v_cvt_pk_bf16_f32 v{PM}, v{t}, v{u}')
    a(f'v_mov_b32 v{VM1+1}, 0')
    a(f's_sub_u32 s{sCnt}, s{sCnt}, 1')
    a(f's_cbranch_scc1 {Lerr}')
    a('s_waitcnt lgkmcnt(0)')
    a(f'v_cmp_gt_u32 vcc, s{sS1}, v{F3}')
    a(f's_cbranch_vccnz {Lr3}')
    mf16(a, LS, ONE, PM, LS)
    mf16(a, O, VM0, PM, O)
    mf16(a, O + 4, VM1, PM, O + 4)
    S()
    seq = [(t_, c) for c in range(2) for t_ in range(4)]
    bufs = [AS(0), AS(4)]
    for i in range(2):
        t_, c = seq[i]
        a(f'ds_read_b128 {vr(bufs[i],4)}, v{vWB} offset:{wo_off(t_, c, 0)}')
        a(f'ds_read_b128 {vr(bufs[i]+4,4)}, v{vWB} offset:{wo_off(t_, c, 1)}')
    a(f'v_rcp_f32 v{t}, v{LS}')
    OP = vE
    for i in range(4):
        a(f'v_mul_f32 v{O+2*i}, v{O+2*i}, v{t}')
        a(f'v_mul_f32 v{O+2*i+1}, v{O+2*i+1}, v{t}')
        a(f'v_cvt_pk_bf16_f32 v{OP+i}, v{O+2*i}, v{O+2*i+1}')
    a(f'ds_write_b128 v{vWO}, {vr(OP,4)}')
    t_, c = seq[2]
    a(f'ds_read_b128 {vr(AS(6),4)}, v{vWB} offset:{wo_off(t_, c, 0)}')
    a(f'ds_read_b128 {vr(AS(7),4)}, v{vWB} offset:{wo_off(t_, c, 1)}')
    ACC = vAc
    for i in range(0, 12, 2): a(f'v_mov_b64 {vr(ACC+i,2)}, 0')
    a('s_waitcnt lgkmcnt(2)')
    S()
    a('s_barrier')
    for i in range(12, 16, 2): a(f'v_mov_b64 {vr(ACC+i,2)}, 0')
    bufs = [AS(0), AS(4), AS(6)]
    wo_phase(a, st, 3, bufs, AS(2), ACC, S)
    S()
    S.dump()
    a(f's_add_u32 s{sS}, s{sS}, 1')
    a.fence(4)
    a(f's_branch {Lloop}')

def emit_loop_B(a, Lerr, Ldone, fast, debug, stamps, opt):
    st = '' if fast else ' sc1'
    S = Stamps(a, stamps)
    bK, bV, bO, bOwn, RA = 16, 24, 28, 56, 60
    osig = [0] + [hf * 4 + sp for sp, hf in others]
    BS = {sig: bO + 4 * i for i, sig in enumerate(osig)}
    def kv_dma():
        a(f's_lshl_b32 s{sT2}, s{sW}, 11')
        a(f's_add_u32 m0, s{sT2}, {L_KX}')
        a(f'global_load_lds_dwordx4 v{vL16}, s[{sKx}:{sKx+1}]')
        a(f'global_load_lds_dwordx4 v{vL16}, s[{sKx}:{sKx+1}] offset:1024')
        a(f's_add_u32 m0, s{sT2}, {L_VX}')
        a(f'global_load_lds_dwordx4 v{vL16}, s[{sVx}:{sVx+1}]')
        a(f'global_load_lds_dwordx4 v{vL16}, s[{sVx}:{sVx+1}] offset:1024')
        add64(a, sKx, sKx, 32 * 8192)
        add64(a, sVx, sVx, 32 * 8192)
    def WVL(sig, b):
        a(f'ds_read_b128 {vr(b,4)}, v{vWB} offset:{wo_off(sig & 3, sig >> 2, 0)}')
        a(f'ds_read_b128 {vr(b+4,4)}, v{vWB} offset:{wo_off(sig & 3, sig >> 2, 1)}')
    kv_dma()
    a(f's_setprio {opt.get("prioB", 0)}')
    Lloop = a.uid('B_loop')
    step_bases(a)
    a(f'{Lloop}:')
    a('s_barrier')
    S()
    def pre():
        WVL(4, bO + 8)
        for sp in range(1, 4): a(f'v_xor_b32 v{RA+sp-1}, {sp*1024}, v{vPR}')
        for i in range(0, 12, 2): a(f'v_mov_b64 {vr(bK+i,2)}, 0')
        a(f'v_mov_b32 v{vT+2}, s{sS1}')
    poll1(a, bOwn, vL16, sMemR, 2048, Lerr, opt, pre)
    S()
    a(f'ds_write_b128 v{vPR}, {vr(bOwn,4)} offset:4096')
    k = bK
    smf(a, k, bOwn, wa_reg(0, 4)); smf(a, k + 4, bOwn, wa_reg(1, 4))
    a('s_waitcnt lgkmcnt(0)')
    a('s_barrier')
    S()
    smf(a, bV, bOwn, vr(bO + 8, 8))
    a(f'ds_read_b128 {vr(BS[0], 4)}, v{vPR}')
    for sp, hf in others:
        a(f'ds_read_b128 {vr(BS[hf * 4 + sp], 4)}, v{RA+sp-1} offset:{hf*4096}')
    a(f'global_load_dword v{vDummy}, v15, s[{sKx}:{sKx+1}]')
    X = bOwn
    for i, sig in enumerate(osig):
        a(f's_waitcnt lgkmcnt({6 - i + (2 if i >= 3 else 0)})')
        for tau in range(2): smf(a, k + 4 * tau, BS[sig], wa_reg(tau, sig))
        if i == 2:
            a('s_waitcnt vmcnt(1)')
            WVL(osig[0], X)
    S()
    a('s_waitcnt lgkmcnt(0)')
    smf(a, bV, BS[osig[0]], vr(X, 8))
    WVL(osig[1], X)
    a(f'v_add_f32 v{k}, v{k}, v{k+1}')
    a(f'v_add_f32 v{k+2}, v{k+2}, v{k+3}')
    a(f'v_add_f32 v{k+4}, v{k+4}, v{k+5}')
    a(f'v_add_f32 v{k+6}, v{k+6}, v{k+7}')
    a(f'v_cvt_pk_bf16_f32 v{vT}, v{k}, v{k+4}')
    a(f'v_cvt_pk_bf16_f32 v{vT+1}, v{k+2}, v{k+6}')
    a(f'ds_write2_b32 v{vWQ}, v{vT}, v{vT+1} offset0:0 offset1:{ROWB//4}')
    a(f'ds_write_b32 v{vFW}, v{vT+2} offset:{L_FK}')
    S()
    Y = bK
    WVL(osig[2], Y)
    a(f'global_store_dword v{vKmo}, v{vT}, s[{sKm}:{sKm+1}] sc1')
    a(f'global_store_dword v{vKmo}, v{vT+1}, s[{sKm}:{sKm+1}] offset:256 sc1')
    add64(a, sKm, sKm, 32 * 2048)
    a('s_waitcnt lgkmcnt(4)')
    smf(a, bV, BS[osig[1]], vr(X, 8))
    Z = bO
    WVL(osig[3], X); WVL(osig[4], Z)
    a('s_waitcnt lgkmcnt(4)')
    smf(a, bV, BS[osig[2]], vr(Y, 8))
    WVL(osig[5], Y)
    a('s_waitcnt lgkmcnt(4)')
    smf(a, bV, BS[osig[3]], vr(X, 8))
    WVL(osig[6], X)
    a('s_waitcnt lgkmcnt(4)')
    smf(a, bV, BS[osig[4]], vr(Z, 8))
    a('s_waitcnt lgkmcnt(2)')
    smf(a, bV, BS[osig[5]], vr(Y, 8))
    a(f'v_lshrrev_b32 v{vT+1}, 2, v{vPR}')
    a('s_waitcnt lgkmcnt(0)')
    smf(a, bV, BS[osig[6]], vr(X, 8))
    a(f'v_add_f32 v{bV}, v{bV}, v{bV+1}')
    a(f'v_add_f32 v{bV+2}, v{bV+2}, v{bV+3}')
    a(f'v_cvt_pk_bf16_f32 v{vT}, v{bV}, v{bV+2}')
    a(f'ds_write_b32 v{vT+1}, v{vT} offset:{L_VB}')
    a(f'ds_write_b32 v{vFW}, v{vT+2} offset:{L_FV}')
    a(f'global_store_dword v{vVmo}, v{vT}, s[{sVm}:{sVm+1}] sc1')
    add64(a, sVm, sVm, 32 * 2048)
    a(f's_cmp_eq_u32 s{sS}, 63')
    a(f's_cbranch_scc1 {Ldone}')
    S()
    Lnr = a.uid('norearm')
    a(f's_cmp_eq_u32 s{sS}, 0')
    a(f's_cbranch_scc1 {Lnr}')
    a(f'v_mov_b64 {vr(32,2)}, -1')
    a(f'v_mov_b64 {vr(34,2)}, -1')
    a(f'global_store_dwordx4 v{vPR}, {vr(32,4)}, s[{sPrevR}:{sPrevR+1}] offset:-2048{st}')
    a(f'global_store_dwordx4 v{vPR}, {vr(32,4)}, s[{sPrevR}:{sPrevR+1}] offset:2048{st}')
    a(f's_mov_b64 exec, s[{sPubM}:{sPubM+1}]')
    a(f'global_store_dwordx2 v{vPub}, {vr(32,2)}, s[{sPrevM}:{sPrevM+1}]{st}')
    a('s_mov_b64 exec, -1')
    a(f'{Lnr}:')
    ACC = 48
    for i in range(0, 16, 2): a(f'v_mov_b64 {vr(ACC+i,2)}, 0')
    PB = 28; SA = 36; SI = 40; RD = 44; OA = 16
    a('s_waitcnt lgkmcnt(0)')
    S()
    a('s_barrier')
    a(f'ds_read_b128 {vr(OA,4)}, v{vRO}')
    a(f'ds_read_b128 {vr(OA+4,4)}, v{vRO} offset:128')
    a(f's_setprio {opt.get("prioBwo", 3)}')
    a('s_waitcnt lgkmcnt(1)')
    S()
    for t_ in range(4): smf(a, ACC + 4 * t_, OA, vr(WvR + t_ * 8, 8))
    a('s_waitcnt lgkmcnt(0)')
    for t_ in range(4): smf(a, ACC + 4 * t_, OA + 4, vr(WvR + (4 + t_) * 8, 8))
    epilogue_store(a, ACC, st)
    a(f's_setprio {opt.get("prioB", 0)}')
    S()
    kv_dma()
    cc_, n_, one = 41, 42, 43
    a(f'v_bfe_u32 v{cc_}, v{vL16}, 4, 2')
    a(f'v_bfe_u32 v{n_}, v{vL16}, 6, 2')
    a(f'v_cmp_eq_u32 vcc, 3, v{cc_}')
    a(f'v_mov_b32 v{one}, 0x3f80')
    a(f'v_mov_b32 v{RD}, 0x3f800000')
    a(f'v_cndmask_b32 v{one}, v{one}, v{RD}, vcc')
    a(f'v_cndmask_b32 v{cc_}, v{cc_}, 0, vcc')
    a(f'v_or_b32 v{cc_}, 12, v{cc_}')
    a(f'v_mul_u32_u24 v{SI}, 0x1111, v{cc_}')
    a(f'v_cmp_eq_u32 vcc, 0, v{n_}')
    a(f'v_cndmask_b32 v{SA}, 0, v{one}, vcc')
    a(f'v_cmp_eq_u32 vcc, 1, v{n_}')
    a(f'v_cndmask_b32 v{SA+1}, 0, v{one}, vcc')
    a(f'v_mov_b64 {vr(SA+2,2)}, {vr(SA,2)}')
    a(f'v_mov_b64 {vr(RD,2)}, 0')
    a(f'v_mov_b64 {vr(RD+2,2)}, 0')
    a(f's_mov_b64 s[{sEx}:{sEx+1}], s[{sMemW}:{sMemW+1}]')
    a(f's_add_u32 s{sS}, s{sS}, 1')
    step_bases(a)
    for _ in range(opt.get('rdelay', 2)): a('s_nop 15')
    poll2(a, PB, PB + 4, vPR, sPrevR, -2048, 2048, Lerr, opt)
    S()
    smf(a, RD, SA, vr(PB, 8), idx=SI)
    for i in range(4): a(f'v_add_f32_dpp v{RD+i}, v{RD+i}, v{RD+i} row_ror:4 row_mask:0xf bank_mask:0xf')
    for i in range(4): a(f'v_add_f32_dpp v{RD+i}, v{RD+i}, v{RD+i} row_ror:8 row_mask:0xf bank_mask:0xf')
    a(f'v_cvt_pk_bf16_f32 v{RD}, v{RD}, v{RD+1}')
    a(f'v_cvt_pk_bf16_f32 v{RD+1}, v{RD+2}, v{RD+3}')
    a(f's_mov_b64 exec, s[{sPubM}:{sPubM+1}]')
    a(f'global_store_dwordx2 v{vPub}, {vr(RD,2)}, s[{sEx}:{sEx+1}]{st}')
    if debug:
        add64(a, sDbgM, sDbgM, 8192)
        a(f'global_store_dwordx2 v{vPub}, {vr(RD,2)}, s[{sDbgM}:{sDbgM+1}]')
    a('s_mov_b64 exec, -1')
    S()
    S.dump(41)
    a(f's_branch {Lloop}')

def build_rec_test(fast=True, debug=False, stamps=False, **opt):
    a = Asm()
    a.raw('; @launch kernel=rec_kernel grid=(256,1,1) block=(512,1,1) lds=163840')
    a.raw('.amdgcn_target "amdgcn-amd-amdhsa--gfx950"\n.text\n.globl rec_kernel\n.p2align 8\n.type rec_kernel,@function\nrec_kernel:')
    a('s_cmp_ge_u32 s2, 256')
    a('s_cbranch_scc1 L_end')
    a(f's_load_dwordx4 s[{sWq}:{sWq+3}], s[0:1], {KA["Wq"]}')
    a(f's_load_dwordx4 s[{sWv}:{sWv+3}], s[0:1], {KA["Wv"]}')
    a(f's_load_dwordx2 s[{sM0in}:{sM0in+1}], s[0:1], {KA["mem0"]}')
    a(f's_load_dwordx2 s[{sDbg}:{sDbg+1}], s[0:1], {KA["dbg"]}')
    a(f's_load_dwordx2 s[{sWs}:{sWs+1}], s[0:1], {KA["ws"]}')
    a(f'v_lshrrev_b32 v1, 6, v0')
    a(f'v_and_b32 v0, 63, v0')
    a(f'v_readfirstlane_b32 s{sWv8}, v1')
    a(f's_getreg_b32 s{sT2}, hwreg(HW_REG_XCC_ID, 0, 4)')
    a('s_waitcnt lgkmcnt(0)')
    a(f's_cmp_lg_u32 s{sT2}, 0')
    a('s_cbranch_scc1 L_end')
    a(f's_cmp_lg_u32 s{sWv8}, 0')
    a('s_cbranch_scc1 L_role_wait')
    a('v_mov_b32 v2, 0')
    a('v_mov_b32 v3, 1')
    a('s_mov_b64 exec, 1')
    a(f'global_atomic_add v4, v2, v3, s[{sDbg}:{sDbg+1}] sc0 sc1')
    a('s_waitcnt vmcnt(0)')
    a(f'v_mov_b32 v2, {L_MISC}')
    a('ds_write_b32 v2, v4')
    a('s_mov_b64 exec, -1')
    a('s_waitcnt lgkmcnt(0)')
    a('L_role_wait:')
    a('s_barrier')
    a(f'v_mov_b32 v2, {L_MISC}')
    a('ds_read_b32 v4, v2')
    a('s_waitcnt lgkmcnt(0)')
    a(f'v_readfirstlane_b32 s{sH}, v4')
    a('s_nop 3')
    a(f's_cmp_ge_u32 s{sH}, 32')
    a('s_cbranch_scc1 L_end')
    a(f's_memrealtime s[{sTm}:{sTm+1}]')
    emit_rec_setup(a)
    emit_heads_barrier(a, 'L_err')
    a(f's_memrealtime s[{sTm+2}:{sTm+3}]')
    a(f's_mov_b32 s{sS}, 0')
    a('s_waitcnt lgkmcnt(0)')
    a(f's_cmp_lg_u32 s{sRole}, 0')
    a('s_cbranch_scc1 L_roleB')
    emit_loop_A(a, 'L_err', 'L_done', fast, debug, stamps, opt)
    a('L_roleB:')
    emit_loop_B(a, 'L_err', 'L_done', fast, debug, stamps, opt)
    a('L_err:')
    a('s_mov_b64 exec, -1')
    a('v_mov_b32 v11, 40')
    a('v_mov_b32 v12, 1')
    a(f'global_atomic_add v11, v12, s[{sDbg}:{sDbg+1}] sc1')
    a('L_done:')
    a(f's_memrealtime s[100:101]')
    a('s_waitcnt vmcnt(0) lgkmcnt(0)')
    a(f's_cmp_lg_u32 s{sH}, 5')
    a('s_cbranch_scc1 L_end')
    a(f's_sub_u32 s{sT0}, s{sTm+2}, s{sTm}')
    a(f's_sub_u32 s{sT1}, s100, s{sTm+2}')
    a(f'v_mov_b32 v18, s{sT0}')
    a(f'v_mov_b32 v19, s{sT1}')
    a('v_mov_b32 v16, 64')
    a(f'global_store_dwordx2 v16, v[18:19], s[{sDbg}:{sDbg+1}]')
    a('L_end:')
    a('s_endpgm')
    a.raw(kernel_desc('rec_kernel', vgpr=256, accum=128))
    return a.text()

if __name__ == '__main__':
    open('rec_test.s', 'w').write(build_rec_test(debug=True))
    open('rec_test_nd.s', 'w').write(build_rec_test())
    open('rec_test_st.s', 'w').write(build_rec_test(stamps=True))
    for i, o in enumerate([dict(rdelay=0), dict(rdelay=4), dict(rdelay=6), dict(rdelay=4, prioBwo=0), dict(rdelay=4, prioA=0), dict(rdelay=4, prioA=1, prioB=1)]):
        open(f'rec_x{i}.s', 'w').write(build_rec_test(**o))
```

```python
import sys
from asmlib import *
import pre, qkv, att, mlp, rec5
def rec_kernel(a):
    t = rec5.build_rec_test()
    body = t[t.index('.globl rec_kernel'):]
    a.raw(body)
L = {'mod': '; @launch kernel=mod_kernel grid=(48,1,1) block=(512,1,1) lds=2048',
     'ln': '; @launch kernel=ln_kernel grid=(256,1,1) block=(512,1,1) lds=0',
     'qkv': '; @launch kernel=qkv_kernel grid=(256,1,1) block=(512,1,1) lds=131072',
     'rec': '; @launch kernel=rec_kernel grid=(256,1,1) block=(512,1,1) lds=163840',
     'att': '; @launch kernel=att_kernel grid=(256,1,1) block=(512,1,1) lds=131072',
     'red': '; @launch kernel=red_kernel grid=(512,1,1) block=(512,1,1) lds=8192',
     'g1': '; @launch kernel=g1_kernel grid=(224,1,1) block=(512,1,1) lds=131072',
     'g2': '; @launch kernel=g2_kernel grid=(256,1,1) block=(512,1,1) lds=131072'}
B = {'mod': pre.build_mod_kernel, 'ln': pre.build_ln_kernel, 'qkv': qkv.build_qkv_kernel, 'rec': rec_kernel,
     'att': att.build_att_kernel, 'red': att.build_red_kernel, 'g1': mlp.build_g1_kernel, 'g2': mlp.build_g2_kernel}
def build(kernels):
    a = Asm()
    a._uid = 100000
    for k in kernels: a.raw(L[k])
    a.raw('.amdgcn_target "amdgcn-amd-amdhsa--gfx950"\n.text')
    for k in kernels: B[k](a)
    return a.text()
if __name__ == '__main__':
    open('list2.s', 'w').write(build(['mod', 'ln', 'qkv', 'rec', 'att', 'red', 'g1', 'g2']))
```

```python
WS_MOD   = 0x0000000
WS_H     = 0x0100000
WS_X1    = 0x0400000
WS_H2    = 0x0700000
WS_G     = 0x0A00000
WS_Q     = 0x1000000
WS_K     = 0x2000000
WS_V     = 0x3000000
WS_MEM   = 0x4000000
WS_PART  = 0x4100000
WS_KM    = 0x4200000
WS_VM    = 0x4600000
WS_MEMDBG= 0x4A00000
WS_ATTP  = 0x5000000
WS_FL    = 0x0080000
FL_CNT   = 0
FL_PROG  = 8192
FL_ATTD  = 12288
FL_H2D   = 20480
FL_HD    = 28672
FL_GD    = 32768
FL_BYTES = 49152
KA = dict(x=0, mem0=8, Wq=16, Wk=24, Wv=32, Wo=40, seg=48, Bx=56, w1=64, b1=72, w2=80, b2=88, c=96, wmod=104, out=112, dbg=120, ws=128)
```

```python
from asmlib import *
from layout import *
from pre import add64, header, f2u, LOG2E

def tr_lane_base(a, dst, t, perm_cols):
    a(f'v_lshrrev_b32 v{t}, 5, v0')
    a(f'v_bfe_u32 v{t+1}, v0, 2, 2')
    a(f'v_lshl_add_u32 v{t}, v{t}, 3, v{t+1}')
    a(f'v_lshlrev_b32 v{t}, 7, v{t}')
    a(f'v_bfe_u32 v{t+1}, v0, 3, 1')
    a(f'v_lshl_add_u32 v{t}, v{t+1}, 6, v{t}')
    if perm_cols:
        a(f'v_and_b32 v{t+1}, 1, v0'); a(f'v_lshl_add_u32 v{t}, v{t+1}, 5, v{t}')
        a(f'v_bfe_u32 v{t+1}, v0, 4, 1'); a(f'v_lshl_add_u32 v{t}, v{t+1}, 4, v{t}')
        a(f'v_bfe_u32 v{t+1}, v0, 1, 1'); a(f'v_lshl_add_u32 v{dst}, v{t+1}, 3, v{t}')
    else:
        a(f'v_bfe_u32 v{t+1}, v0, 4, 1'); a(f'v_lshl_add_u32 v{t}, v{t+1}, 5, v{t}')
        a(f'v_and_b32 v{t+1}, 3, v0'); a(f'v_lshl_add_u32 v{dst}, v{t+1}, 3, v{t}')

def dma_lane(a, dst, t, stride):
    a(f'v_and_b32 v{t}, 7, v0')
    a(f'v_bfe_u32 v{t+1}, v0, 4, 1')
    a(f'v_lshlrev_b32 v{t+1}, 2, v{t+1}')
    a(f'v_xor_b32 v{t}, v{t}, v{t+1}')
    a(f'v_lshrrev_b32 v{t+1}, 3, v0')
    a(f'v_mul_u32_u24 v{t+1}, {stride}, v{t+1}')
    a(f'v_lshl_add_u32 v{dst}, v{t}, 4, v{t+1}')

def combine_halves(a, D, sKh, sTile, t, lds):
    a(f's_lshl_b32 s48, s{sTile}, 12')
    a(f'v_lshlrev_b32 v{t}, 4, v0')
    a(f'v_add_u32 v{t}, s48, v{t}')
    L = a.uid('ch')
    a('s_barrier')
    a(f's_cmp_eq_u32 s{sKh}, 0')
    a(f's_cbranch_scc1 {L}')
    for i in range(4): a(f'ds_write_b128 v{t}, {vr(D+4*i,4)} offset:{lds + 1024*i}')
    a('s_waitcnt lgkmcnt(0)')
    a(f'{L}:')
    a('s_barrier')

def build_g1_kernel(a):
    header(a, 'g1_kernel')
    a('s_cmp_ge_u32 s2, 224'); a('s_cbranch_scc1 L_g1_end')
    a(f's_load_dwordx4 s[4:7], s[0:1], {KA["w1"]}')
    a(f's_load_dwordx2 s[10:11], s[0:1], {KA["ws"]}')
    a('v_lshrrev_b32 v1, 6, v0'); a('v_and_b32 v0, 63, v0'); a('v_readfirstlane_b32 s12, v1')
    sFt, sDt, sKh, sTile = 13, 14, 15, 16
    a(f's_lshr_b32 s{sFt}, s2, 3'); a(f's_and_b32 s{sDt}, s2, 7')
    a(f's_lshr_b32 s{sKh}, s12, 2'); a(f's_and_b32 s{sTile}, s12, 3')
    a('s_waitcnt lgkmcnt(0)')
    vDW, vDH, vTA, vTB, t = 1, 2, 3, 4, 6
    dma_lane(a, vDW, t, 3584); dma_lane(a, vDH, t, 1024)
    tr_lane_base(a, vTA, t, True); tr_lane_base(a, vTB, t, False)
    a(f's_lshr_b32 s40, s{sTile}, 1'); a('s_lshl_b32 s40, s40, 6')
    a(f'v_xor_b32 v{vTA}, s40, v{vTA}')
    a(f's_and_b32 s40, s{sTile}, 1'); a('s_lshl_b32 s40, s40, 6')
    a(f'v_xor_b32 v{vTB}, s40, v{vTB}')
    a(f's_lshl_b32 s40, s{sKh}, 11')
    a(f'v_add_u32 v{vTA}, s40, v{vTA}')
    a(f's_add_u32 s40, s40, 16384')
    a(f'v_add_u32 v{vTB}, s40, v{vTB}')
    a(f's_mul_i32 s40, s12, {16*3584}'); a(f's_lshl_b32 s41, s{sFt}, 7'); a('s_add_u32 s40, s40, s41')
    add64(a, 20, 4, 's40')
    a('s_lshl_b32 s40, s12, 14'); a(f's_lshl_b32 s41, s{sDt}, 7'); a('s_add_u32 s40, s40, s41'); a(f's_add_u32 s40, s40, {WS_H2}')
    add64(a, 22, 10, 's40')
    a('s_lshl_b32 s24, s12, 11')
    NB = 4
    def dma(c):
        b = (c % NB) * 32768
        for i in range(2):
            a(f's_add_u32 m0, s24, {b + i*1024}')
            a(f'global_load_lds_dwordx4 v{vDW}, s[20:21]')
            add64(a, 20, 20, 8 * 3584 if i == 0 else 120 * 3584)
            a(f's_add_u32 m0, s24, {b + 16384 + i*1024}')
            a(f'global_load_lds_dwordx4 v{vDH}, s[22:23]')
            add64(a, 22, 22, 8 * 1024 if i == 0 else 120 * 1024)
    D, FA, FB = 16, 32, 48
    for c in range(NB - 1): dma(c)
    for c in range(16):
        a(f's_waitcnt vmcnt({4 * min(NB - 2, 15 - c)})')
        a('s_barrier')
        if c + NB - 1 < 16: dma(c + NB - 1)
        b = (c % NB) * 32768
        a(f'v_add_u32 v{t}, {b}, v{vTA}')
        a(f'v_add_u32 v{t+1}, {b}, v{vTB}')
        for sgm in range(4):
            for j in range(2):
                a(f'ds_read_b64_tr_b16 {vr(FA+4*sgm+2*j,2)}, v{t} offset:{sgm*4096 + j*512}')
                a(f'ds_read_b64_tr_b16 {vr(FB+4*sgm+2*j,2)}, v{t+1} offset:{sgm*4096 + j*512}')
        for sgm in range(4):
            a(f's_waitcnt lgkmcnt({12 - 4*sgm})')
            a(f'v_mfma_f32_32x32x16_bf16 {vr(D,16)}, {vr(FA+4*sgm,4)}, {vr(FB+4*sgm,4)}, {"0" if (c == 0 and sgm == 0) else vr(D,16)}')
    combine_halves(a, D, sKh, sTile, t, 0)
    a(f's_cmp_lg_u32 s{sKh}, 0'); a('s_cbranch_scc1 L_g1_end')
    for i in range(4): a(f'ds_read_b128 {vr(FA+4*i,4)}, v{t} offset:{1024*i}')
    a(f'v_lshrrev_b32 v{t+2}, 5, v0'); a(f'v_lshlrev_b32 v{t+2}, 5, v{t+2}')
    a(f's_lshr_b32 s40, s{sTile}, 1'); a('s_lshl_b32 s40, s40, 6'); a(f's_lshl_b32 s41, s{sFt}, 7'); a('s_add_u32 s40, s40, s41')
    a(f'v_add_u32 v{t+2}, s40, v{t+2}')
    a(f'global_load_dwordx4 {vr(FB,4)}, v{t+2}, s[6:7]')
    a(f'global_load_dwordx4 {vr(FB+4,4)}, v{t+2}, s[6:7] offset:16')
    gelu_store(a, D, FA, FB, t, sDt, sTile, 10, '')
    a('L_g1_end:'); a('s_endpgm')
    a.raw(kernel_desc('g1_kernel', vgpr=128, accum=128))

def gelu_store(a, D, FA, FB, t, sDt, sTile, sWs, st, frag=False):
    a('s_waitcnt vmcnt(0) lgkmcnt(0)')
    a(f's_mov_b32 s42, {hex(f2u(0.044715))}')
    a(f's_mov_b32 s43, {hex(f2u(-2 * LOG2E * 0.7978845608028654))}')
    x, y = t, t + 1
    for i in range(16):
        if FA is not None: a(f'v_add_f32 v{D+i}, v{D+i}, v{FA+i}')
        if i % 2 == 0: a(f'v_lshlrev_b32 v{x}, 16, v{FB+i//2}')
        else: a(f'v_and_b32 v{x}, 0xffff0000, v{FB+i//2}')
        a(f'v_add_f32 v{D+i}, v{D+i}, v{x}')
        a(f'v_mul_f32 v{x}, v{D+i}, v{D+i}')
        a(f'v_fma_f32 v{x}, v{x}, s42, 1.0')
        a(f'v_mul_f32 v{x}, v{x}, v{D+i}')
        a(f'v_mul_f32 v{x}, s43, v{x}')
        a(f'v_exp_f32 v{x}, v{x}')
        a(f'v_add_f32 v{x}, 1.0, v{x}')
        a(f'v_rcp_f32 v{x}, v{x}')
        a(f'v_mul_f32 v{D+i}, v{D+i}, v{x}')
    for i in range(8): a(f'v_cvt_pk_bf16_f32 v{FB+i}, v{D+2*i}, v{D+2*i+1}')
    if frag:
        a(f'v_bfe_u32 v{x}, v0, 2, 2'); a(f'v_lshlrev_b32 v{x}, 3, v{x}')
        a(f'v_bfe_u32 v{y}, v0, 4, 1'); a(f'v_lshl_add_u32 v{x}, v{y}, 2, v{x}')
        a(f'v_and_b32 v{y}, 3, v0'); a(f'v_add_u32 v{x}, v{x}, v{y}')
        a(f'v_lshlrev_b32 v{x}, 4, v{x}')
        a(f'v_lshl_add_u32 v{x}, v{t+2}, 5, v{x}')
        a(f's_and_b32 s40, s{sTile}, 1'); a(f's_lshl_b32 s41, s{sDt}, 1'); a('s_add_u32 s40, s40, s41')
        a(f's_mul_i32 s40, s40, {112*1024}')
        a(f'v_add_u32 v{x}, s40, v{x}')
        add64(a, 44, sWs, WS_G)
        a(f'global_store_dwordx4 v{x}, {vr(FB,4)}, s[44:45]{st}')
        a(f'global_store_dwordx4 v{x}, {vr(FB+4,4)}, s[44:45] offset:512{st}')
        return
    a(f'v_and_b32 v{x}, 31, v0')
    a(f's_and_b32 s40, s{sTile}, 1'); a('s_lshl_b32 s40, s40, 5'); a(f's_lshl_b32 s41, s{sDt}, 6'); a('s_add_u32 s40, s40, s41')
    a(f'v_add_u32 v{x}, s40, v{x}')
    a(f'v_mul_u32_u24 v{x}, 3584, v{x}')
    a(f'v_add_u32 v{x}, v{x}, v{t+2}')
    add64(a, 44, sWs, WS_G)
    a(f'global_store_dwordx4 v{x}, {vr(FB,4)}, s[44:45]{st}')
    a(f'global_store_dwordx4 v{x}, {vr(FB+4,4)}, s[44:45] offset:16{st}')

def build_g2_kernel(a):
    header(a, 'g2_kernel')
    a('s_cmp_ge_u32 s2, 256'); a('s_cbranch_scc1 L_g2_end')
    a(f's_load_dwordx4 s[4:7], s[0:1], {KA["w2"]}')
    a(f's_load_dwordx2 s[8:9], s[0:1], {KA["out"]}')
    a(f's_load_dwordx2 s[10:11], s[0:1], {KA["ws"]}')
    a('v_lshrrev_b32 v1, 6, v0'); a('v_and_b32 v0, 63, v0'); a('v_readfirstlane_b32 s12, v1')
    sSt, sDt, sKh, sTile = 13, 14, 15, 16
    a(f's_and_b32 s{sSt}, s2, 7'); a(f's_lshl_b32 s{sSt}, s{sSt}, 2'); a('s_bfe_u32 s40, s2, 0x20003'); a(f's_add_u32 s{sSt}, s{sSt}, s40')
    a(f's_lshr_b32 s{sDt}, s2, 5')
    a(f's_lshr_b32 s{sKh}, s12, 2'); a(f's_and_b32 s{sTile}, s12, 3')
    a('s_waitcnt lgkmcnt(0)')
    vDW, vG, vTB, t = 1, 2, 4, 6
    dma_lane(a, vDW, t, 4096)
    tr_lane_base(a, vTB, t, False)
    a(f's_and_b32 s40, s{sTile}, 1'); a('s_lshl_b32 s40, s40, 6')
    a(f'v_xor_b32 v{vTB}, s40, v{vTB}')
    a(f's_lshl_b32 s40, s{sKh}, 11')
    a(f'v_add_u32 v{vTB}, s40, v{vTB}')
    a(f'v_bfe_u32 v{t}, v0, 2, 1'); a(f'v_lshlrev_b32 v{t}, 4, v{t}')
    a(f'v_bfe_u32 v{t+1}, v0, 3, 2'); a(f'v_lshl_add_u32 v{t}, v{t+1}, 2, v{t}')
    a(f'v_and_b32 v{t+1}, 3, v0'); a(f'v_add_u32 v{t}, v{t}, v{t+1}')
    a(f's_lshr_b32 s40, s{sTile}, 1'); a('s_lshl_b32 s40, s40, 5'); a(f's_lshl_b32 s41, s{sDt}, 6'); a('s_add_u32 s40, s40, s41')
    a(f'v_add_u32 v{t}, s40, v{t}')
    a(f'v_mul_u32_u24 v{t}, 3584, v{t}')
    a(f'v_lshrrev_b32 v{t+1}, 5, v0'); a(f'v_lshl_add_u32 v{t}, v{t+1}, 4, v{t}')
    a(f's_lshl_b32 s40, s{sKh}, 5')
    a(f'v_add_u32 v{vG}, s40, v{t}')
    add64(a, 22, 10, WS_G)
    a(f's_lshl_b32 s40, s12, {5+12}'); a(f's_lshl_b32 s41, s{sSt}, 7'); a('s_add_u32 s40, s40, s41')
    add64(a, 20, 4, 's40')
    a('s_lshl_b32 s24, s12, 12')
    NB = 4
    def dma(c):
        b = (c % NB) * 32768
        for i in range(4):
            a(f's_add_u32 m0, s24, {b + i*1024}')
            a(f'global_load_lds_dwordx4 v{vDW}, s[20:21]')
            add64(a, 20, 20, 8 * 4096 if i < 3 else (256 - 24) * 4096)
        for i in range(8):
            a(f'global_load_dwordx4 {ar((c % NB) * 32 + 4*i, 4)}, v{vG}, s[22:23] offset:{c*512 + i*64}')
    D, FB = 16, 32
    for c in range(NB - 1): dma(c)
    for c in range(7):
        a(f's_waitcnt vmcnt({12 * min(NB - 2, 6 - c)})')
        a('s_barrier')
        if c + NB - 1 < 7: dma(c + NB - 1)
        b = (c % NB) * 32768
        a(f'v_add_u32 v{t}, {b}, v{vTB}')
        for half in range(2):
            for i in range(4):
                for j in range(2):
                    a(f'ds_read_b64_tr_b16 {vr(FB+16*half+4*i+2*j,2)}, v{t} offset:{(4*half+i)*4096 + j*512}')
            if half == 1: pass
        for i in range(8):
            a(f's_waitcnt lgkmcnt({min(15, 14 - 2*i)})')
            a(f'v_mfma_f32_32x32x16_bf16 {vr(D,16)}, {ar((c % NB)*32 + 4*i,4)}, {vr(FB+4*i,4)}, {"0" if (c == 0 and i == 0) else vr(D,16)}')
    combine_halves(a, D, sKh, sTile, t, 0)
    a(f's_cmp_lg_u32 s{sKh}, 0'); a('s_cbranch_scc1 L_g2_end')
    FA = 32
    for i in range(4): a(f'ds_read_b128 {vr(FA+4*i,4)}, v{t} offset:{1024*i}')
    g2_epilogue(a, D, FA, t, sSt, sDt, sTile, 6, 8, 10, '')
    a('L_g2_end:'); a('s_endpgm')
    a.raw(kernel_desc('g2_kernel', vgpr=256, accum=128))

def g2_epilogue(a, D, FA, t, sSt, sDt, sTile, sB2, sOut, sWs, ld):
    X1, GB, B2 = 48, 56, 72
    a(f'v_and_b32 v{t+1}, 31, v0')
    a(f's_and_b32 s40, s{sTile}, 1'); a('s_lshl_b32 s40, s40, 5'); a(f's_lshl_b32 s41, s{sSt}, 6'); a('s_add_u32 s40, s40, s41')
    a(f'v_add_u32 v{t+1}, s40, v{t+1}')
    a(f'v_lshlrev_b32 v{t+2}, 1, v{t+1}')
    a(f'global_load_ushort v{B2}, v{t+2}, s[{sB2}:{sB2+1}]')
    a(f'v_lshrrev_b32 v{t+2}, 5, v0'); a(f'v_lshlrev_b32 v{t+2}, 4, v{t+2}')
    a(f's_lshr_b32 s40, s{sTile}, 1'); a('s_lshl_b32 s40, s40, 5'); a(f's_lshl_b32 s41, s{sDt}, 6'); a('s_add_u32 s40, s40, s41')
    a(f'v_add_u32 v{t+2}, s40, v{t+2}')
    a(f'v_lshlrev_b32 v{t+1}, 10, v{t+1}')
    a(f'v_lshl_add_u32 v{t+1}, v{t+2}, 1, v{t+1}')
    add64(a, 44, sWs, WS_X1)
    a(f'global_load_dwordx4 {vr(X1,4)}, v{t+1}, s[44:45]{ld}')
    a(f'global_load_dwordx4 {vr(X1+4,4)}, v{t+1}, s[44:45] offset:16{ld}')
    a(f'v_lshlrev_b32 v{t+2}, 2, v{t+2}')
    add64(a, 44, sWs, WS_MOD + 10240)
    for i in range(4): a(f'global_load_dwordx4 {vr(GB+4*i,4)}, v{t+2}, s[44:45] offset:{16*i}{ld}')
    a('s_waitcnt vmcnt(0) lgkmcnt(0)')
    a(f'v_lshlrev_b32 v{B2}, 16, v{B2}')
    x = t
    for i in range(16):
        if FA is not None: a(f'v_add_f32 v{D+i}, v{D+i}, v{FA+i}')
        a(f'v_add_f32 v{D+i}, v{D+i}, v{B2}')
        if i % 2 == 0: a(f'v_lshlrev_b32 v{x}, 16, v{X1+i//2}')
        else: a(f'v_and_b32 v{x}, 0xffff0000, v{X1+i//2}')
        a(f'v_fma_f32 v{D+i}, v{D+i}, v{GB+i}, v{x}')
    for i in range(8): a(f'v_cvt_pk_bf16_f32 v{X1+i}, v{D+2*i}, v{D+2*i+1}')
    a(f'global_store_dwordx4 v{t+1}, {vr(X1,4)}, s[{sOut}:{sOut+1}]')
    a(f'global_store_dwordx4 v{t+1}, {vr(X1+4,4)}, s[{sOut}:{sOut+1}] offset:16')
```

```python
from asmlib import *
from layout import *
import struct
def f2u(f): return struct.unpack('<I', struct.pack('<f', f))[0]

L_MEM, L_KX, L_VX, L_QB, L_KB, L_OB, L_VB, L_MISC, L_W = 0, 8192, 16384, 24576, 26880, 29184, 31488, 32512, 32768
L_FQ, L_FK, L_FV = L_MISC + 16, L_MISC + 32, L_MISC + 48
ROWB = 288
LOG2E = 1.4426950408889634
QSCALE = (128 ** -0.5) * LOG2E
POLL_LIMIT = 60000

sWq, sWk, sWv, sWo, sM0in, sDbg, sWs = 4, 6, 8, 10, 12, 14, 16
sH, sW, sS, sT2, sT0, sT1, sT3, sCnt = 18, 19, 20, 21, 22, 23, 24, 25
sMemR, sMemW, sPartW, sPartR, sKx, sVx, sKm, sVm, sMemC, sDbgM = 26, 28, 30, 32, 34, 36, 38, 40, 42, 44
sQs, sRole = 46, 47
sEx = 48
sMemB, sPartB = 50, 52
sPrevR, sPrevM = 54, 56
sPubM = 58
sWv8 = 60
sS1 = 61
sTag = 3
sTm = 96

vIdx, vL16, vWQ, vRO, vP, vWB, vVmo, vFW = range(8)
vRQ, vRK, vWO = 8, 9, 10
vPR, vPub, vKmo = 8, 9, 10
vT = 11
vDummy = 14
vFR = 15
vA = 16
vAc = 48
vAv = 56
vE = 60
WvR = 64

def wa_reg(tau, sig): return ar((tau * 8 + sig) * 8, 8)
def wv_reg(sig): return vr(WvR + sig * 8, 8)
def wo_off(t, c, hh): return c * 16384 + t * 2048 + hh * 1024

def add64(a, dst, src, val):
    a(f's_add_u32 s{dst}, s{src}, {val}')
    a(f's_addc_u32 s{dst+1}, s{src+1}, 0')

def emit_rec_setup(a, sst=''):
    a(f's_and_b32 s{sW}, s{sWv8}, 3')
    a(f's_lshr_b32 s{sRole}, s{sWv8}, 2')
    lane = 40
    T = lambda i: 41 + i
    a(f'v_mov_b32 v{lane}, v0')
    a(f'v_lshlrev_b32 v{vL16}, 4, v{lane}')
    n, g = T(0), T(1)
    a(f'v_and_b32 v{n}, 15, v{lane}')
    a(f'v_lshrrev_b32 v{g}, 4, v{lane}')
    vWrow, vTrQ, vTrO = T(2), T(3), T(7)
    a(f'v_lshlrev_b32 v{vWrow}, 13, v{g}')
    a(f'v_lshl_add_u32 v{vWrow}, v{n}, 4, v{vWrow}')
    a(f's_lshl_b32 s{sT0}, s{sH}, 8')
    a(f's_lshl_b32 s{sT1}, s{sW}, 19')
    a(f's_add_u32 s{sT0}, s{sT0}, s{sT1}')
    a(f's_lshl_b32 s{sT1}, s{sRole}, 18')
    a(f's_add_u32 s{sT0}, s{sT0}, s{sT1}')
    for p in (sWq, sWk, sWv): add64(a, p, p, f's{sT0}')
    a(f's_lshl_b32 s{sT0}, s{sH}, 17')
    a(f's_lshl_b32 s{sT1}, s{sW}, 14')
    a(f's_add_u32 s{sT0}, s{sT0}, s{sT1}')
    a(f's_lshl_b32 s{sT1}, s{sRole}, 13')
    a(f's_add_u32 s{sT0}, s{sT0}, s{sT1}')
    add64(a, sWo, sWo, f's{sT0}')
    a(f's_lshl_b32 s{sT3}, s{sW}, 15')
    a(f's_add_u32 s{sT3}, s{sT3}, {L_W}')
    a(f'v_add_u32 v{vWB}, s{sT3}, v{vL16}')
    a(f's_lshl_b32 s{sT1}, s{sRole}, 13')
    a(f's_add_u32 s{sT3}, s{sT3}, s{sT1}')
    a(f'v_add_u32 v{vWB}, s{sT1}, v{vWB}')
    stages = [('q', 0), ('k', 1), ('q', 1), ('k', 0), ('v', 0), ('v', 1), ('o', 0), ('o', 1)]
    stages = [('q', 0), ('q', 1), ('k', 0), ('k', 1), ('v', 0), ('v', 1), ('o', 0), ('o', 1)]
    def dma(st):
        m, hf = stages[st]
        base = {'q': sWq, 'k': sWk, 'v': sWv, 'o': sWo}[m]
        for t in range(8):
            if m == 'o':
                goff = hf * 65536 + t * 1024; va = vL16
            else:
                goff = hf * 256 * 8192 + t * 32768; va = vWrow
            add64(a, sT0, base, goff)
            a(f's_add_u32 m0, s{sT3}, {hf * 16384 + t * 1024}')
            a(f'global_load_lds_dwordx4 v{va}, s[{sT0}:{sT0+1}]')
    r_, cc, t0, t1, m0a, m0b = T(9), T(10), T(11), T(12), T(13), T(14)
    a(f'v_lshrrev_b32 v{t0}, 3, v{lane}')
    a(f'v_lshlrev_b32 v{t0}, 10, v{t0}')
    a(f'v_bfe_u32 v{t1}, v{lane}, 1, 2')
    a(f'v_lshl_add_u32 v{t0}, v{t1}, 1, v{t0}')
    a(f'v_and_b32 v{t1}, 1, v{lane}')
    a(f'v_lshl_add_u32 v{t0}, v{t1}, 4, v{t0}')
    a(f's_lshl_b32 s{sT2}, s{sH}, 5')
    a(f'v_add_u32 v{t0}, s{sT2}, v{t0}')
    a(f'global_load_ushort v{m0a}, v{t0}, s[{sM0in}:{sM0in+1}]')
    a(f'global_load_ushort v{m0b}, v{t0}, s[{sM0in}:{sM0in+1}] offset:8')
    dma(0); dma(1)
    a(f'v_lshrrev_b32 v{r_}, 2, v{n}')
    a(f'v_and_b32 v{cc}, 3, v{n}')
    a(f'v_lshrrev_b32 v{t0}, 1, v{g}')
    a(f'v_lshlrev_b32 v{t0}, 4, v{t0}')
    a(f'v_and_b32 v{t1}, 1, v{g}')
    a(f'v_add_u32 v{t0}, v{t0}, v{t1}')
    a(f'v_and_b32 v{t1}, 1, v{r_}')
    a(f'v_lshl_add_u32 v{t0}, v{t1}, 2, v{t0}')
    a(f'v_lshrrev_b32 v{t1}, 1, v{r_}')
    a(f'v_lshl_add_u32 v{t0}, v{t1}, 1, v{t0}')
    a(f'v_lshlrev_b32 v{t0}, 8, v{t0}')
    a(f'v_lshl_add_u32 v{t0}, v{cc}, 3, v{t0}')
    a(f's_lshl_b32 s{sT2}, s{sW}, 6')
    a(f's_add_u32 s{sT2}, s{sT2}, {L_W}')
    a(f'v_add_u32 v{t0}, s{sT2}, v{t0}')
    for sp in range(4):
        a(f's_xor_b32 s{sT2}, s{sW}, {sp}')
        a(f's_lshl_b32 s{sT2}, s{sT2}, 15')
        a(f'v_add_u32 v{vTrQ+sp}, s{sT2}, v{t0}')
    a(f'v_lshrrev_b32 v{t0}, 1, v{g}')
    a(f'v_lshlrev_b32 v{t0}, 3, v{t0}')
    a(f'v_lshrrev_b32 v{t1}, 1, v{r_}')
    a(f'v_lshl_add_u32 v{t0}, v{t1}, 2, v{t0}')
    a(f'v_and_b32 v{t1}, 1, v{r_}')
    a(f'v_add_u32 v{t0}, v{t0}, v{t1}')
    a(f'v_lshlrev_b32 v{t0}, 10, v{t0}')
    a(f'v_and_b32 v{t1}, 1, v{g}')
    a(f'v_lshl_add_u32 v{t0}, v{t1}, 15, v{t0}')
    a(f'v_lshl_add_u32 v{t0}, v{cc}, 5, v{t0}')
    a(f's_lshl_b32 s{sT2}, s{sW}, 8')
    a(f's_lshl_b32 s{sCnt}, s{sRole}, 7')
    a(f's_add_u32 s{sT2}, s{sT2}, s{sCnt}')
    a(f's_add_u32 s{sT2}, s{sT2}, {L_W}')
    a(f'v_add_u32 v{vTrO}, s{sT2}, v{t0}')
    a(f'v_add_u32 v{vTrO+1}, 0x10000, v{vTrO}')
    a(f'v_and_b32 v{t0}, 1, v{lane}')
    a(f'v_mul_u32_u24 v{t0}, 0xAAAA, v{t0}')
    a(f'v_add_u32 v{vIdx}, 0x4444, v{t0}')
    a(f'v_mul_u32_u24 v{t0}, {2*ROWB}, v{g}')
    a(f'v_lshl_add_u32 v{t0}, v{n}, 2, v{t0}')
    a(f's_mul_i32 s{sCnt}, s{sRole}, {L_KB-L_QB}')
    a(f's_lshl_b32 s{sT2}, s{sW}, 6')
    a(f's_add_u32 s{sT2}, s{sT2}, s{sCnt}')
    a(f's_add_u32 s{sT2}, s{sT2}, {L_QB}')
    a(f'v_add_u32 v{vWQ}, s{sT2}, v{t0}')
    a(f'v_lshrrev_b32 v{t0}, 1, v{n}')
    a(f'v_mul_u32_u24 v{t0}, {ROWB}, v{t0}')
    a(f'v_lshl_add_u32 v{t0}, v{g}, 5, v{t0}')
    a(f'v_and_b32 v{t1}, 1, v{n}')
    a(f'v_lshl_add_u32 v{t0}, v{t1}, 4, v{t0}')
    a(f'v_add_u32 v{vRO}, {L_OB}, v{t0}')
    a(f'v_lshlrev_b32 v{t0}, 13, v{r_}')
    a(f'v_lshl_add_u32 v{t0}, v{g}, 10, v{t0}')
    a(f'v_lshl_add_u32 v{t0}, v{cc}, 4, v{t0}')
    a(f's_lshl_b32 s{sT2}, s{sW}, 16')
    a(f's_lshl_b32 s{sCnt}, s{sRole}, 15')
    a(f's_add_u32 s{sT2}, s{sT2}, s{sCnt}')
    a(f's_lshr_b32 s{sCnt}, s{sH}, 4')
    a(f's_lshl_b32 s{sCnt}, s{sCnt}, 12')
    a(f's_add_u32 s{sT2}, s{sT2}, s{sCnt}')
    a(f's_and_b32 s{sCnt}, s{sH}, 15')
    a(f's_lshl_b32 s{sCnt}, s{sCnt}, 6')
    a(f's_add_u32 s{sT2}, s{sT2}, s{sCnt}')
    a(f'v_add_u32 v{vP}, s{sT2}, v{t0}')
    a(f'v_lshlrev_b32 v{t0}, 4, v{n}')
    a(f'v_lshl_add_u32 v{t0}, v{g}, 2, v{t0}')
    a(f's_lshl_b32 s{sT2}, s{sW}, 9')
    a(f's_lshl_b32 s{sCnt}, s{sRole}, 8')
    a(f's_add_u32 s{sT2}, s{sT2}, s{sCnt}')
    a(f'v_add_u32 v{vVmo}, s{sT2}, v{t0}')
    a(f's_lshl_b32 s{sT2}, s{sW}, 2')
    a(f'v_mov_b32 v{vFW}, s{sT2}')
    a(f'v_and_b32 v{t0}, 31, v{lane}')
    a(f'v_lshlrev_b32 v{t0}, 6, v{t0}')
    a(f'v_lshrrev_b32 v{t1}, 5, v{lane}')
    a(f'v_lshl_add_u32 v13, v{t1}, 24, v{t0}')
    LB = a.uid('su_b'); LE = a.uid('su_e')
    a(f's_cmp_lg_u32 s{sRole}, 0')
    a(f's_cbranch_scc1 {LB}')
    a(f'v_and_b32 v{t0}, 7, v{n}')
    a(f'v_mul_u32_u24 v{t0}, {ROWB}, v{t0}')
    a(f'v_lshl_add_u32 v{t0}, v{g}, 4, v{t0}')
    a(f'v_add_u32 v{vRQ}, {L_QB}, v{t0}')
    a(f's_lshl_b32 s{sT2}, s{sW}, 6')
    a(f's_add_u32 s{sT2}, s{sT2}, {L_OB}')
    a(f'v_add_u32 v{vWO}, s{sT2}, v{t0}')
    a(f'v_and_b32 v{t1}, 1, v{n}')
    a(f'v_lshl_add_u32 v{t1}, v{r_}, 1, v{t1}')
    a(f'v_mul_u32_u24 v{t0}, {ROWB}, v{t1}')
    a(f'v_lshl_add_u32 v{t0}, v{g}, 4, v{t0}')
    a(f'v_add_u32 v{vRK}, {L_KB}, v{t0}')
    a(f'v_lshlrev_b32 v{vFR}, 2, v{cc}')
    a(f's_branch {LE}')
    a(f'{LB}:')
    a(f's_lshl_b32 s{sT2}, s{sW}, 10')
    a(f'v_add_u32 v{vPR}, s{sT2}, v{vL16}')
    a(f'v_lshlrev_b32 v{t0}, 5, v{g}')
    a(f'v_lshl_add_u32 v{t0}, v{cc}, 3, v{t0}')
    a(f'v_and_b32 v{t0}, 63, v{t0}')
    a(f's_lshl_b32 s{sT2}, s{sW}, 6')
    a(f's_lshl_b32 s{sCnt}, s{sH}, 8')
    a(f's_add_u32 s{sT2}, s{sT2}, s{sCnt}')
    a(f'v_add_u32 v{vPub}, s{sT2}, v{t0}')
    a(f'v_lshlrev_b32 v{t0}, 9, v{g}')
    a(f'v_lshl_add_u32 v{t0}, v{n}, 2, v{t0}')
    a(f's_lshl_b32 s{sT2}, s{sW}, 6')
    a(f'v_add_u32 v{vKmo}, s{sT2}, v{t0}')
    a(f'v_and_b32 v{t0}, 31, v{lane}')
    a(f'v_lshlrev_b32 v{t0}, 6, v{t0}')
    a(f'v_lshrrev_b32 v{t1}, 5, v{lane}')
    a(f'v_lshl_add_u32 v15, v{t1}, 24, v{t0}')
    a(f'{LE}:')
    add64(a, sMemB, sWs, WS_MEM)
    add64(a, sPartB, sWs, WS_PART)
    a(f's_lshl_b32 s{sT2}, s{sH}, 13')
    a(f's_lshl_b32 s{sCnt}, s{sW}, 11')
    a(f's_add_u32 s{sCnt}, s{sCnt}, s{sT2}')
    add64(a, sKx, sWs, WS_K); add64(a, sKx, sKx, f's{sCnt}')
    add64(a, sVx, sWs, WS_V); add64(a, sVx, sVx, f's{sCnt}')
    a(f's_lshl_b32 s{sT2}, s{sH}, 11')
    add64(a, sKm, sWs, WS_KM); add64(a, sKm, sKm, f's{sT2}')
    add64(a, sVm, sWs, WS_VM); add64(a, sVm, sVm, f's{sT2}')
    add64(a, sDbgM, sWs, WS_MEMDBG)
    a(f's_mov_b32 s{sQs}, {hex(f2u(QSCALE))}')
    a(f's_mov_b32 s{sPubM}, 0x000f000f')
    a(f's_mov_b32 s{sPubM+1}, 0')
    a(f's_mov_b64 s[{sPartR}:{sPartR+1}], s[{sPartB}:{sPartB+1}]')
    a(f's_mov_b64 s[{sMemC}:{sMemC+1}], s[{sMemB}:{sMemB+1}]')
    a(f'v_mov_b32 v{t0}, 0')
    a(f'v_lshlrev_b32 v{t1}, 2, v{n}')
    a(f'ds_write_b32 v{t1}, v{t0} offset:{L_MISC+16}')
    CL = 16
    for i in range(4): a(f'v_mov_b32 v{CL+i}, -1')
    a(f's_lshl_b32 s{sT2}, s{sH}, 13')
    a(f's_lshl_b32 s{sCnt}, s{sWv8}, 10')
    a(f's_add_u32 s{sT2}, s{sT2}, s{sCnt}')
    a(f'v_add_u32 v{t0}, s{sT2}, v{vL16}')
    for par in range(4):
        a(f'global_store_dwordx4 v{t0}, v[{CL}:{CL+3}], s[{sPartB}:{sPartB+1}]{sst}')
        a(f'v_add_u32 v{t0}, 0x40000, v{t0}')
    a('s_waitcnt vmcnt(20)')
    a(f'v_lshl_or_b32 v{m0a}, v{m0b}, 16, v{m0a}')
    a(f'v_min_u32 v{m0a}, 0xfffffffe, v{m0a}')
    a(f's_cmp_eq_u32 s{sW}, 0')
    a(f's_cselect_b64 vcc, -1, 0')
    a(f'v_cndmask_b32 v{m0a}, -1, v{m0a}, vcc')
    a(f's_lshl_b32 s{sT2}, s{sW}, 13')
    a(f's_lshl_b32 s{sCnt}, s{sH}, 8')
    a(f's_add_u32 s{sT2}, s{sT2}, s{sCnt}')
    a(f'v_lshlrev_b32 v{t0}, 2, v{lane}')
    a(f'v_add_u32 v{t0}, s{sT2}, v{t0}')
    a(f'global_store_dword v{t0}, v{m0a}, s[{sMemB}:{sMemB+1}]{sst}')
    vTrV = T(15)
    a(f's_lshl_b32 s{sT2}, s{sRole}, 5')
    for sp in range(4): a(f'v_add_u32 v{vTrV+sp}, s{sT2}, v{vTrQ+sp}')
    TMP = 8
    for st in range(8):
        m, hf = stages[st]
        n_after = {0: 8 + 5, 7: 0}.get(st, 8)
        a(f's_waitcnt vmcnt({n_after})')
        a('s_barrier')
        if m in 'qk':
            Ls = a.uid('su_skip')
            a(f's_cmp_lg_u32 s{sRole}, {0 if m == "q" else 1}')
            a(f's_cbranch_scc1 {Ls}')
            for tau in range(2):
                for sp in range(4):
                    for j in range(4):
                        imm = (32 * (j >> 1) + 8 * (j & 1)) * 256 + tau * 32 + hf * 16384
                        sig = hf * 4 + sp
                        a(f'ds_read_b64_tr_b16 {ar((tau * 8 + sig) * 8 + 2 * j, 2)}, v{vTrQ+sp} offset:{imm}')
                    if sp % 2 == 1: a('s_waitcnt lgkmcnt(4)')
            a(f'{Ls}:')
        elif m == 'v':
            for sp in range(4):
                for j in range(4):
                    imm = (32 * (j >> 1) + 8 * (j & 1)) * 256 + hf * 16384
                    a(f'ds_read_b64_tr_b16 {vr(WvR + (hf * 4 + sp) * 8 + 2 * j, 2)}, v{vTrV+sp} offset:{imm}')
                if sp % 2 == 1: a('s_waitcnt lgkmcnt(4)')
        else:
            def tmp(t): return 16 + 8 * t if t < 3 else 52
            for t in range(4):
                for j in range(4):
                    imm = hf * 16384 + (j & 1) * 2048 + t * 8
                    a(f'ds_read_b64_tr_b16 {vr(tmp(t) + 2 * j, 2)}, v{vTrO + (j >> 1)} offset:{imm}')
                if t % 2 == 1: a('s_waitcnt lgkmcnt(4)')
        a('s_waitcnt lgkmcnt(0)')
        a('s_barrier')
        if m == 'o':
            Lb = a.uid('su_ob'); Le = a.uid('su_oe')
            a(f's_cmp_lg_u32 s{sRole}, 0')
            a(f's_cbranch_scc1 {Lb}')
            for t in range(4):
                for hh in range(2):
                    a(f'ds_write_b128 v{vWB}, {vr(tmp(t) + 4 * hh, 4)} offset:{wo_off(t, hf, hh)}')
            a(f's_branch {Le}')
            a(f'{Lb}:')
            for sp in range(4):
                for hh in range(2):
                    a(f'ds_write_b128 v{vWB}, {vr(WvR + (hf * 4 + sp) * 8 + 4 * hh, 4)} offset:{wo_off(sp, hf, hh)}')
            a('s_waitcnt lgkmcnt(0)')
            for t in range(4):
                for i in range(0, 8, 2):
                    a(f'v_mov_b64 {vr(WvR + (hf * 4 + t) * 8 + i, 2)}, {vr(tmp(t) + i, 2)}')
            a(f'{Le}:')
        if st + 2 < 8: dma(st + 2)

def emit_heads_barrier(a, Lerr):
    a('s_waitcnt vmcnt(0) lgkmcnt(0)')
    a('s_barrier')
    Lskip = a.uid('hb_skip'); Lp = a.uid('hb_poll')
    a(f's_cmp_lg_u32 s{sWv8}, 0')
    a(f's_cbranch_scc1 {Lskip}')
    a(f'v_mov_b32 v{vT}, 36')
    a(f'v_mov_b32 v{vT+1}, 1')
    a('s_mov_b64 exec, 1')
    a(f'global_atomic_add v{vT}, v{vT+1}, s[{sDbg}:{sDbg+1}] sc1')
    a('s_mov_b64 exec, -1')
    a(f's_mov_b32 s{sCnt}, {POLL_LIMIT}')
    a(f'{Lp}:')
    a(f'global_load_dword v{vT+1}, v{vT}, s[{sDbg}:{sDbg+1}] sc1')
    a(f's_sub_u32 s{sCnt}, s{sCnt}, 1')
    a(f's_cbranch_scc1 {Lerr}')
    a('s_waitcnt vmcnt(0)')
    a(f'v_cmp_gt_u32 vcc, 32, v{vT+1}')
    a(f's_cbranch_vccnz {Lp}')
    a(f'{Lskip}:')
    a('s_barrier')

def smf(a, d, A, B, idx=None):
    a(f'v_smfmac_f32_16x16x64_bf16 {vr(d,4)}, {vr(A,4)}, {B}, v{vIdx if idx is None else idx}')
def mf(a, d, A, B, C):
    a(f'v_mfma_f32_16x16x32_bf16 {vr(d,4)}, {vr(A,4)}, {vr(B,4)}, {C if isinstance(C,str) else vr(C,4)}')
def mf16(a, d, A, B, C):
    a(f'v_mfma_f32_16x16x16_bf16 {vr(d,4)}, {vr(A,2)}, {vr(B,2)}, {vr(C,4)}')

class Stamps:
    def __init__(self, a, on): self.a = a; self.on = on; self.n = 0
    def __call__(self):
        if not self.on: return
        assert self.n < 16
        self.a(f's_memtime s[{64+2*self.n}:{65+2*self.n}]')
        self.n += 1
    def dump(self, step=40):
        if not self.on: return
        a = self.a
        L = a.uid('nodump')
        a(f's_cmp_lg_u32 s{sS}, {step}')
        a(f's_cbranch_scc1 {L}')
        a('s_waitcnt lgkmcnt(0)')
        a(f's_lshl_b32 s{sT2}, s{sH}, 9')
        a(f's_lshl_b32 s{sT3}, s{sWv8}, 6')
        a(f's_add_u32 s{sT2}, s{sT2}, s{sT3}')
        a(f'v_mov_b32 v{vT}, s{sT2}')
        for i in range(self.n):
            a(f'v_mov_b32 v{vT+1}, s{64+2*i}')
            a(f'global_store_dword v{vT}, v{vT+1}, s[{sDbgM}:{sDbgM+1}] offset:{4*i}')
        a(f'{L}:')

def poll2(a, R0, R1, voff, sbase, off0, off1, Lerr, opt, pre=None):
    def loads():
        a(f'global_load_dwordx4 {vr(R0,4)}, v{voff}, s[{sbase}:{sbase+1}] offset:{off0} sc1')
        a(f'global_load_dwordx4 {vr(R1,4)}, v{voff}, s[{sbase}:{sbase+1}] offset:{off1} sc1')
    def check():
        a(f'v_max3_u32 v{vT}, v{R0}, v{R0+1}, v{R0+2}')
        a(f'v_max3_u32 v{vT+1}, v{R1}, v{R1+1}, v{R1+2}')
        a(f'v_max3_u32 v{vT}, v{vT}, v{R0+3}, v{R1+3}')
        a(f'v_max_u32 v{vT}, v{vT}, v{vT+1}')
        a(f'v_cmp_eq_u32 vcc, -1, v{vT}')
    Lok = a.uid('p_ok'); Lp = a.uid('p_loop')
    depth = opt.get('pdepth', 2); gap = opt.get('pgap', 2)
    loads()
    if pre: pre()
    a(f's_mov_b32 s{sCnt}, {POLL_LIMIT}')
    a('s_waitcnt vmcnt(0)')
    check()
    a(f's_cbranch_vccz {Lok}')
    a('s_mov_b64 exec, vcc')
    for d in range(depth - 1):
        loads()
        for _ in range(gap): a('s_nop 7')
    a(f'{Lp}:')
    loads()
    a(f's_sub_u32 s{sCnt}, s{sCnt}, 1')
    a(f's_cbranch_scc1 {Lerr}')
    a(f's_waitcnt vmcnt({2 * (depth - 1)})')
    check()
    a('s_and_b64 exec, exec, vcc')
    a(f's_cbranch_execnz {Lp}')
    a('s_mov_b64 exec, -1')
    a(f'{Lok}:')

def poll1(a, R0, voff, sbase, off0, Lerr, opt, pre=None):
    def loads(): a(f'global_load_dwordx4 {vr(R0,4)}, v{voff}, s[{sbase}:{sbase+1}] offset:{off0} sc1')
    def check():
        a(f'v_max3_u32 v{vT}, v{R0}, v{R0+1}, v{R0+2}')
        a(f'v_max_u32 v{vT}, v{vT}, v{R0+3}')
        a(f'v_cmp_eq_u32 vcc, -1, v{vT}')
    Lok = a.uid('p_ok'); Lp = a.uid('p_loop')
    loads()
    if pre: pre()
    a(f's_mov_b32 s{sCnt}, {POLL_LIMIT}')
    a('s_waitcnt vmcnt(0)')
    check()
    a(f's_cbranch_vccz {Lok}')
    a('s_mov_b64 exec, vcc')
    loads()
    a('s_nop 7'); a('s_nop 7')
    a(f'{Lp}:')
    loads()
    a(f's_sub_u32 s{sCnt}, s{sCnt}, 1')
    a(f's_cbranch_scc1 {Lerr}')
    a('s_waitcnt vmcnt(1)')
    check()
    a('s_and_b64 exec, exec, vcc')
    a(f's_cbranch_execnz {Lp}')
    a('s_mov_b64 exec, -1')
    a(f'{Lok}:')

def step_bases(a):
    a(f's_mov_b64 s[{sPrevR}:{sPrevR+1}], s[{sPartR}:{sPartR+1}]')
    a(f's_mov_b64 s[{sPrevM}:{sPrevM+1}], s[{sMemC}:{sMemC+1}]')
    a(f's_and_b32 s{sT2}, s{sS}, 3')
    a(f's_lshl_b32 s{sT2}, s{sT2}, 13')
    add64(a, sMemC, sMemB, f's{sT2}')
    a(f's_lshl_b32 s{sT3}, s{sW}, 10')
    a(f's_add_u32 s{sT3}, s{sT3}, 2048')
    add64(a, sMemR, sMemC, f's{sT3}')
    a(f's_add_u32 s{sS1}, s{sS}, 1')
    a(f's_bfe_u32 s{sTag}, s{sS}, 0x10002')
    a(f's_and_b32 s{sT2}, s{sS1}, 3')
    a(f's_lshl_b32 s{sT2}, s{sT2}, 13')
    add64(a, sMemW, sMemB, f's{sT2}')
    a(f's_and_b32 s{sT2}, s{sS}, 3')
    a(f's_lshl_b32 s{sT2}, s{sT2}, 18')
    add64(a, sPartW, sPartB, f's{sT2}')
    a(f's_lshl_b32 s{sT2}, s{sH}, 13')
    a(f's_add_u32 s{sT2}, s{sT2}, 2048')
    add64(a, sPartR, sPartW, f's{sT2}')

others = [(1, 0), (1, 1), (2, 0), (2, 1), (3, 0), (3, 1)]
AS = lambda sig: vA + 4 * sig

def wo_phase(a, st, first_bufs_loaded, bufs, OA, ACC, S):
    seq = [(t_, c) for c in range(2) for t_ in range(4)]
    nb = len(bufs)
    def WOL(i):
        t_, c = seq[i]; b = bufs[i % nb]
        a(f'ds_read_b128 {vr(b,4)}, v{vWB} offset:{wo_off(t_, c, 0)}')
        a(f'ds_read_b128 {vr(b+4,4)}, v{vWB} offset:{wo_off(t_, c, 1)}')
    a(f'ds_read_b128 {vr(OA,4)}, v{vRO}')
    a(f'ds_read_b128 {vr(OA+4,4)}, v{vRO} offset:128')
    issued = first_bufs_loaded
    after_oa = 0
    while issued < nb: WOL(issued); issued += 1; after_oa += 1
    order = ['OA0', 'OA1'] + [i for i in range(first_bufs_loaded, nb) for _ in range(2)]
    def wait_for(item):
        if item not in order: return
        idx = len(order) - 1 - order[::-1].index(item)
        a(f's_waitcnt lgkmcnt({min(15, len(order) - 1 - idx)})')
    for i in range(8):
        t_, c = seq[i]
        need_ = []
        if i == 0: need_.append('OA0')
        if i == 4: need_.append('OA1')
        need_.append(i)
        present = [x for x in need_ if x in order]
        if present:
            latest = max(present, key=lambda x: len(order) - 1 - order[::-1].index(x))
            wait_for(latest)
        if i == 0: S()
        smf(a, ACC + 4 * t_, OA + 4 * c, vr(bufs[i % nb], 8))
        if issued < 8:
            WOL(issued); order += [issued, issued]; issued += 1
    for t2 in range(4):
        a(f'v_add_f32 v{ACC+4*t2}, v{ACC+4*t2}, v{ACC+4*t2+1}')
        a(f'v_add_f32 v{ACC+4*t2+2}, v{ACC+4*t2+2}, v{ACC+4*t2+3}')
    a(f'v_cvt_pk_bf16_f32 v{ACC}, v{ACC}, v{ACC+4}')
    a(f'v_cvt_pk_bf16_f32 v{ACC+1}, v{ACC+8}, v{ACC+12}')
    a(f'v_cvt_pk_bf16_f32 v{ACC+2}, v{ACC+2}, v{ACC+6}')
    a(f'v_cvt_pk_bf16_f32 v{ACC+3}, v{ACC+10}, v{ACC+14}')
    for i in range(4): a(f'v_bfi_b32 v{ACC+i}, 1, s{sTag}, v{ACC+i}')
    a(f'global_store_dwordx4 v{vP}, {vr(ACC,4)}, s[{sPartW}:{sPartW+1}]{st}')
    return WOL


def epilogue_store(a, ACC, st):
    for t2 in range(4):
        a(f'v_add_f32 v{ACC+4*t2}, v{ACC+4*t2}, v{ACC+4*t2+1}')
        a(f'v_add_f32 v{ACC+4*t2+2}, v{ACC+4*t2+2}, v{ACC+4*t2+3}')
    a(f'v_cvt_pk_bf16_f32 v{ACC}, v{ACC}, v{ACC+4}')
    a(f'v_cvt_pk_bf16_f32 v{ACC+1}, v{ACC+8}, v{ACC+12}')
    a(f'v_cvt_pk_bf16_f32 v{ACC+2}, v{ACC+2}, v{ACC+6}')
    a(f'v_cvt_pk_bf16_f32 v{ACC+3}, v{ACC+10}, v{ACC+14}')
    for i in range(4): a(f'v_bfi_b32 v{ACC+i}, 1, s{sTag}, v{ACC+i}')
    a(f'global_store_dwordx4 v{vP}, {vr(ACC,4)}, s[{sPartW}:{sPartW+1}]{st}')

def poll2t(a, R0, R1, voff, sbase, off0, off1, Lerr, opt, tag):
    op = '0x80' if tag else '0xfe'
    def loads():
        a(f'global_load_dwordx4 {vr(R0,4)}, v{voff}, s[{sbase}:{sbase+1}] offset:{off0} sc1')
        a(f'global_load_dwordx4 {vr(R1,4)}, v{voff}, s[{sbase}:{sbase+1}] offset:{off1} sc1')
    def check():
        a(f'v_bitop3_b32 v{vT}, v{R0}, v{R0+1}, v{R0+2} bitop3:{op}')
        a(f'v_bitop3_b32 v{vT+1}, v{R1}, v{R1+1}, v{R1+2} bitop3:{op}')
        a(f'v_bitop3_b32 v{vT}, v{vT}, v{R0+3}, v{R1+3} bitop3:{op}')
        a(f'v_bitop3_b32 v{vT}, v{vT}, v{vT+1}, 1 bitop3:{"0x80" if tag else "0xa8"}')
        a(f'v_cmp_ne_u32 vcc, {tag}, v{vT}')
    Lok = a.uid('p_ok'); Lp = a.uid('p_loop')
    depth = opt.get('pdepth', 2); gap = opt.get('pgap', 2)
    loads()
    a(f's_mov_b32 s{sCnt}, {POLL_LIMIT}')
    a('s_waitcnt vmcnt(0)')
    check()
    a(f's_cbranch_vccz {Lok}')
    a('s_mov_b64 exec, vcc')
    for d in range(depth - 1):
        loads()
        for _ in range(gap): a('s_nop 7')
    a(f'{Lp}:')
    loads()
    a(f's_sub_u32 s{sCnt}, s{sCnt}, 1')
    a(f's_cbranch_scc1 {Lerr}')
    a(f's_waitcnt vmcnt({2 * (depth - 1)})')
    check()
    a('s_and_b64 exec, exec, vcc')
    a(f's_cbranch_execnz {Lp}')
    a('s_mov_b64 exec, -1')
    a(f'{Lok}:')

def emit_loop_A(a, Lerr, Ldone, fast, debug, stamps, opt):
    st = '' if fast else ' sc1'
    S = Stamps(a, stamps)
    a(f's_setprio {opt.get("prioA", 2)}')
    Lloop = a.uid('A_loop')
    a(f'{Lloop}:')
    step_bases(a)
    RA = vE
    a(f's_lshl_b32 s{sT2}, s{sW}, 10')
    a(f'v_add_u32 v{RA+3}, s{sT2}, v{vL16}')
    for sp in range(1, 4): a(f'v_xor_b32 v{RA+sp-1}, {sp*1024}, v{RA+3}')
    for i in range(0, 12, 2): a(f'v_mov_b64 {vr(vAc+i,2)}, 0')
    a(f'v_mov_b32 v14, s{sS1}')
    a('s_barrier')
    S()
    poll1(a, AS(0), vL16, sMemR, -2048, Lerr, opt)
    S()
    a(f'ds_write_b128 v{RA+3}, {vr(AS(0),4)}')
    q = vAc
    smf(a, q, AS(0), wa_reg(0, 0)); smf(a, q + 4, AS(0), wa_reg(1, 0))
    a('s_waitcnt lgkmcnt(0)')
    a('s_barrier')
    S()
    a(f'ds_read_b128 {vr(AS(4), 4)}, v{RA+3} offset:4096')
    for sp, hf in others:
        a(f'ds_read_b128 {vr(AS(hf * 4 + sp), 4)}, v{RA+sp-1} offset:{hf*4096}')
    smf(a, vAv, AS(0), wv_reg(0))
    osig = [hf * 4 + sp for sp, hf in others]
    kxh = [AS(0), AS(4), AS(osig[0]), AS(osig[1]), AS(osig[2]), AS(osig[3])]
    def KXL(f, home):
        kk, T = f >> 1, f & 1
        a(f'ds_read_b128 {vr(home,4)}, v{vL16} offset:{L_KX + T*4096 + kk*1024}')
    for i, sig in enumerate([4] + osig):
        a(f's_waitcnt lgkmcnt({6 - i})')
        for tau in range(2): smf(a, q + 4 * tau, AS(sig), wa_reg(tau, sig))
    S()
    def V(i): smf(a, vAv, AS(osig[i]), wv_reg(osig[i]))
    a('s_waitcnt vmcnt(0)')
    add64(a, sKx, sKx, 32 * 8192)
    a(f'global_load_dword v12, v13, s[{sKx}:{sKx+1}]')
    KXL(0, kxh[0])
    a(f'v_add_f32 v{q}, v{q}, v{q+1}')
    a(f'v_add_f32 v{q+2}, v{q+2}, v{q+3}')
    a(f'v_add_f32 v{q+4}, v{q+4}, v{q+5}')
    a(f'v_add_f32 v{q+6}, v{q+6}, v{q+7}')
    a(f'v_cvt_pk_bf16_f32 v{q}, v{q}, v{q+4}')
    a(f'v_cvt_pk_bf16_f32 v{q+2}, v{q+2}, v{q+6}')
    a(f'ds_write2_b32 v{vWQ}, v{q}, v{q+2} offset0:0 offset1:{ROWB//4}')
    a(f'ds_write_b32 v{vFW}, v14 offset:{L_FQ}')
    S()
    a(f's_setprio {opt.get("prioAv", 0)}')
    smf(a, vAv, AS(4), wv_reg(4))
    KXL(1, kxh[1])
    V(4); V(5)
    V(0); V(1)
    KXL(2, kxh[2]); KXL(3, kxh[3])
    qb = [vAc, vAc + 4, AS(osig[4]), AS(osig[5])]
    F = vT
    Lr = a.uid('fwq')
    a(f's_mov_b32 s{sCnt}, {POLL_LIMIT}')
    a(f'{Lr}:')
    a(f'ds_read_b32 v{F}, v{vFR} offset:{L_FQ}')
    for kk in range(4): a(f'ds_read_b128 {vr(qb[kk],4)}, v{vRQ} offset:{kk*64}')
    a(f's_sub_u32 s{sCnt}, s{sCnt}, 1')
    a(f's_cbranch_scc1 {Lerr}')
    a('s_waitcnt lgkmcnt(4)')
    a(f'v_cmp_gt_u32 vcc, s{sS1}, v{F}')
    a(f's_cbranch_vccnz {Lr}')
    V(2); V(3)
    a(f's_setprio {opt.get("prioA", 2)}')
    KXL(4, kxh[4]); KXL(5, kxh[5])
    Sx0 = vE; Sx1 = 12 - 0
    S()
    a('s_waitcnt lgkmcnt(5)')
    mf(a, Sx0, kxh[0], qb[0], '0')
    KXL(6, kxh[0])
    a('s_waitcnt lgkmcnt(5)')
    mf(a, Sx0, kxh[2], qb[1], Sx0)
    Sx1 = kxh[2]
    a('s_waitcnt lgkmcnt(2)')
    mf(a, Sx0, kxh[4], qb[2], Sx0)
    KXL(7, kxh[4])
    mf(a, Sx1, kxh[1], qb[0], '0')
    mf(a, Sx1, kxh[3], qb[1], Sx1)
    km = [kxh[1], kxh[3], kxh[5], kxh[0]]
    a('s_waitcnt lgkmcnt(1)')
    mf(a, Sx0, kxh[0], qb[3], Sx0)
    mf(a, Sx1, kxh[5], qb[2], Sx1)
    Lr2 = a.uid('fwk')
    a(f's_mov_b32 s{sCnt}, {POLL_LIMIT}')
    a('s_waitcnt lgkmcnt(0)')
    mf(a, Sx1, kxh[4], qb[3], Sx1)
    S()
    VM0 = vAv
    Lk2 = a.uid('fwk_ok')
    a(f'ds_read_b32 v{F}, v{vFR} offset:{L_FK}')
    for kk in range(4): a(f'ds_read_b128 {vr(km[kk],4)}, v{vRK} offset:{kk*64}')
    a('s_waitcnt lgkmcnt(4)')
    a(f'v_cmp_gt_u32 vcc, s{sS1}, v{F}')
    a(f's_cbranch_vccz {Lk2}')
    a(f'{Lr2}:')
    a(f'ds_read_b32 v{F}, v{vFR} offset:{L_FK}')
    a(f's_sub_u32 s{sCnt}, s{sCnt}, 1')
    a(f's_cbranch_scc1 {Lerr}')
    a('s_waitcnt lgkmcnt(0)')
    a(f'v_cmp_gt_u32 vcc, s{sS1}, v{F}')
    a(f's_cbranch_vccnz {Lr2}')
    for kk in range(4): a(f'ds_read_b128 {vr(km[kk],4)}, v{vRK} offset:{kk*64}')
    a(f'{Lk2}:')
    Sm = kxh[4]
    a(f'v_add_f32 v{vAv}, v{vAv}, v{vAv+1}')
    a(f'v_add_f32 v{vAv+2}, v{vAv+2}, v{vAv+3}')
    a('s_waitcnt lgkmcnt(3)')
    mf(a, Sm, km[0], qb[0], '0')
    a(f'v_cvt_pk_bf16_f32 v{VM0}, v{vAv}, v{vAv+2}')
    a(f'v_mov_b32 v{VM0+1}, 0')
    a('s_waitcnt lgkmcnt(2)')
    mf(a, Sm, km[1], qb[1], Sm)
    mx = vT; t = vAv + 2; u = vAv + 3
    SX = [Sx0 + i for i in range(4)] + [Sx1 + i for i in range(4)]
    a(f'v_max3_f32 v{mx}, v{SX[0]}, v{SX[1]}, v{SX[2]}')
    a(f'v_max3_f32 v{t}, v{SX[4]}, v{SX[5]}, v{SX[6]}')
    a('s_waitcnt lgkmcnt(1)')
    mf(a, Sm, km[2], qb[2], Sm)
    a(f'v_max3_f32 v{mx}, v{mx}, v{SX[3]}, v{SX[7]}')
    a(f'global_store_dword v{vVmo}, v{VM0}, s[{sVm}:{sVm+1}] sc1')
    a('s_waitcnt lgkmcnt(0)')
    mf(a, Sm, km[3], qb[3], Sm)
    add64(a, sVm, sVm, 32 * 2048)
    a(f's_cmp_eq_u32 s{sS}, 63')
    a(f's_cbranch_scc1 {Ldone}')
    VX0, VX1, VM1, F3 = km[0], km[1], km[2], km[3]
    a(f's_lshl_b32 s{sT2}, s{sW}, 11')
    a(f'v_add_u32 v{u}, s{sT2}, v{vL16}')
    a(f'ds_read_b128 {vr(VX0,4)}, v{u} offset:{L_VX}')
    a(f'ds_read_b128 {vr(VX1,4)}, v{u} offset:{L_VX+1024}')
    a(f'v_lshrrev_b32 v{km[3]+1}, 2, v{vL16}')
    a(f's_lshl_b32 s{sT2}, s{sW}, 8')
    a(f'v_add_u32 v{km[3]+1}, s{sT2}, v{km[3]+1}')
    S()
    a(f'v_max3_f32 v{mx}, v{mx}, v{t}, v{Sm}')
    a(f'v_max_f32 v{mx}, v{mx}, v{Sm+1}')
    a(f'v_mov_b32 v{t}, v{mx}')
    a(f'v_permlane32_swap_b32 v{mx}, v{t}')
    a(f'v_max_f32 v{mx}, v{mx}, v{t}')
    a(f'v_mov_b32 v{t}, v{mx}')
    a(f'v_permlane16_swap_b32 v{mx}, v{t}')
    a(f'v_max_f32 v{mx}, v{mx}, v{t}')
    a(f'v_mul_f32 v{mx}, s{sQs}, v{mx}')
    for r in SX:
        a(f'v_fma_f32 v{r}, v{r}, s{sQs}, -v{mx}')
        a(f'v_exp_f32 v{r}, v{r}')
    PX = Sx0
    a(f'v_cvt_pk_bf16_f32 v{PX}, v{SX[0]}, v{SX[1]}')
    a(f'v_cvt_pk_bf16_f32 v{PX+1}, v{SX[2]}, v{SX[3]}')
    a(f'v_cvt_pk_bf16_f32 v{PX+2}, v{SX[4]}, v{SX[5]}')
    a(f'v_cvt_pk_bf16_f32 v{PX+3}, v{SX[6]}, v{SX[7]}')
    O = vAc; LS = qb[2]; ONE = qb[3]
    a(f'v_mov_b32 v{ONE}, 0x3f803f80')
    a(f'v_mov_b32 v{ONE+1}, 0x3f803f80')
    a(f'v_mov_b64 {vr(ONE+2,2)}, {vr(ONE,2)}')
    Lr3 = a.uid('fwv')
    a(f's_mov_b32 s{sCnt}, {POLL_LIMIT}')
    a(f'ds_read_b32 v{F3}, v{vFW} offset:{L_FV}')
    a(f'ds_read_b32 v{VM1}, v{km[3]+1} offset:{L_VB}')
    a('s_waitcnt lgkmcnt(2)')
    mf(a, LS, ONE, PX, '0')
    a(f'v_fma_f32 v{t}, v{Sm}, s{sQs}, -v{mx}')
    a(f'v_fma_f32 v{u}, v{Sm+1}, s{sQs}, -v{mx}')
    mf(a, O, VX0, PX, '0')
    a(f'v_exp_f32 v{t}, v{t}')
    a(f'v_exp_f32 v{u}, v{u}')
    mf(a, O + 4, VX1, PX, '0')
    PM = Sm + 2
    a(f'v_mov_b32 v{PM+1}, 0')
    a(f'v_cvt_pk_bf16_f32 v{PM}, v{t}, v{u}')
    a(f'v_mov_b32 v{VM1+1}, 0')
    Lv = a.uid('fwv_in')
    a(f's_branch {Lv}')
    a(f'{Lr3}:')
    a(f'ds_read_b32 v{F3}, v{vFW} offset:{L_FV}')
    a(f'ds_read_b32 v{VM1}, v{km[3]+1} offset:{L_VB}')
    a(f's_sub_u32 s{sCnt}, s{sCnt}, 1')
    a(f's_cbranch_scc1 {Lerr}')
    a(f'{Lv}:')
    a('s_waitcnt lgkmcnt(0)')
    a(f'v_cmp_gt_u32 vcc, s{sS1}, v{F3}')
    a(f's_cbranch_vccnz {Lr3}')
    mf16(a, LS, ONE, PM, LS)
    mf16(a, O, VM0, PM, O)
    mf16(a, O + 4, VM1, PM, O + 4)
    S()
    seq = [(t_, c) for c in range(2) for t_ in range(4)]
    bufs = [AS(0), AS(4)]
    for i in range(2):
        t_, c = seq[i]
        a(f'ds_read_b128 {vr(bufs[i],4)}, v{vWB} offset:{wo_off(t_, c, 0)}')
        a(f'ds_read_b128 {vr(bufs[i]+4,4)}, v{vWB} offset:{wo_off(t_, c, 1)}')
    a(f'v_rcp_f32 v{t}, v{LS}')
    OP = vE
    for i in range(4):
        a(f'v_mul_f32 v{O+2*i}, v{O+2*i}, v{t}')
        a(f'v_mul_f32 v{O+2*i+1}, v{O+2*i+1}, v{t}')
        a(f'v_cvt_pk_bf16_f32 v{OP+i}, v{O+2*i}, v{O+2*i+1}')
    a(f'ds_write_b128 v{vWO}, {vr(OP,4)}')
    t_, c = seq[2]
    a(f'ds_read_b128 {vr(AS(6),4)}, v{vWB} offset:{wo_off(t_, c, 0)}')
    a(f'ds_read_b128 {vr(AS(7),4)}, v{vWB} offset:{wo_off(t_, c, 1)}')
    ACC = vAc
    for i in range(0, 12, 2): a(f'v_mov_b64 {vr(ACC+i,2)}, 0')
    a('s_waitcnt lgkmcnt(2)')
    S()
    a('s_barrier')
    for i in range(12, 16, 2): a(f'v_mov_b64 {vr(ACC+i,2)}, 0')
    bufs = [AS(0), AS(4), AS(6)]
    wo_phase(a, st, 3, bufs, AS(2), ACC, S)
    S()
    S.dump()
    a(f's_add_u32 s{sS}, s{sS}, 1')
    a.fence(4)
    a(f's_branch {Lloop}')

def emit_loop_B(a, Lerr, Ldone, fast, debug, stamps, opt):
    st = '' if fast else ' sc1'
    S = Stamps(a, stamps)
    bK, bV, bO, bOwn, RA = 16, 24, 28, 56, 60
    osig = [0] + [hf * 4 + sp for sp, hf in others]
    BS = {sig: bO + 4 * i for i, sig in enumerate(osig)}
    def kv_dma():
        a(f's_lshl_b32 s{sT2}, s{sW}, 11')
        a(f's_add_u32 m0, s{sT2}, {L_KX}')
        a(f'global_load_lds_dwordx4 v{vL16}, s[{sKx}:{sKx+1}]')
        a(f'global_load_lds_dwordx4 v{vL16}, s[{sKx}:{sKx+1}] offset:1024')
        a(f's_add_u32 m0, s{sT2}, {L_VX}')
        a(f'global_load_lds_dwordx4 v{vL16}, s[{sVx}:{sVx+1}]')
        a(f'global_load_lds_dwordx4 v{vL16}, s[{sVx}:{sVx+1}] offset:1024')
        add64(a, sKx, sKx, 32 * 8192)
        add64(a, sVx, sVx, 32 * 8192)
    def WVL(sig, b):
        a(f'ds_read_b128 {vr(b,4)}, v{vWB} offset:{wo_off(sig & 3, sig >> 2, 0)}')
        a(f'ds_read_b128 {vr(b+4,4)}, v{vWB} offset:{wo_off(sig & 3, sig >> 2, 1)}')
    kv_dma()
    a(f'v_mov_b32 v{vDummy}, 0')
    a(f's_setprio {opt.get("prioB", 0)}')
    Lloop = a.uid('B_loop')
    step_bases(a)
    a(f'{Lloop}:')
    a('s_barrier')
    S()
    def pre():
        WVL(4, bO + 8)
        for sp in range(1, 4): a(f'v_xor_b32 v{RA+sp-1}, {sp*1024}, v{vPR}')
        for i in range(0, 12, 2): a(f'v_mov_b64 {vr(bK+i,2)}, 0')
        a(f'v_mov_b32 v{vT+2}, s{sS1}')
    poll1(a, bOwn, vL16, sMemR, 2048, Lerr, opt, pre)
    S()
    a(f's_setprio {opt.get("prioBk", 1)}')
    a(f'ds_write_b128 v{vPR}, {vr(bOwn,4)} offset:4096')
    k = bK
    smf(a, k, bOwn, wa_reg(0, 4)); smf(a, k + 4, bOwn, wa_reg(1, 4))
    a('s_waitcnt lgkmcnt(0)')
    a('s_barrier')
    S()
    smf(a, bV, bOwn, vr(bO + 8, 8))
    a(f'ds_read_b128 {vr(BS[0], 4)}, v{vPR}')
    for sp, hf in others:
        a(f'ds_read_b128 {vr(BS[hf * 4 + sp], 4)}, v{RA+sp-1} offset:{hf*4096}')
    mg = opt.get('mega')
    if mg:
        Lnp = a.uid('nprog')
        a(f's_cmp_lg_u32 s{sW}, 0'); a(f's_cbranch_scc1 {Lnp}')
        a(f's_lshl_b32 s{sT2}, s{sH}, 7'); a(f's_add_u32 s{sT2}, s{sT2}, {FL_PROG}')
        a(f'v_mov_b32 v{vT}, s{sT2}'); a(f'v_mov_b32 v{vT+1}, s{sS}')
        a('s_mov_b64 exec, 1')
        a(f'global_store_dword v{vT}, v{vT+1}, s[{mg["sFl"]}:{mg["sFl"]+1}] sc1')
        a('s_mov_b64 exec, -1')
        a(f'{Lnp}:')
        Lok = a.uid('cntok'); Lsp = a.uid('cntsp')
        a(f's_add_u32 s{mg["sCnt"]}, s{mg["sCnt"]}, 128')
        a(f'v_mov_b32 v15, s{mg["sCnt"]}')
        a(f's_cmp_ge_u32 s{sS}, 62'); a(f's_cbranch_scc1 {Lok}')
        a(f's_mov_b32 s{sCnt}, 4000000')
        a(f'{Lsp}:')
        a(f'v_and_b32 v{vDummy}, 0xff, v{vDummy}')
        a(f'v_cmp_eq_u32 vcc, 4, v{vDummy}')
        a(f's_cbranch_vccnz {Lok}')
        a(f'global_load_dword v{vDummy}, v15, s[{mg["sFl"]}:{mg["sFl"]+1}] offset:128 sc1')
        a(f's_sub_u32 s{sCnt}, s{sCnt}, 1'); a(f's_cbranch_scc1 {Lerr}')
        a('s_waitcnt vmcnt(0)')
        a(f's_branch {Lsp}')
        a(f'{Lok}:')
        a(f'global_load_dword v{vDummy}, v15, s[{mg["sFl"]}:{mg["sFl"]+1}] offset:256 sc1')
    X = bOwn
    for i, sig in enumerate(osig):
        a(f's_waitcnt lgkmcnt({6 - i + (2 if i >= 3 else 0)})')
        for tau in range(2): smf(a, k + 4 * tau, BS[sig], wa_reg(tau, sig))
        if i == 2:
            a(f's_waitcnt vmcnt({1 if mg else 0})')
            WVL(osig[0], X)
    S()
    a(f'v_add_f32 v{k}, v{k}, v{k+1}')
    a(f'v_add_f32 v{k+2}, v{k+2}, v{k+3}')
    a(f'v_add_f32 v{k+4}, v{k+4}, v{k+5}')
    a(f'v_add_f32 v{k+6}, v{k+6}, v{k+7}')
    a(f'v_cvt_pk_bf16_f32 v{vT}, v{k}, v{k+4}')
    a(f'v_cvt_pk_bf16_f32 v{vT+1}, v{k+2}, v{k+6}')
    a(f'ds_write2_b32 v{vWQ}, v{vT}, v{vT+1} offset0:0 offset1:{ROWB//4}')
    a(f'ds_write_b32 v{vFW}, v{vT+2} offset:{L_FK}')
    S()
    a(f's_setprio {opt.get("prioB", 0)}')
    Y = bK
    WVL(osig[1], Y)
    a('s_waitcnt lgkmcnt(4)')
    smf(a, bV, BS[osig[0]], vr(X, 8))
    WVL(osig[2], X)
    a(f'global_store_dword v{vKmo}, v{vT}, s[{sKm}:{sKm+1}] sc1')
    a(f'global_store_dword v{vKmo}, v{vT+1}, s[{sKm}:{sKm+1}] offset:256 sc1')
    add64(a, sKm, sKm, 32 * 2048)
    a('s_waitcnt lgkmcnt(2)')
    smf(a, bV, BS[osig[1]], vr(Y, 8))
    X, Y = Y, X
    Z = bO
    WVL(osig[3], X); WVL(osig[4], Z)
    a('s_waitcnt lgkmcnt(4)')
    smf(a, bV, BS[osig[2]], vr(Y, 8))
    WVL(osig[5], Y)
    a('s_waitcnt lgkmcnt(4)')
    smf(a, bV, BS[osig[3]], vr(X, 8))
    WVL(osig[6], X)
    a('s_waitcnt lgkmcnt(4)')
    smf(a, bV, BS[osig[4]], vr(Z, 8))
    a('s_waitcnt lgkmcnt(2)')
    smf(a, bV, BS[osig[5]], vr(Y, 8))
    a(f'v_lshrrev_b32 v{vT+1}, 2, v{vPR}')
    a('s_waitcnt lgkmcnt(0)')
    smf(a, bV, BS[osig[6]], vr(X, 8))
    a(f'v_add_f32 v{bV}, v{bV}, v{bV+1}')
    a(f'v_add_f32 v{bV+2}, v{bV+2}, v{bV+3}')
    a(f'v_cvt_pk_bf16_f32 v{vT}, v{bV}, v{bV+2}')
    a(f'ds_write_b32 v{vT+1}, v{vT} offset:{L_VB}')
    a(f'ds_write_b32 v{vFW}, v{vT+2} offset:{L_FV}')
    a(f'global_store_dword v{vVmo}, v{vT}, s[{sVm}:{sVm+1}] sc1')
    add64(a, sVm, sVm, 32 * 2048)
    a(f's_cmp_eq_u32 s{sS}, 63')
    a(f's_cbranch_scc1 {Ldone}')
    S()
    Lnr = a.uid('norearm')
    a(f's_cmp_eq_u32 s{sS}, 0')
    a(f's_cbranch_scc1 {Lnr}')
    a(f'v_mov_b64 {vr(32,2)}, -1')
    a(f's_mov_b64 exec, s[{sPubM}:{sPubM+1}]')
    a(f'global_store_dwordx2 v{vPub}, {vr(32,2)}, s[{sPrevM}:{sPrevM+1}]{st}')
    a('s_mov_b64 exec, -1')
    a(f'{Lnr}:')
    ACC = 48
    for i in range(0, 16, 2): a(f'v_mov_b64 {vr(ACC+i,2)}, 0')
    PB = 28; SA = 36; SI = 40; RD = 44; OA = 16
    a('s_waitcnt lgkmcnt(0)')
    S()
    a('s_barrier')
    a(f'ds_read_b128 {vr(OA,4)}, v{vRO}')
    a(f'ds_read_b128 {vr(OA+4,4)}, v{vRO} offset:128')
    a(f's_setprio {opt.get("prioBwo", 3)}')
    a('s_waitcnt lgkmcnt(1)')
    S()
    for t_ in range(4): smf(a, ACC + 4 * t_, OA, vr(WvR + t_ * 8, 8))
    a('s_waitcnt lgkmcnt(0)')
    for t_ in range(4): smf(a, ACC + 4 * t_, OA + 4, vr(WvR + (4 + t_) * 8, 8))
    epilogue_store(a, ACC, st)
    a(f's_setprio {opt.get("prioB", 0)}')
    S()
    kv_dma()
    cc_, n_, one = 41, 42, 43
    a(f'v_bfe_u32 v{cc_}, v{vL16}, 4, 2')
    a(f'v_bfe_u32 v{n_}, v{vL16}, 6, 2')
    a(f'v_cmp_eq_u32 vcc, 3, v{cc_}')
    a(f'v_mov_b32 v{one}, 0x3f80')
    a(f'v_mov_b32 v{RD}, 0x3f800000')
    a(f'v_cndmask_b32 v{one}, v{one}, v{RD}, vcc')
    a(f'v_cndmask_b32 v{cc_}, v{cc_}, 0, vcc')
    a(f'v_or_b32 v{cc_}, 12, v{cc_}')
    a(f'v_mul_u32_u24 v{SI}, 0x1111, v{cc_}')
    a(f'v_cmp_eq_u32 vcc, 0, v{n_}')
    a(f'v_cndmask_b32 v{SA}, 0, v{one}, vcc')
    a(f'v_cmp_eq_u32 vcc, 1, v{n_}')
    a(f'v_cndmask_b32 v{SA+1}, 0, v{one}, vcc')
    a(f'v_mov_b64 {vr(SA+2,2)}, {vr(SA,2)}')
    a(f'v_mov_b64 {vr(RD,2)}, 0')
    a(f'v_mov_b64 {vr(RD+2,2)}, 0')
    a(f's_mov_b64 s[{sEx}:{sEx+1}], s[{sMemW}:{sMemW+1}]')
    a(f's_mov_b32 s{sT0}, s{sTag}')
    a(f's_add_u32 s{sS}, s{sS}, 1')
    step_bases(a)
    for _ in range(opt.get('rdelay', 2)): a('s_nop 15')
    Lt1 = a.uid('tag1'); Ltd = a.uid('tagd')
    a(f's_cmp_lg_u32 s{sT0}, 0'); a(f's_cbranch_scc1 {Lt1}')
    poll2t(a, PB, PB + 4, vPR, sPrevR, -2048, 2048, Lerr, opt, 0)
    a(f's_branch {Ltd}')
    a(f'{Lt1}:')
    poll2t(a, PB, PB + 4, vPR, sPrevR, -2048, 2048, Lerr, opt, 1)
    a(f'{Ltd}:')
    S()
    smf(a, RD, SA, vr(PB, 8), idx=SI)
    for i in range(4): a(f'v_add_f32_dpp v{RD+i}, v{RD+i}, v{RD+i} row_ror:4 row_mask:0xf bank_mask:0xf')
    for i in range(4): a(f'v_add_f32_dpp v{RD+i}, v{RD+i}, v{RD+i} row_ror:8 row_mask:0xf bank_mask:0xf')
    a(f'v_cvt_pk_bf16_f32 v{RD}, v{RD}, v{RD+1}')
    a(f'v_cvt_pk_bf16_f32 v{RD+1}, v{RD+2}, v{RD+3}')
    a(f's_mov_b64 exec, s[{sPubM}:{sPubM+1}]')
    a(f'global_store_dwordx2 v{vPub}, {vr(RD,2)}, s[{sEx}:{sEx+1}]{st}')
    if debug:
        add64(a, sDbgM, sDbgM, 8192)
        a(f'global_store_dwordx2 v{vPub}, {vr(RD,2)}, s[{sDbgM}:{sDbgM+1}]')
    a('s_mov_b64 exec, -1')
    S()
    S.dump(41)
    a(f's_branch {Lloop}')

def build_rec_test(fast=True, debug=False, stamps=False, **opt):
    a = Asm()
    a.raw('; @launch kernel=rec_kernel grid=(256,1,1) block=(512,1,1) lds=163840')
    a.raw('.amdgcn_target "amdgcn-amd-amdhsa--gfx950"\n.text\n.globl rec_kernel\n.p2align 8\n.type rec_kernel,@function\nrec_kernel:')
    a('s_cmp_ge_u32 s2, 256')
    a('s_cbranch_scc1 L_end')
    a(f's_load_dwordx4 s[{sWq}:{sWq+3}], s[0:1], {KA["Wq"]}')
    a(f's_load_dwordx4 s[{sWv}:{sWv+3}], s[0:1], {KA["Wv"]}')
    a(f's_load_dwordx2 s[{sM0in}:{sM0in+1}], s[0:1], {KA["mem0"]}')
    a(f's_load_dwordx2 s[{sDbg}:{sDbg+1}], s[0:1], {KA["dbg"]}')
    a(f's_load_dwordx2 s[{sWs}:{sWs+1}], s[0:1], {KA["ws"]}')
    a(f'v_lshrrev_b32 v1, 6, v0')
    a(f'v_and_b32 v0, 63, v0')
    a(f'v_readfirstlane_b32 s{sWv8}, v1')
    a(f's_getreg_b32 s{sT2}, hwreg(HW_REG_XCC_ID, 0, 4)')
    a('s_waitcnt lgkmcnt(0)')
    a(f's_cmp_lg_u32 s{sT2}, 0')
    a('s_cbranch_scc1 L_end')
    a(f's_cmp_lg_u32 s{sWv8}, 0')
    a('s_cbranch_scc1 L_role_wait')
    a('v_mov_b32 v2, 0')
    a('v_mov_b32 v3, 1')
    a('s_mov_b64 exec, 1')
    a(f'global_atomic_add v4, v2, v3, s[{sDbg}:{sDbg+1}] sc0 sc1')
    a('s_waitcnt vmcnt(0)')
    a(f'v_mov_b32 v2, {L_MISC}')
    a('ds_write_b32 v2, v4')
    a('s_mov_b64 exec, -1')
    a('s_waitcnt lgkmcnt(0)')
    a('L_role_wait:')
    a('s_barrier')
    a(f'v_mov_b32 v2, {L_MISC}')
    a('ds_read_b32 v4, v2')
    a('s_waitcnt lgkmcnt(0)')
    a(f'v_readfirstlane_b32 s{sH}, v4')
    a('s_nop 3')
    a(f's_cmp_ge_u32 s{sH}, 32')
    a('s_cbranch_scc1 L_end')
    a(f's_memrealtime s[{sTm}:{sTm+1}]')
    emit_rec_setup(a)
    emit_heads_barrier(a, 'L_err')
    a(f's_memrealtime s[{sTm+2}:{sTm+3}]')
    a(f's_mov_b32 s{sS}, 0')
    a('s_waitcnt lgkmcnt(0)')
    a(f's_cmp_lg_u32 s{sRole}, 0')
    a('s_cbranch_scc1 L_roleB')
    emit_loop_A(a, 'L_err', 'L_done', fast, debug, stamps, opt)
    a('L_roleB:')
    emit_loop_B(a, 'L_err', 'L_done', fast, debug, stamps, opt)
    a('L_err:')
    a('s_mov_b64 exec, -1')
    a('v_mov_b32 v11, 40')
    a('v_mov_b32 v12, 1')
    a(f'global_atomic_add v11, v12, s[{sDbg}:{sDbg+1}] sc1')
    a('L_done:')
    a(f's_memrealtime s[100:101]')
    a('s_waitcnt vmcnt(0) lgkmcnt(0)')
    a(f's_cmp_lg_u32 s{sH}, 5')
    a('s_cbranch_scc1 L_end')
    a(f's_sub_u32 s{sT0}, s{sTm+2}, s{sTm}')
    a(f's_sub_u32 s{sT1}, s100, s{sTm+2}')
    a(f'v_mov_b32 v18, s{sT0}')
    a(f'v_mov_b32 v19, s{sT1}')
    a('v_mov_b32 v16, 64')
    a(f'global_store_dwordx2 v16, v[18:19], s[{sDbg}:{sDbg+1}]')
    a('L_end:')
    a('s_endpgm')
    a.raw(kernel_desc('rec_kernel', vgpr=256, accum=128))
    return a.text()

if __name__ == '__main__':
    open('rec_test.s', 'w').write(build_rec_test(debug=True))
    open('rec_test_nd.s', 'w').write(build_rec_test())
    open('rec_test_st.s', 'w').write(build_rec_test(stamps=True))
    for i, o in enumerate([dict(rdelay=0), dict(rdelay=4), dict(prioBk=2), dict(prioBk=3), dict(prioBwo=2), dict(prioAv=2)]):
        open(f'rec_x{i}.s', 'w').write(build_rec_test(**o))
```

```python
from asmlib import *
from layout import *
import pre, qkv, att, mlp
import rec8 as rec5
from pre import add64, f2u, unpack8, ln_stats
KNAME = 'adaLN_cond__memory_aug_recurrent_mem_tr__mixer_token_mlp__prompt_kernel'
sWid, sWave, sDbgP, sWsP, sFl, sLim = 90, 91, 92, 94, 96, 98
WLIM = 400000
SC = ' sc1'

def wave_poll(a, sbase, off_expr, cmp, val, Lerr, vt=10, mask=None, sleep=2, drain=True):
    L = a.uid('wp'); Lok = a.uid('wpok')
    a(f'v_mov_b32 v{vt}, {off_expr}')
    a(f's_mov_b32 s{sLim}, {WLIM}')
    a(f'{L}:')
    a(f'global_load_dword v{vt+1}, v{vt}, s[{sbase}:{sbase+1}] sc1')
    a('s_waitcnt vmcnt(0)')
    if mask is not None: a(f'v_and_b32 v{vt+1}, {mask}, v{vt+1}')
    a(f'v_cmp_{cmp}_u32 vcc, {val}, v{vt+1}')
    a(f's_cbranch_vccnz {Lok}')
    a(f's_sleep {sleep}')
    a(f's_sub_u32 s{sLim}, s{sLim}, 1')
    a(f's_cbranch_scc0 {L}')
    a(f's_branch {Lerr}')
    a(f'{Lok}:')

def wg_wait(a, polls, Lerr):
    L = a.uid('wgw')
    a(f's_cmp_lg_u32 s{sWave}, 0')
    a(f's_cbranch_scc1 {L}')
    polls()
    a(f'{L}:')
    a('s_barrier')

def signal(a, sbase, off_expr, val, vt=10):
    a(f'v_mov_b32 v{vt}, {off_expr}')
    a(f'v_mov_b32 v{vt+1}, {val}')
    a('s_mov_b64 exec, 1')
    a(f'global_atomic_add v{vt}, v{vt+1}, s[{sbase}:{sbase+1}] sc1')
    a('s_mov_b64 exec, -1')

def wg_signal(a, sbase, off_expr, val):
    a('s_waitcnt vmcnt(0)')
    a('s_barrier')
    L = a.uid('wgs')
    a(f's_cmp_lg_u32 s{sWave}, 0')
    a(f's_cbranch_scc1 {L}')
    signal(a, sbase, off_expr, val)
    a(f'{L}:')

def stamp(a, idx, on):
    if not on: return
    L = a.uid('stp')
    a(f's_cmp_lg_u32 s{sWave}, 0'); a(f's_cbranch_scc1 {L}')
    a('s_memrealtime s[100:101]')
    a(f's_lshl_b32 s99, s{sWid}, 7')
    a(f's_add_u32 s99, s99, {WS_MEMDBG + 4*idx}')
    a('v_mov_b32 v11, s99')
    a('s_waitcnt lgkmcnt(0)')
    a('v_mov_b32 v12, s100')
    a(f'global_store_dword v11, v12, s[{sWsP}:{sWsP+1}]')
    a(f'{L}:')

def build(stamps=False, recopt=None, psleep=1):
    recopt = recopt or {}
    a = Asm()
    a.raw(f'; @launch grid=(256,1,1) block=(512,1,1) lds=163840')
    a.raw('.amdgcn_target "amdgcn-amd-amdhsa--gfx950"\n.text')
    pre.header(a, KNAME)
    a('s_cmp_ge_u32 s2, 256'); a('s_cbranch_scc1 L_end')
    a(f's_load_dwordx4 s[{sDbgP}:{sDbgP+3}], s[0:1], {KA["dbg"]}')
    a('v_lshrrev_b32 v1, 6, v0'); a('v_and_b32 v0, 63, v0'); a(f'v_readfirstlane_b32 s{sWave}, v1')
    a('s_getreg_b32 s20, hwreg(HW_REG_XCC_ID, 0, 4)')
    a('s_waitcnt lgkmcnt(0)')
    add64(a, sFl, sWsP, WS_FL)
    LM = 163840 - 64
    a(f's_load_dwordx4 s[12:15], s[0:1], {KA["c"]}')
    a(f's_load_dwordx2 s[16:17], s[0:1], {KA["x"]}')
    a(f's_mov_b32 s{sWid}, s2')
    stamp(a, 0, stamps)
    off, m_, r, t = 61, 62, 63, 64
    R, X, SA, CA = 68, 72, 80, 88
    a('s_waitcnt lgkmcnt(0)')
    a(f's_cmp_lg_u32 s{sWave}, 7'); a('s_cbranch_scc1 L_role_skip')
    a('s_and_b32 s20, s20, 7')
    a('v_mov_b32 v2, 0'); a('v_mov_b32 v3, 1')
    a('s_mov_b64 exec, 1')
    a('s_cmp_lg_u32 s20, 0'); a('s_cbranch_scc1 L_role_worker')
    a(f'global_atomic_add v4, v2, v3, s[{sDbgP}:{sDbgP+1}] sc0 sc1')
    a('s_waitcnt vmcnt(0)')
    a('v_readfirstlane_b32 s22, v4')
    a('s_cmp_lt_u32 s22, 32'); a('s_cbranch_scc1 L_role_done')
    a('L_role_worker:')
    a('v_mov_b32 v2, 128')
    a(f'global_atomic_add v4, v2, v3, s[{sDbgP}:{sDbgP+1}] sc0 sc1')
    a('s_waitcnt vmcnt(0)')
    a('v_readfirstlane_b32 s22, v4')
    a('s_sub_u32 s23, 255, s22')
    a('s_add_u32 s22, s22, 32')
    a('s_cmp_lt_u32 s22, 256')
    a('s_cselect_b32 s22, s22, s23')
    a('L_role_done:')
    a('v_mov_b32 v4, s22'); a(f'v_mov_b32 v2, {LM}')
    a('ds_write_b32 v2, v4')
    a('s_mov_b64 exec, -1')
    a('s_waitcnt lgkmcnt(0)')
    a('L_role_skip:')
    a('s_cmp_ge_u32 s2, 64'); a('s_cbranch_scc1 L_nomod')
    a('s_and_b32 s19, s2, 7'); a('s_sub_u32 s19, s19, 1'); a('s_cmp_ge_u32 s19, 6'); a('s_cbranch_scc1 L_nomod')
    a('s_lshr_b32 s18, s2, 3'); a('s_mul_i32 s18, s18, 6'); a('s_add_u32 s18, s18, s19')
    a('v_lshlrev_b32 v2, 4, v0'); a('s_lshl_b32 s19, s18, 10'); a('v_add_u32 v2, s19, v2')
    for i in range(4): a(f'v_mov_b32 v{4+i}, 0')
    a(f'global_store_dwordx4 v2, v[4:7], s[{sFl}:{sFl+1}] sc1')
    add64(a, 20, sWsP, WS_MOD)
    pre.emit_mod_task(a, 18, sWave, 12, 14, 20, SC, lds_base=16384)
    wg_signal(a, sDbgP, 44, 1)
    a('L_nomod:')
    a('s_barrier')
    a(f'v_mov_b32 v2, {LM}')
    a('ds_read_b32 v4, v2')
    a('s_waitcnt lgkmcnt(0)')
    a(f'v_readfirstlane_b32 s{sWid}, v4')
    a('s_nop 3')
    a(f's_cmp_lt_u32 s{sWid}, 32')
    a('s_cbranch_scc1 L_head')
    a(f's_sub_u32 s{sWid}, s{sWid}, 32')
    add64(a, 20, sWsP, WS_MOD); add64(a, 22, sWsP, WS_H)
    a(f's_load_dwordx4 s[4:7], s[0:1], {KA["Wq"]}')
    a(f's_load_dwordx2 s[8:9], s[0:1], {KA["Wv"]}')
    g = qkv.QKV(a, 4, 6, 8, sWsP, sWave, st=SC)
    g.vDma, g.vTr0, g.vTr1, g.vSK, g.vSV, g.vT = 100, 101, 102, 103, 104, 105
    WT = 32768
    sGrp = 18
    a(f's_mov_b32 s{sGrp}, s{sWid}')
    g.setup()
    a(f'v_add_u32 v{g.vTr0}, {WT}, v{g.vTr0}'); a(f'v_add_u32 v{g.vTr1}, {WT}, v{g.vTr1}')
    a(f's_mov_b32 s{g.sBuf}, {WT}')
    a('L_ln_loop:')
    a(f's_lshl_b32 s40, s{sGrp}, 3'); a(f's_add_u32 s40, s40, s{sWave}'); a('s_lshl_b32 s40, s40, 10')
    a(f'v_lshlrev_b32 v{t}, 4, v0'); a(f'v_add_u32 v{off}, s40, v{t}')
    a(f'global_load_dwordx4 {vr(R,4)}, v{off}, s[16:17]')
    a('s_waitcnt lgkmcnt(0)')
    a(f's_cmp_ge_u32 s{sWid}, 192'); a('s_cbranch_scc1 L_now')
    g.dma(sWid)
    a('s_waitcnt vmcnt(8)')
    a('s_branch L_now2')
    a('L_now:')
    a('s_waitcnt vmcnt(0)')
    a('L_now2:')
    unpack8(a, R, X)
    ln_stats(a, X, m_, r, t)
    wg_wait(a, lambda: wave_poll(a, sDbgP, 44, 'le', 48, 'L_err', vt=44, sleep=1), 'L_err')
    a(f'v_lshlrev_b32 v{t}, 5, v0')
    a(f'global_load_dwordx4 {vr(SA,4)}, v{t}, s[20:21] sc1')
    a(f'global_load_dwordx4 {vr(SA+4,4)}, v{t}, s[20:21] offset:16 sc1')
    a(f'global_load_dwordx4 {vr(CA,4)}, v{t}, s[20:21] offset:2048 sc1')
    a(f'global_load_dwordx4 {vr(CA+4,4)}, v{t}, s[20:21] offset:2064 sc1')
    a('s_waitcnt vmcnt(0)')
    for i in range(8):
        a(f'v_add_f32 v{CA+i}, 1.0, v{CA+i}')
        a(f'v_fma_f32 v{X+i}, v{X+i}, v{CA+i}, v{SA+i}')
    for i in range(4): a(f'v_cvt_pk_bf16_f32 v{R+i}, v{X+2*i}, v{X+2*i+1}')
    a(f's_mul_i32 s40, s{sWave}, 1040')
    a(f'v_lshlrev_b32 v{t}, 4, v0'); a(f'v_add_u32 v{t}, s40, v{t}')
    a(f'ds_write_b128 v{t}, {vr(R,4)}')
    a(f'v_and_b32 v{t}, 7, v0'); a(f'v_mul_u32_u24 v{m_}, 1040, v{t}')
    a(f'v_lshrrev_b32 v{r}, 3, v0'); a(f's_lshl_b32 s40, s{sWave}, 3'); a(f'v_add_u32 v{r}, s40, v{r}')
    a(f'v_lshl_add_u32 v{m_}, v{r}, 4, v{m_}')
    a('s_waitcnt lgkmcnt(0)'); a('s_barrier')
    a(f'ds_read_b128 {vr(R,4)}, v{m_}')
    a(f'v_lshlrev_b32 v{r}, 9, v{r}'); a(f'v_lshl_add_u32 v{r}, v{t}, 4, v{r}')
    a(f's_lshr_b32 s40, s{sGrp}, 2'); a('s_lshl_b32 s40, s40, 15'); a(f's_and_b32 s41, s{sGrp}, 3'); a('s_lshl_b32 s41, s41, 7'); a('s_add_u32 s40, s40, s41')
    a(f'v_add_u32 v{r}, s40, v{r}')
    a('s_waitcnt lgkmcnt(0)')
    a(f'global_store_dwordx4 v{r}, {vr(R,4)}, s[22:23] sc1')
    a(f's_lshr_b32 s40, s{sGrp}, 2'); a('s_lshl_b32 s40, s40, 6'); a(f's_add_u32 s40, s40, {FL_HD}')
    a('s_waitcnt vmcnt(0)')
    signal(a, sFl, 's40', 1, vt=44)
    a(f's_add_u32 s{sGrp}, s{sGrp}, 32')
    a(f's_cmp_lt_u32 s{sGrp}, 224'); a('s_cbranch_scc1 L_ln_done')
    a(f's_cmp_lt_u32 s{sGrp}, 256'); a('s_cbranch_scc1 L_ln_loop')
    a('L_ln_done:')
    stamp(a, 1, stamps)
    a(f's_cmp_ge_u32 s{sWid}, 192'); a('s_cbranch_scc1 L_qkv_done')
    a('s_barrier')
    sRb, sSeg = 18, 19
    vH = 106
    a(f'v_lshlrev_b32 v110, 4, v0')
    for i in range(1, 8): a(f'v_add_u32 v{110+i}, {4096*i}, v110')
    hld = lambda ks: a(f'global_load_dwordx4 {ar(4*ks,4)}, v{110 + (ks >> 2)}, s[24:25] offset:{1024*(ks & 3)} sc1')
    a(f's_lshl_b32 s40, s{sWave}, 15'); a(f's_add_u32 s40, s40, {WS_H}')
    add64(a, 24, sWsP, 's40')
    a(f's_lshl_b32 s40, s{sWave}, 6'); a(f's_add_u32 s26, s40, {FL_HD}')
    wave_poll(a, sFl, 's26', 'le', 32, 'L_err', vt=108)
    for ks in range(32): hld(ks)
    a(f's_mov_b32 s{sRb}, 0')
    a(f's_cmp_lt_u32 s{sWid}, 128'); a('s_cselect_b32 s27, 1, 0x100')
    a(f's_bfe_u32 s28, s{sWid}, 0x50001'); a('s_lshl_b32 s28, s28, 2')
    a(f's_lshl_b32 s40, s{sWave}, 7'); a('s_add_u32 s28, s28, s40')
    for isV in (False, True):
        tag = 'v' if isV else 'k'
        if not isV:
            a(f's_sub_u32 s40, s{sWid}, 64'); a('s_cmp_lt_u32 s40, 64'); a('s_cbranch_scc1 L_qkv_loop_v')
        a(f'L_qkv_loop_{tag}:')
        add64(a, 24, 24, 8 * 32768)
        a('s_add_u32 s26, s26, 512')
        Lnp = a.uid('nopoll')
        a(f's_cmp_eq_u32 s{sRb}, 7'); a(f's_cbranch_scc1 {Lnp}')
        wave_poll(a, sFl, 's26', 'le', 32, 'L_err', vt=108)
        a(f'{Lnp}:')
        a('s_waitcnt vmcnt(0)')
        a(f's_cmp_eq_u32 s{sRb}, 7')
        a(f's_cselect_b32 s40, {8*32768}, 0')
        a('s_sub_u32 s24, s24, s40'); a('s_subb_u32 s25, s25, 0')
        NS = 4
        def rd(ks):
            for nt in range(2):
                for j in range(2):
                    d = g.WF + ((ks % NS) * 2 + nt) * 4 + 2 * j
                    a(f'ds_read_b64_tr_b16 {vr(d,2)}, v{g.vTr0 if nt == 0 else g.vTr1} offset:{ks*2048 + j*512}')
        for ks in range(NS - 1): rd(ks)
        for ks in range(32):
            if ks + NS - 1 < 32: rd(ks + NS - 1)
            a(f's_waitcnt lgkmcnt({4*min(31 - ks, NS - 1)})')
            for nt in range(2):
                W = vr(g.WF + ((ks % NS) * 2 + nt) * 4, 4); H = ar(4 * ks, 4); D = vr(g.ACC + 16 * nt, 16)
                A_, B_ = (H, W) if isV else (W, H)
                a(f'v_mfma_f32_32x32x16_bf16 {D}, {A_}, {B_}, {"0" if ks == 0 else D}')
            if ks >= 1: hld(ks - 1)
        g.out_base(sWid, sRb, isV)
        hld(31)
        g.epilogue(isV)
        a('s_waitcnt vmcnt(0)')
        signal(a, sFl, 's28', 's27', vt=108)
        a('s_add_u32 s28, s28, 1024')
        a(f's_add_u32 s{sRb}, s{sRb}, 1')
        a(f's_cmp_lt_u32 s{sRb}, 8')
        a(f's_cbranch_scc1 L_qkv_loop_{tag}')
        if not isV: a('s_branch L_qkv_done')
    a('L_qkv_done:')
    a('s_waitcnt vmcnt(0)')
    a('s_barrier')
    stamp(a, 2, stamps)
    a(f's_load_dwordx2 s[4:5], s[0:1], {KA["Wo"]}')
    a(f's_load_dwordx4 s[8:11], s[0:1], {KA["w1"]}')
    sH, sSeg, sG1, sFt, sDt, sKh, sTile = 13, 14, 15, 18, 19, 20, 21
    a(f's_and_b32 s{sH}, s{sWid}, 31'); a(f's_lshr_b32 s{sSeg}, s{sWid}, 5')
    a(f's_lshr_b32 s{sFt}, s{sWid}, 3'); a(f's_and_b32 s{sDt}, s{sWid}, 7')
    a(f's_lshr_b32 s{sKh}, s{sWave}, 2'); a(f's_and_b32 s{sTile}, s{sWave}, 3')
    a(f's_mov_b32 s{sG1}, 0')
    a('s_waitcnt lgkmcnt(0)')
    A_ = att.ATT(a, 4, sWsP, sWave, sH, st=SC, ld=SC)
    A_.setup()
    vDm, vTA, vTB = 124, 125, 126
    G1L = 32768
    Lh = a.uid('g1h'); Le = a.uid('g1e')
    a(f's_cmp_lg_u32 s{sKh}, 0'); a(f's_cbranch_scc1 {Lh}')
    mlp.dma_lane(a, vDm, 16, 3584)
    a(f's_mul_i32 s40, s{sTile}, {8*3584}'); a(f's_lshl_b32 s41, s{sFt}, 7'); a('s_add_u32 s40, s40, s41')
    add64(a, 22, 8, 's40')
    a(f's_mov_b32 s24, {32*3584}')
    a(f's_branch {Le}')
    a(f'{Lh}:')
    mlp.dma_lane(a, vDm, 16, 1024)
    a(f's_lshl_b32 s40, s{sTile}, 13'); a(f's_lshl_b32 s41, s{sDt}, 7'); a('s_add_u32 s40, s40, s41'); a(f's_add_u32 s40, s40, {WS_H2}')
    add64(a, 22, sWsP, 's40')
    a(f's_mov_b32 s24, {32*1024}')
    a(f'{Le}:')
    a(f's_lshl_b32 s25, s{sWave}, 10'); a(f's_add_u32 s25, s25, {G1L}')
    mlp.tr_lane_base(a, vTA, 16, True); mlp.tr_lane_base(a, vTB, 16, False)
    a(f's_lshr_b32 s40, s{sTile}, 1'); a('s_lshl_b32 s40, s40, 6'); a(f'v_xor_b32 v{vTA}, s40, v{vTA}')
    a(f's_and_b32 s40, s{sTile}, 1'); a('s_lshl_b32 s40, s40, 6'); a(f'v_xor_b32 v{vTB}, s40, v{vTB}')
    a(f's_lshl_b32 s40, s{sKh}, 11'); a(f's_add_u32 s40, s40, {G1L}')
    a(f'v_add_u32 v{vTA}, s40, v{vTA}'); a('s_add_u32 s40, s40, 4096'); a(f'v_add_u32 v{vTB}, s40, v{vTB}')
    for i in range(16): a(f'v_accvgpr_write_b32 a{64+i}, 0')
    LN = 163840 - 64

    def g1_batch(blocking):
        Lx = a.uid('g1x'); Lw = a.uid('g1w'); Lp = a.uid('g1p')
        a(f's_cmp_lg_u32 s{sWave}, 0'); a(f's_cbranch_scc1 {Lw}')
        a(f's_mov_b32 s{sLim}, {WLIM}')
        a(f'{Lp}:')
        a(f'v_and_b32 v16, 7, v0'); a(f'v_add_u32 v16, s{sG1}, v16')
        a(f'v_cmp_gt_u32 s[40:41], 64, v16')
        a(f'v_min_u32 v16, 63, v16'); a('v_lshlrev_b32 v16, 7, v16')
        a(f'v_add_u32 v16, {FL_H2D}, v16')
        a(f'global_load_dword v17, v16, s[{sFl}:{sFl+1}] sc1')
        a('s_waitcnt vmcnt(0)')
        a('v_cmp_le_u32 vcc, 32, v17')
        a('s_and_b32 s40, s40, vcc_lo')
        a('s_and_b32 s40, s40, 0xff')
        a('s_not_b32 s40, s40')
        a('s_ff1_i32_b32 s42, s40')
        if blocking:
            Lgo = a.uid('g1go')
            a('s_cmp_lg_u32 s42, 0'); a(f's_cbranch_scc1 {Lgo}')
            a('s_sleep 1'); a(f's_sub_u32 s{sLim}, s{sLim}, 1'); a(f's_cbranch_scc0 {Lp}'); a('s_branch L_err')
            a(f'{Lgo}:')
        a('v_mov_b32 v16, s42'); a(f'v_mov_b32 v17, {LN}')
        a('ds_write_b32 v17, v16'); a('s_waitcnt lgkmcnt(0)')
        a(f'{Lw}:')
        a('s_barrier')
        a(f'v_mov_b32 v17, {LN}'); a('ds_read_b32 v16, v17'); a('s_waitcnt lgkmcnt(0)')
        a('v_readfirstlane_b32 s42, v16')
        a('s_barrier')
        a('s_cmp_eq_u32 s42, 0'); a(f's_cbranch_scc1 {Lx}')
        Ld = a.uid('g1d'); Lm = a.uid('g1m')
        a('s_mov_b32 s43, 0'); a('s_mov_b32 s44, s25')
        a(f'{Ld}:')
        a('s_mov_b32 m0, s44')
        a(f'global_load_lds_dwordx4 v{vDm}, s[22:23] sc1')
        add64(a, 22, 22, 's24')
        a('s_add_u32 s44, s44, 8192'); a('s_add_u32 s43, s43, 1'); a('s_cmp_lt_u32 s43, s42'); a(f's_cbranch_scc1 {Ld}')
        a('s_waitcnt vmcnt(0)'); a('s_barrier')
        a(f'v_mov_b32 v16, v{vTA}'); a(f'v_mov_b32 v17, v{vTB}'); a('s_mov_b32 s43, 0')
        a(f'{Lm}:')
        for j in range(2):
            a(f'ds_read_b64_tr_b16 {vr(20+2*j,2)}, v16 offset:{j*512}')
            a(f'ds_read_b64_tr_b16 {vr(24+2*j,2)}, v17 offset:{j*512}')
        a('v_add_u32 v16, 8192, v16'); a('v_add_u32 v17, 8192, v17')
        a('s_waitcnt lgkmcnt(0)')
        a(f'v_mfma_f32_32x32x16_bf16 {ar(64,16)}, {vr(20,4)}, {vr(24,4)}, {ar(64,16)}')
        a('s_add_u32 s43, s43, 1'); a('s_cmp_lt_u32 s43, s42'); a(f's_cbranch_scc1 {Lm}')
        a(f's_add_u32 s{sG1}, s{sG1}, s42')
        a(f'{Lx}:')

    a('L_att_loop:')
    def polls():
        a(f's_lshl_b32 s40, s{sSeg}, 7'); a(f's_lshl_b32 s41, s{sH}, 2'); a('s_add_u32 s40, s40, s41')
        wave_poll(a, sFl, 's40', 'eq', 0x204, 'L_err', vt=16)
        a(f's_lshl_b32 s40, s{sH}, 7'); a(f's_add_u32 s40, s40, {FL_PROG}')
        wave_poll(a, sFl, 's40', 'lt', f's{sSeg}', 'L_err', vt=16, sleep=psleep)
    wg_wait(a, polls, 'L_err')
    stamp(a, 8, stamps)
    A_.task(sSeg)
    stamp(a, 9, stamps)
    a(f's_lshl_b32 s26, s{sSeg}, 7'); a(f's_add_u32 s26, s26, {FL_ATTD}')
    wg_signal(a, sFl, 's26', 1)
    stamp(a, 10, stamps)
    a(f's_cmp_ge_u32 s{sSeg}, 57'); a('s_cbranch_scc1 L_skip_g1')
    g1_batch(False)
    a('L_skip_g1:')
    wg_wait(a, lambda: wave_poll(a, sFl, 's26', 'le', 32, 'L_err', vt=16, sleep=1), 'L_err')
    stamp(a, 11, stamps)
    emit_red_row(a, sSeg, sH)
    stamp(a, 12, stamps)
    a(f's_add_u32 s{sSeg}, s{sSeg}, 7')
    a(f's_cmp_lt_u32 s{sSeg}, 64'); a('s_cbranch_scc1 L_att_loop')
    a('L_g1_tail:')
    g1_batch(True)
    a(f's_cmp_lt_u32 s{sG1}, 64'); a('s_cbranch_scc1 L_g1_tail')
    stamp(a, 3, stamps)
    D, FA, FB, t = 16, 32, 48, 6
    a.fence(12)
    for i in range(16): a(f'v_accvgpr_read_b32 v{D+i}, a{64+i}')
    a(f'v_lshrrev_b32 v{t+2}, 5, v0'); a(f'v_lshlrev_b32 v{t+2}, 5, v{t+2}')
    a(f's_lshr_b32 s40, s{sTile}, 1'); a('s_lshl_b32 s40, s40, 6'); a(f's_lshl_b32 s41, s{sFt}, 7'); a('s_add_u32 s40, s40, s41')
    a(f'v_add_u32 v{t+2}, s40, v{t+2}')
    a(f'global_load_dwordx4 {vr(FB,4)}, v{t+2}, s[10:11]')
    a(f'global_load_dwordx4 {vr(FB+4,4)}, v{t+2}, s[10:11] offset:16')
    mlp.combine_halves(a, D, sKh, sTile, t, 0)
    a(f's_cmp_lg_u32 s{sKh}, 0'); a('s_cbranch_scc1 L_gelu_done')
    for i in range(4): a(f'ds_read_b128 {vr(FA+4*i,4)}, v{t} offset:{1024*i}')
    mlp.gelu_store(a, D, FA, FB, t, sDt, sTile, sWsP, SC, frag=True)
    a('L_gelu_done:')
    a(f's_lshl_b32 s26, s{sDt}, 7'); a(f's_add_u32 s26, s26, {FL_GD}')
    wg_signal(a, sFl, 's26', 1)
    a('L_g2:')
    emit_g2(a, stamps)
    a('s_branch L_end')
    a('L_head:')
    emit_head(a, recopt, stamps)
    a('L_err:')
    a('s_mov_b64 exec, -1')
    a('v_mov_b32 v11, 40'); a('v_mov_b32 v12, 1')
    a(f'global_atomic_add v11, v12, s[{sDbgP}:{sDbgP+1}] sc1')
    a('L_end:')
    a('s_endpgm')
    a.raw(kernel_desc(KNAME, vgpr=256, accum=128))
    return a.text()

def emit_red_row(a, sSeg, sH):
    L16, t, m, r = 1, 8, 9, 10
    P, ACC, XR, MD = 16, 80, 88, 96
    RL = 16384
    a(f's_load_dwordx2 s[46:47], s[0:1], {KA["x"]}')
    a(f's_lshl_b32 s41, s{sSeg}, 20')
    a(f's_lshl_b32 s43, s{sWave}, 17'); a('s_add_u32 s41, s41, s43')
    a(f's_lshl_b32 s43, s{sH}, 10'); a('s_add_u32 s41, s41, s43')
    a(f's_add_u32 s41, s41, {WS_ATTP}')
    add64(a, 44, sWsP, 's41')
    for i in range(4):
        a(f'global_load_dwordx4 {vr(P+4*i,4)}, v{L16}, s[44:45] sc1')
        if i < 3: add64(a, 44, 44, 32768)
    a(f's_lshl_b32 s41, s{sSeg}, 15'); a('s_add_u32 s41, s41, s43')
    a(f'v_add_u32 v11, s41, v{L16}')
    a('s_waitcnt lgkmcnt(0)')
    a(f'global_load_dwordx4 {vr(XR,4)}, v11, s[46:47]')
    add64(a, 44, sWsP, WS_MOD + 4096 + 2048)
    a(f'v_lshlrev_b32 v{t}, 5, v0')
    for k, off in enumerate((-2048, 0, 2048)):
        a(f'global_load_dwordx4 {vr(MD+8*k,4)}, v{t}, s[44:45] offset:{off} sc1')
        a(f'global_load_dwordx4 {vr(MD+8*k+4,4)}, v{t}, s[44:45] offset:{off+16} sc1')
    a('s_mov_b32 s46, 0x00003f80'); a('s_mov_b32 s47, 0x3f800000')
    for i in range(8): a(f'v_mov_b32 v{ACC+i}, 0')
    for i in range(4):
        a(f's_waitcnt vmcnt({3 - i + 7})')
        for d in range(4):
            a(f'v_dot2_f32_bf16 v{ACC+2*d}, v{P+4*i+d}, s46, v{ACC+2*d}')
            a(f'v_dot2_f32_bf16 v{ACC+2*d+1}, v{P+4*i+d}, s47, v{ACC+2*d+1}')
    a(f's_lshl_b32 s41, s{sWave}, 11')
    a(f'v_add_u32 v{t}, s41, v{L16}')
    a.fence(3)
    a(f'ds_write_b128 v{t}, {vr(ACC,4)} offset:{RL}')
    a(f'ds_write_b128 v{t}, {vr(ACC+4,4)} offset:{RL+1024}')
    a('s_waitcnt lgkmcnt(0)')
    a('s_barrier')
    Lend = a.uid('redr_end')
    a(f's_cmp_lg_u32 s{sWave}, 0'); a(f's_cbranch_scc1 {Lend}')
    for w in range(1, 8):
        a(f'ds_read_b128 {vr(P+8*(w-1),4)}, v{L16} offset:{RL + 2048*w}')
        a(f'ds_read_b128 {vr(P+8*(w-1)+4,4)}, v{L16} offset:{RL + 2048*w + 1024}')
    X = 72
    a('s_waitcnt vmcnt(0)')
    unpack8(a, XR, X)
    for w in range(1, 8):
        a(f's_waitcnt lgkmcnt({2*(7-w)})')
        for i in range(8): a(f'v_add_f32 v{ACC+i}, v{ACC+i}, v{P+8*(w-1)+i}')
    for i in range(8): a(f'v_fmac_f32 v{X+i}, v{ACC+i}, v{MD+i}')
    for i in range(4): a(f'v_cvt_pk_bf16_f32 v{XR+i}, v{X+2*i}, v{X+2*i+1}')
    add64(a, 44, sWsP, WS_X1)
    a(f'global_store_dwordx4 v11, {vr(XR,4)}, s[44:45] sc1')
    unpack8(a, XR, X)
    ln_stats(a, X, m, r, t)
    for i in range(8):
        a(f'v_add_f32 v{MD+16+i}, 1.0, v{MD+16+i}')
        a(f'v_fma_f32 v{X+i}, v{X+i}, v{MD+16+i}, v{MD+8+i}')
    ln_stats(a, X, m, r, t)
    for i in range(4): a(f'v_cvt_pk_bf16_f32 v{P+i}, v{X+2*i}, v{X+2*i+1}')
    add64(a, 44, sWsP, WS_H2)
    a(f'global_store_dwordx4 v11, {vr(P,4)}, s[44:45] sc1')
    a(f's_lshl_b32 s41, s{sSeg}, 7'); a(f's_add_u32 s41, s41, {FL_H2D}')
    a('s_waitcnt vmcnt(0)')
    signal(a, sFl, 's41', 1, vt=16)
    a(f'{Lend}:')

def emit_g2(a, stamps):
    a(f's_load_dwordx4 s[4:7], s[0:1], {KA["w2"]}')
    a(f's_load_dwordx2 s[8:9], s[0:1], {KA["out"]}')
    sSt, sDt, sKh, sTile = 13, 14, 15, 16
    a(f's_lshr_b32 s{sSt}, s{sWid}, 3'); a(f's_and_b32 s{sDt}, s{sWid}, 7')
    a(f's_lshr_b32 s{sKh}, s{sWave}, 2'); a(f's_and_b32 s{sTile}, s{sWave}, 3')
    vDW, vG, vTB, t = 1, 2, 4, 6
    mlp.dma_lane(a, vDW, t, 4096)
    mlp.tr_lane_base(a, vTB, t, False)
    a(f's_and_b32 s40, s{sTile}, 1'); a('s_lshl_b32 s40, s40, 6')
    a(f'v_xor_b32 v{vTB}, s40, v{vTB}')
    a(f's_lshl_b32 s40, s{sKh}, 11')
    a(f'v_add_u32 v{vTB}, s40, v{vTB}')
    a(f's_lshr_b32 s40, s{sTile}, 1'); a(f's_lshl_b32 s41, s{sDt}, 1'); a('s_add_u32 s40, s40, s41')
    a(f's_mul_i32 s40, s40, {112*1024}'); a(f's_lshl_b32 s41, s{sKh}, 10'); a('s_add_u32 s40, s40, s41')
    a(f'v_lshlrev_b32 v{vG}, 4, v0'); a(f'v_add_u32 v{vG}, s40, v{vG}')
    add64(a, 22, sWsP, WS_G)
    a('s_waitcnt lgkmcnt(0)')
    a(f's_lshl_b32 s40, s{sWave}, 17'); a(f's_lshl_b32 s41, s{sSt}, 7'); a('s_add_u32 s40, s40, s41')
    add64(a, 20, 4, 's40')
    a(f's_lshl_b32 s24, s{sWave}, 12')
    NB = 4
    def dmaw(c):
        b = (c % NB) * 32768
        for i in range(4):
            a(f's_add_u32 m0, s24, {b + i*1024}')
            a(f'global_load_lds_dwordx4 v{vDW}, s[20:21]')
            add64(a, 20, 20, 8 * 4096 if i < 3 else (256 - 24) * 4096)
    def ldg(c):
        for i in range(8):
            a(f'global_load_dwordx4 {ar((c % NB) * 32 + 4*i, 4)}, v{vG}, s[22:23] offset:{(i & 1) * 2048} sc1')
            if i & 1: add64(a, 22, 22, 4096)
    a('s_barrier')
    for c in range(NB): dmaw(c)
    a(f's_lshl_b32 s26, s{sDt}, 7'); a(f's_add_u32 s26, s26, {FL_GD}')
    wg_wait(a, lambda: wave_poll(a, sFl, 's26', 'le', 28, 'L_err', vt=16, sleep=1), 'L_err')
    stamp(a, 4, stamps)
    for c in range(NB): ldg(c)
    D, FB = 16, 32
    for c in range(7):
        if c < 4: younger = 8 * (3 - c) + 12 * min(max(c - 1, 0), 3) + (12 if c >= 1 else 0) * 0
        order = []
        for cc in range(4): order += [('g', cc)] * 8
        for cc in range(c):
            if cc + 4 < 7 and cc >= 0: order += [('w', cc + 4)] * 4 + [('g', cc + 4)] * 8
        last = max(i for i, o in enumerate(order) if o[1] == c)
        a(f's_waitcnt vmcnt({min(63, len(order) - 1 - last)})')
        a('s_barrier')
        b = (c % NB) * 32768
        a(f'v_add_u32 v{t}, {b}, v{vTB}')
        for i in range(8):
            for j in range(2):
                a(f'ds_read_b64_tr_b16 {vr(FB+4*i+2*j,2)}, v{t} offset:{i*4096 + j*512}')
        for i in range(8):
            a(f's_waitcnt lgkmcnt({min(15, 14 - 2*i)})')
            a(f'v_mfma_f32_32x32x16_bf16 {vr(D,16)}, {ar((c % NB)*32 + 4*i,4)}, {vr(FB+4*i,4)}, {"0" if (c == 0 and i == 0) else vr(D,16)}')
        if c + 4 < 7:
            a('s_barrier')
            dmaw(c + 4); ldg(c + 4)
    mlp.combine_halves(a, D, sKh, sTile, t, 0)
    a(f's_cmp_lg_u32 s{sKh}, 0'); a('s_cbranch_scc1 L_end')
    FA = 32
    for i in range(4): a(f'ds_read_b128 {vr(FA+4*i,4)}, v{t} offset:{1024*i}')
    mlp.g2_epilogue(a, D, FA, t, sSt, sDt, sTile, 6, 8, sWsP, SC)
    stamp(a, 5, stamps)

def emit_head(a, opt, stamps):
    R = rec5
    a(f's_load_dwordx4 s[{R.sWq}:{R.sWq+3}], s[0:1], {KA["Wq"]}')
    a(f's_load_dwordx4 s[{R.sWv}:{R.sWv+3}], s[0:1], {KA["Wv"]}')
    a(f's_load_dwordx2 s[{R.sM0in}:{R.sM0in+1}], s[0:1], {KA["mem0"]}')
    a(f's_mov_b64 s[{R.sDbg}:{R.sDbg+1}], s[{sDbgP}:{sDbgP+1}]')
    a(f's_mov_b64 s[{R.sWs}:{R.sWs+1}], s[{sWsP}:{sWsP+1}]')
    a(f's_mov_b32 s{R.sH}, s{sWid}'); a(f's_mov_b32 s{R.sWv8}, s{sWave}')
    a(f's_add_u32 s{sWid}, s{sWid}, 224')
    a('s_waitcnt lgkmcnt(0)')
    a('s_barrier')
    R.emit_rec_setup(a, SC)
    R.emit_heads_barrier(a, 'L_err')
    stamp(a, 1, stamps)
    a(f's_lshl_b32 s62, s{R.sH}, 2')
    def polls():
        wave_poll(a, sDbgP, 44, 'le', 48, 'L_err', vt=11, sleep=1)
        wave_poll(a, sFl, 's62', 'eq', 4, 'L_err', vt=11, mask=0xff, sleep=1)
        a('s_add_u32 s63, s62, 128')
        wave_poll(a, sFl, 's63', 'eq', 4, 'L_err', vt=11, mask=0xff, sleep=1)
    wg_wait(a, polls, 'L_err')
    stamp(a, 2, stamps)
    a('v_mov_b32 v11, 0')
    a(f'global_load_dword v12, v11, s[{sDbgP}:{sDbgP+1}] sc1')
    a('s_waitcnt vmcnt(0)')
    a('v_readfirstlane_b32 s63, v12')
    a(f's_mov_b32 s{R.sS}, 0')
    o = dict(opt); o['mega'] = dict(sFl=sFl, sCnt=62)
    a('s_cmp_lt_u32 s63, 32'); a('s_cbranch_scc1 L_slow')
    for fast in (True, False):
        tag = 'f' if fast else 's'
        if not fast: a('L_slow:')
        a(f's_cmp_lg_u32 s{R.sRole}, 0'); a(f's_cbranch_scc1 L_roleB_{tag}')
        R.emit_loop_A(a, 'L_err', 'L_rec_done', fast, False, False, o)
        a(f'L_roleB_{tag}:')
        R.emit_loop_B(a, 'L_err', 'L_rec_done', fast, False, False, o)
    a('L_rec_done:')
    a('s_setprio 0')
    a('s_waitcnt vmcnt(0) lgkmcnt(0)')
    a('s_barrier')
    L = a.uid('fin')
    a(f's_cmp_lg_u32 s{sWave}, 0'); a(f's_cbranch_scc1 {L}')
    a(f's_lshl_b32 s40, s{R.sH}, 7'); a(f's_add_u32 s40, s40, {FL_PROG}')
    a('v_mov_b32 v11, s40'); a('v_mov_b32 v12, 64')
    a(f'global_store_dword v11, v12, s[{sFl}:{sFl+1}] sc1')
    a(f'{L}:')
    stamp(a, 3, stamps)
    a('v_mbcnt_lo_u32_b32 v0, -1, 0'); a('v_mbcnt_hi_u32_b32 v0, -1, v0')
    a('s_branch L_g2')

if __name__ == '__main__':
    open('mega.s', 'w').write(build())
    open('mega_st.s', 'w').write(build(stamps=True))
    open('mega_st2.s', 'w').write(build(stamps=True, psleep=32))
```

```python
from asmlib import *
from layout import *
from pre import add64, header, f2u, LOG2E, unpack8, ln_stats, round_bf16
QSCALE = (128 ** -0.5) * LOG2E
OROW = 272

def mf(a, d, A, B, C):
    a(f'v_mfma_f32_16x16x32_bf16 {vr(d,4)}, {vr(A,4)}, {vr(B,4)}, {C if isinstance(C,str) else vr(C,4)}')
def mf16(a, d, A, B, C):
    a(f'v_mfma_f32_16x16x16_bf16 {vr(d,4)}, {vr(A,2)}, {vr(B,2)}, {vr(C,4)}')

class ATT:
    def __init__(self, a, sWo, sWs, sWave, sH, st='', ld=''):
        self.a = a; self.sWo, self.sWs, self.sWave, self.sH = sWo, sWs, sWave, sH
        self.st, self.ld = st, ld
        self.wide = False; self.mid = None
        self.vL16, self.vKm, self.vVm, self.vDl, self.vOW, self.vOR, self.vSt, self.vT = 1, 2, 3, 4, 5, 6, 7, 8
        self.sB, self.sT, self.sQs = 40, 46, 50
    def setup(self):
        a = self.a; t = self.vT; T = self.sT
        a(f'v_lshlrev_b32 v{self.vL16}, 4, v0')
        a(f's_lshl_b32 s{T}, s{self.sH}, 17')
        a(f's_lshl_b32 s{T+1}, s{self.sWave}, 14')
        a(f's_add_u32 s{T}, s{T}, s{T+1}')
        add64(a, self.sB, self.sWo, f's{T}')
        for i in range(16):
            if i % 4 == 0:
                a(f's_add_u32 m0, s{T+1}, {i*1024}')
                if i: add64(a, self.sB, self.sB, 4096)
            a(f'global_load_lds_dwordx4 v{self.vL16}, s[{self.sB}:{self.sB+1}] offset:{(i%4)*1024}')
        n, g = t + 2, t + 3
        a(f'v_and_b32 v{n}, 15, v0'); a(f'v_lshrrev_b32 v{g}, 4, v0')
        a(f'v_lshrrev_b32 v{t}, 2, v{n}'); a(f'v_and_b32 v{t+1}, 1, v{n}')
        a(f'v_lshl_add_u32 v{t}, v{t}, 1, v{t+1}'); a(f'v_lshlrev_b32 v{t}, 8, v{t}')
        a(f'v_lshl_add_u32 v{self.vKm}, v{g}, 4, v{t}')
        a(f's_and_b32 s{T}, s{self.sWave}, 3')
        a(f's_lshl_b32 s{T+1}, s{T}, 9')
        a(f'v_lshlrev_b32 v{t}, 4, v{n}'); a(f'v_lshl_add_u32 v{t}, v{g}, 2, v{t}')
        a(f'v_add_u32 v{self.vVm}, s{T+1}, v{t}')
        a(f's_lshr_b32 s{T+2}, s{self.sWave}, 2')
        a(f's_lshl_b32 s{T+1}, s{T+2}, 4')
        a(f'v_lshlrev_b32 v{t}, 2, v{g}'); a(f'v_sub_u32 v{t}, v{n}, v{t}')
        a(f'v_add_u32 v{self.vDl}, s{T+1}, v{t}')
        a(f'v_add_u32 v{t}, s{T+1}, v{n}'); a(f'v_mul_u32_u24 v{t}, {OROW}, v{t}')
        a(f'v_lshl_add_u32 v{t}, v{g}, 4, v{t}')
        a(f's_lshl_b32 s{T+1}, s{T}, 6')
        a(f'v_add_u32 v{self.vOW}, s{T+1}, v{t}')
        a(f'v_and_b32 v{t}, 31, v0'); a(f'v_mul_u32_u24 v{t+1}, {OROW}, v{t}')
        a(f'v_lshrrev_b32 v{n}, 5, v0')
        a(f'v_lshl_add_u32 v{self.vOR}, v{n}, 4, v{t+1}')
        a(f'v_lshlrev_b32 v{t}, 10, v{t}'); a(f'v_lshl_add_u32 v{t}, v{n}, 5, v{t}')
        a(f's_lshl_b32 s{T+1}, s{self.sWave}, 7')
        a(f'v_add_u32 v{self.vSt}, s{T+1}, v{t}')
        a(f'v_bfe_u32 v{t}, v0, 2, 2'); a(f'v_lshl_add_u32 v{t}, v{n}, 2, v{t}'); a(f'v_lshlrev_b32 v{t}, 10, v{t}')
        a(f'v_and_b32 v{t+1}, 1, v0'); a(f'v_lshl_add_u32 v{t}, v{t+1}, 5, v{t}')
        a(f'v_bfe_u32 v{t+1}, v0, 4, 1'); a(f'v_lshl_add_u32 v{t}, v{t+1}, 4, v{t}')
        a(f'v_bfe_u32 v{t+1}, v0, 1, 1'); a(f'v_lshl_add_u32 v{t}, v{t+1}, 3, v{t}')
        a(f'v_add_u32 v{t}, s{T+1}, v{t}')
        a(f'v_add_u32 v{t+1}, 0x10000, v{t}')
        a(f's_mov_b32 s{self.sQs}, {hex(f2u(QSCALE))}')
        a('s_waitcnt vmcnt(0)')
        a('s_barrier')
        for mt in range(2):
            for ks in range(8):
                for j in range(2):
                    imm = (32 * ((ks >> 1) & 1) + 8 * (ks & 1) + 16 * j) * 1024 + 64 * mt
                    a(f'ds_read_b64_tr_b16 {ar((mt*8+ks)*4 + 2*j, 2)}, v{t + (ks >> 2)} offset:{imm}')
                if ks % 4 == 3: a('s_waitcnt lgkmcnt(0)')
        a('s_barrier')
    def task(self, sSeg):
        a = self.a; T = self.sT; ld = self.ld
        QB, KX, KM, VX, VM = 16, 32, 64, 80, 88
        S0, S1, SM, O, LS, ONE, PM = 92, 96, 100, 104, 112, 116, 120
        a(f's_lshl_b32 s{T}, s{sSeg}, 5')
        a(f's_add_u32 s{T}, s{T}, s{self.sH}')
        a(f's_lshl_b32 s{T+1}, s{T}, 13')
        a(f's_add_u32 s{T+2}, s{T+1}, {WS_K + 4096}')
        add64(a, self.sB, self.sWs, f's{T+2}')
        for f in range(8): a(f'global_load_dwordx4 {vr(KX+4*f,4)}, v{self.vL16}, s[{self.sB}:{self.sB+1}] offset:{f*1024-4096}{ld}')
        a(f's_lshr_b32 s{T+2}, s{self.sWave}, 2')
        a(f's_lshl_b32 s{T+2}, s{T+2}, 12')
        a(f's_add_u32 s{T+2}, s{T+2}, s{T+1}')
        a(f's_add_u32 s{T+2}, s{T+2}, {WS_Q}')
        add64(a, self.sB, self.sWs, f's{T+2}')
        for kk in range(4): a(f'global_load_dwordx4 {vr(QB+4*kk,4)}, v{self.vL16}, s[{self.sB}:{self.sB+1}] offset:{kk*1024}{ld}')
        a(f's_and_b32 s{T+2}, s{self.sWave}, 3')
        a(f's_lshl_b32 s{T+2}, s{T+2}, 11')
        a(f's_add_u32 s{T+2}, s{T+2}, s{T+1}')
        a(f's_add_u32 s{T+2}, s{T+2}, {WS_V}')
        add64(a, self.sB, self.sWs, f's{T+2}')
        for tau in range(2): a(f'global_load_dwordx4 {vr(VX+4*tau,4)}, v{self.vL16}, s[{self.sB}:{self.sB+1}] offset:{tau*1024}{ld}')
        if self.mid is None: self._mem_loads(KM, VM)
        a(f'v_mov_b32 v{VM+1}, 0'); a(f'v_mov_b32 v{VM+3}, 0'); a(f'v_mov_b32 v{PM+1}, 0')
        for i in range(4): a(f'v_mov_b32 v{ONE+i}, 0x3f803f80')
        a(f's_waitcnt vmcnt({8 if self.mid is None else 2})')
        for kk in range(4):
            mf(a, S0, KX + 4 * kk, QB + 4 * kk, '0' if kk == 0 else S0)
            mf(a, S1, KX + 16 + 4 * kk, QB + 4 * kk, '0' if kk == 0 else S1)
        if self.mid is not None:
            self.mid()
            self._mem_loads(KM, VM)
        a('s_waitcnt vmcnt(2)')
        for kk in range(4): mf(a, SM, KM + 4 * kk, QB + 4 * kk, '0' if kk == 0 else SM)
        mx, t = self.vT, self.vT + 1
        a(f'v_mov_b32 v{t+1}, 0xff800000')
        SX = [S0 + i for i in range(4)] + [S1 + i for i in range(4)]
        for i in range(8):
            a(f'v_cmp_le_i32 vcc, {16*(i>>2) + (i&3)}, v{self.vDl}')
            a(f'v_cndmask_b32 v{SX[i]}, v{t+1}, v{SX[i]}, vcc')
        a(f'v_max3_f32 v{mx}, v{SX[0]}, v{SX[1]}, v{SX[2]}')
        a(f'v_max3_f32 v{t}, v{SX[3]}, v{SX[4]}, v{SX[5]}')
        a(f'v_max3_f32 v{mx}, v{mx}, v{SX[6]}, v{SX[7]}')
        a(f'v_max3_f32 v{t}, v{t}, v{SM}, v{SM+1}')
        a(f'v_max_f32 v{mx}, v{mx}, v{t}')
        a(f'v_mov_b32 v{t}, v{mx}'); a(f'v_permlane32_swap_b32 v{mx}, v{t}'); a(f'v_max_f32 v{mx}, v{mx}, v{t}')
        a(f'v_mov_b32 v{t}, v{mx}'); a(f'v_permlane16_swap_b32 v{mx}, v{t}'); a(f'v_max_f32 v{mx}, v{mx}, v{t}')
        a(f'v_mul_f32 v{mx}, s{self.sQs}, v{mx}')
        for r in SX + [SM, SM + 1]:
            a(f'v_fma_f32 v{r}, v{r}, s{self.sQs}, -v{mx}')
            a(f'v_exp_f32 v{r}, v{r}')
        PX = S0
        for i in range(4): a(f'v_cvt_pk_bf16_f32 v{PX+i}, v{SX[2*i]}, v{SX[2*i+1]}')
        a(f'v_cvt_pk_bf16_f32 v{PM}, v{SM}, v{SM+1}')
        a('s_waitcnt vmcnt(0)')
        mf(a, LS, ONE, PX, '0'); mf(a, O, VX, PX, '0'); mf(a, O + 4, VX + 4, PX, '0')
        mf16(a, LS, ONE, PM, LS); mf16(a, O, VM, PM, O); mf16(a, O + 4, VM + 2, PM, O + 4)
        a(f'v_rcp_f32 v{t}, v{LS}')
        for i in range(8): a(f'v_mul_f32 v{O+i}, v{O+i}, v{t}')
        for i in range(4): a(f'v_cvt_pk_bf16_f32 v{S1+i}, v{O+2*i}, v{O+2*i+1}')
        a('s_barrier')
        a(f'ds_write_b128 v{self.vOW}, {vr(S1,4)}')
        a('s_waitcnt lgkmcnt(0)')
        a('s_barrier')
        OF = 16
        for ks in range(8): a(f'ds_read_b128 {vr(OF+4*ks,4)}, v{self.vOR} offset:{ks*32}')
        D = 48
        for ks in range(8):
            a(f's_waitcnt lgkmcnt({7-ks})')
            for mt in range(2):
                a(f'v_mfma_f32_32x32x16_bf16 {vr(D+16*mt,16)}, {ar((mt*8+ks)*4,4)}, {vr(OF+4*ks,4)}, {"0" if ks == 0 else vr(D+16*mt,16)}')
        a(f's_lshl_b32 s{T+1}, s{T}, 15')
        a(f's_add_u32 s{T+1}, s{T+1}, {WS_ATTP}')
        add64(a, self.sB, self.sWs, f's{T+1}')
        P = 80
        PL = 98304
        if self.wide:
            tt = self.vT
            a(f'v_lshrrev_b32 v{tt}, 10, v{self.vSt}'); a(f'v_lshlrev_b32 v{tt}, 4, v{tt}'); a(f'v_add_u32 v{tt}, v{tt}, v{self.vSt}')
            a(f'v_add_u32 v{tt}, {PL}, v{tt}')
            for mt in range(2):
                for i in range(8): a(f'v_cvt_pk_bf16_f32 v{P+8*mt+i}, v{D+16*mt+2*i}, v{D+16*mt+2*i+1}')
                a(f'ds_write_b128 v{tt}, {vr(P+8*mt,4)} offset:{64*mt}')
                a(f'ds_write_b128 v{tt}, {vr(P+8*mt+4,4)} offset:{64*mt+16}')
            a(f's_mul_i32 s{T+1}, s{self.sWave}, {4*1040}'); a(f's_add_u32 s{T+1}, s{T+1}, {PL}')
            a(f'v_add_u32 v{tt}, s{T+1}, v{self.vL16}')
            a(f's_lshl_b32 s{T+1}, s{self.sWave}, 12')
            a(f'v_add_u32 v{tt+1}, s{T+1}, v{self.vL16}')
            a('s_waitcnt lgkmcnt(0)'); a('s_barrier')
            for i in range(4): a(f'ds_read_b128 {vr(P+4*i,4)}, v{tt} offset:{1040*i}')
            for i in range(4):
                a(f's_waitcnt lgkmcnt({3-i})')
                a(f'global_store_dwordx4 v{tt+1}, {vr(P+4*i,4)}, s[{self.sB}:{self.sB+1}] offset:{1024*i}{self.st}')
            return
        for mt in range(2):
            for i in range(8): a(f'v_cvt_pk_bf16_f32 v{P+8*mt+i}, v{D+16*mt+2*i}, v{D+16*mt+2*i+1}')
            a(f'global_store_dwordx4 v{self.vSt}, {vr(P+8*mt,4)}, s[{self.sB}:{self.sB+1}] offset:{64*mt}{self.st}')
            a(f'global_store_dwordx4 v{self.vSt}, {vr(P+8*mt+4,4)}, s[{self.sB}:{self.sB+1}] offset:{64*mt+16}{self.st}')
    def _mem_loads(self, KM, VM):
        a = self.a; T = self.sT; ld = self.ld
        a(f's_lshl_b32 s{T+2}, s{T}, 11')
        a(f's_add_u32 s{T+3}, s{T+2}, {WS_KM}')
        add64(a, self.sB, self.sWs, f's{T+3}')
        for kk in range(4): a(f'global_load_dwordx4 {vr(KM+4*kk,4)}, v{self.vKm}, s[{self.sB}:{self.sB+1}] offset:{kk*64}{ld}')
        a(f's_add_u32 s{T+3}, s{T+2}, {WS_VM}')
        add64(a, self.sB, self.sWs, f's{T+3}')
        for tau in range(2): a(f'global_load_dword v{VM+2*tau}, v{self.vVm}, s[{self.sB}:{self.sB+1}] offset:{tau*256}{ld}')

def build_att_kernel(a):
    header(a, 'att_kernel')
    a('s_cmp_ge_u32 s2, 256'); a('s_cbranch_scc1 L_att_end')
    a(f's_load_dwordx2 s[4:5], s[0:1], {KA["Wo"]}')
    a(f's_load_dwordx2 s[10:11], s[0:1], {KA["ws"]}')
    a('v_lshrrev_b32 v1, 6, v0'); a('v_and_b32 v0, 63, v0'); a('v_readfirstlane_b32 s12, v1')
    a('s_and_b32 s13, s2, 31')
    a('s_lshr_b32 s14, s2, 5')
    a('s_waitcnt lgkmcnt(0)')
    g = ATT(a, 4, 10, 12, 13)
    g.setup()
    a('L_att_loop:')
    g.task(14)
    a('s_add_u32 s14, s14, 8')
    a('s_cmp_lt_u32 s14, 64')
    a.fence(4)
    a('s_cbranch_scc1 L_att_loop')
    a('L_att_end:'); a('s_endpgm')
    a.raw(kernel_desc('att_kernel', vgpr=256, accum=128))

def emit_red_task(a, sRow4, sWave, sX, sWs, st='', ld='', lds=0):
    L16, t, m, r = 1, 2, 3, 4
    P, ACC, XR, MD = 16, 80, 88, 96
    a(f'v_lshlrev_b32 v{L16}, 4, v0')
    a(f's_lshr_b32 s40, s{sWave}, 1')
    a(f's_lshl_b32 s41, s{sRow4}, 2')
    a(f's_add_u32 s40, s40, s41')
    a(f's_lshr_b32 s41, s40, 5')
    a(f's_lshl_b32 s41, s41, 20')
    a(f's_and_b32 s42, s{sWave}, 1')
    a(f's_lshl_b32 s43, s42, 19')
    a(f's_add_u32 s41, s41, s43')
    a(f's_and_b32 s43, s40, 31')
    a(f's_lshl_b32 s43, s43, 10')
    a(f's_add_u32 s41, s41, s43')
    a(f's_add_u32 s41, s41, {WS_ATTP}')
    add64(a, 44, sWs, 's41')
    for i in range(16):
        a(f'global_load_dwordx4 {vr(P+4*i,4)}, v{L16}, s[44:45]{ld}')
        if i < 15: add64(a, 44, 44, 32768)
    a(f's_lshl_b32 s41, s40, 10')
    a(f'v_add_u32 v5, s41, v{L16}')
    a(f'global_load_dwordx4 {vr(XR,4)}, v5, s[{sX}:{sX+1}]')
    add64(a, 44, sWs, WS_MOD + 4096 + 2048)
    a(f'v_lshlrev_b32 v{t}, 5, v0')
    for k, off in enumerate((-2048, 0, 2048)):
        a(f'global_load_dwordx4 {vr(MD+8*k,4)}, v{t}, s[44:45] offset:{off}{ld}')
        a(f'global_load_dwordx4 {vr(MD+8*k+4,4)}, v{t}, s[44:45] offset:{off+16}{ld}')
    a('s_mov_b32 s46, 0x00003f80')
    a('s_mov_b32 s47, 0x3f800000')
    for i in range(8): a(f'v_mov_b32 v{ACC+i}, 0')
    for i in range(16):
        a(f's_waitcnt vmcnt({15 - i + 7})')
        for d in range(4):
            a(f'v_dot2_f32_bf16 v{ACC+2*d}, v{P+4*i+d}, s46, v{ACC+2*d}')
            a(f'v_dot2_f32_bf16 v{ACC+2*d+1}, v{P+4*i+d}, s47, v{ACC+2*d+1}')
    a(f's_lshr_b32 s41, s{sWave}, 1')
    a(f's_lshl_b32 s41, s41, 11')
    a(f'v_add_u32 v{t}, s41, v{L16}')
    Lodd = a.uid('red_odd'); Lend = a.uid('red_end')
    a(f's_cmp_eq_u32 s42, 0')
    a(f's_cbranch_scc1 {Lodd}_skip')
    a.fence(3)
    a(f'ds_write_b128 v{t}, {vr(ACC,4)} offset:{lds}')
    a(f'ds_write_b128 v{t}, {vr(ACC+4,4)} offset:{lds+1024}')
    a('s_waitcnt lgkmcnt(0)')
    a(f'{Lodd}_skip:')
    a('s_barrier')
    a(f's_cmp_lg_u32 s42, 0')
    a(f's_cbranch_scc1 {Lend}')
    a(f'ds_read_b128 {vr(P,4)}, v{t} offset:{lds}')
    a(f'ds_read_b128 {vr(P+4,4)}, v{t} offset:{lds+1024}')
    X = 32
    a('s_waitcnt vmcnt(0)')
    unpack8(a, XR, X)
    a('s_waitcnt lgkmcnt(0)')
    for i in range(8):
        a(f'v_add_f32 v{ACC+i}, v{ACC+i}, v{P+i}')
        a(f'v_fmac_f32 v{X+i}, v{ACC+i}, v{MD+i}')
    for i in range(4): a(f'v_cvt_pk_bf16_f32 v{XR+i}, v{X+2*i}, v{X+2*i+1}')
    add64(a, 44, sWs, WS_X1)
    a(f'global_store_dwordx4 v5, {vr(XR,4)}, s[44:45]{st}')
    unpack8(a, XR, X)
    ln_stats(a, X, m, r, t)
    for i in range(8):
        a(f'v_add_f32 v{MD+16+i}, 1.0, v{MD+16+i}')
        a(f'v_fma_f32 v{X+i}, v{X+i}, v{MD+16+i}, v{MD+8+i}')
    ln_stats(a, X, m, r, t)
    for i in range(4): a(f'v_cvt_pk_bf16_f32 v{P+i}, v{X+2*i}, v{X+2*i+1}')
    add64(a, 44, sWs, WS_H2)
    a(f'global_store_dwordx4 v5, {vr(P,4)}, s[44:45]{st}')
    a(f'{Lend}:')

def build_red_kernel(a):
    header(a, 'red_kernel')
    a('s_cmp_ge_u32 s2, 512'); a('s_cbranch_scc1 L_red_end')
    a(f's_load_dwordx2 s[4:5], s[0:1], {KA["x"]}')
    a(f's_load_dwordx2 s[10:11], s[0:1], {KA["ws"]}')
    a('v_lshrrev_b32 v1, 6, v0'); a('v_and_b32 v0, 63, v0'); a('v_readfirstlane_b32 s12, v1')
    a('s_waitcnt lgkmcnt(0)')
    emit_red_task(a, 2, 12, 4, 10)
    a('L_red_end:'); a('s_endpgm')
    a.raw(kernel_desc('red_kernel', vgpr=128, accum=128))
```

```python
WS_MOD   = 0x0000000
WS_H     = 0x0100000
WS_X1    = 0x0400000
WS_H2    = 0x0700000
WS_G     = 0x0A00000
WS_Q     = 0x1000000
WS_K     = 0x2000000
WS_V     = 0x3000000
WS_MEM   = 0x4000000
WS_PART  = 0x4100000
WS_KM    = 0x4200000
WS_VM    = 0x4600000
WS_MEMDBG= 0x4A00000
WS_ATTP  = 0x5000000
WS_U     = 0x5000000
WS_AP2   = 0x9000000
WS_Z     = 0xA000000
WS_PP    = 0x4080000
WS_FL    = 0x0080000
FL_CNT   = 0
FL_PROG  = 8192
FL_ATTD  = 12288
FL_H2D   = 20480
FL_HD    = 28672
FL_GD    = 32768
FL_UD    = 36864
FL_BYTES = 49152
KA = dict(x=0, mem0=8, Wq=16, Wk=24, Wv=32, Wo=40, seg=48, Bx=56, w1=64, b1=72, w2=80, b2=88, c=96, wmod=104, out=112, dbg=120, ws=128)
```

```python
from asmlib import *
from layout import *
from pre import add64, header, f2u, LOG2E

def tr_lane_base(a, dst, t, perm_cols):
    a(f'v_lshrrev_b32 v{t}, 5, v0')
    a(f'v_bfe_u32 v{t+1}, v0, 2, 2')
    a(f'v_lshl_add_u32 v{t}, v{t}, 3, v{t+1}')
    a(f'v_lshlrev_b32 v{t}, 7, v{t}')
    a(f'v_bfe_u32 v{t+1}, v0, 3, 1')
    a(f'v_lshl_add_u32 v{t}, v{t+1}, 6, v{t}')
    if perm_cols:
        a(f'v_and_b32 v{t+1}, 1, v0'); a(f'v_lshl_add_u32 v{t}, v{t+1}, 5, v{t}')
        a(f'v_bfe_u32 v{t+1}, v0, 4, 1'); a(f'v_lshl_add_u32 v{t}, v{t+1}, 4, v{t}')
        a(f'v_bfe_u32 v{t+1}, v0, 1, 1'); a(f'v_lshl_add_u32 v{dst}, v{t+1}, 3, v{t}')
    else:
        a(f'v_bfe_u32 v{t+1}, v0, 4, 1'); a(f'v_lshl_add_u32 v{t}, v{t+1}, 5, v{t}')
        a(f'v_and_b32 v{t+1}, 3, v0'); a(f'v_lshl_add_u32 v{dst}, v{t+1}, 3, v{t}')

def dma_lane(a, dst, t, stride):
    a(f'v_and_b32 v{t}, 7, v0')
    a(f'v_bfe_u32 v{t+1}, v0, 4, 1')
    a(f'v_lshlrev_b32 v{t+1}, 2, v{t+1}')
    a(f'v_xor_b32 v{t}, v{t}, v{t+1}')
    a(f'v_lshrrev_b32 v{t+1}, 3, v0')
    a(f'v_mul_u32_u24 v{t+1}, {stride}, v{t+1}')
    a(f'v_lshl_add_u32 v{dst}, v{t}, 4, v{t+1}')

def combine_halves(a, D, sKh, sTile, t, lds):
    a(f's_lshl_b32 s48, s{sTile}, 12')
    a(f'v_lshlrev_b32 v{t}, 4, v0')
    a(f'v_add_u32 v{t}, s48, v{t}')
    L = a.uid('ch')
    a('s_barrier')
    a(f's_cmp_eq_u32 s{sKh}, 0')
    a(f's_cbranch_scc1 {L}')
    for i in range(4): a(f'ds_write_b128 v{t}, {vr(D+4*i,4)} offset:{lds + 1024*i}')
    a('s_waitcnt lgkmcnt(0)')
    a(f'{L}:')
    a('s_barrier')

def build_g1_kernel(a):
    header(a, 'g1_kernel')
    a('s_cmp_ge_u32 s2, 224'); a('s_cbranch_scc1 L_g1_end')
    a(f's_load_dwordx4 s[4:7], s[0:1], {KA["w1"]}')
    a(f's_load_dwordx2 s[10:11], s[0:1], {KA["ws"]}')
    a('v_lshrrev_b32 v1, 6, v0'); a('v_and_b32 v0, 63, v0'); a('v_readfirstlane_b32 s12, v1')
    sFt, sDt, sKh, sTile = 13, 14, 15, 16
    a(f's_lshr_b32 s{sFt}, s2, 3'); a(f's_and_b32 s{sDt}, s2, 7')
    a(f's_lshr_b32 s{sKh}, s12, 2'); a(f's_and_b32 s{sTile}, s12, 3')
    a('s_waitcnt lgkmcnt(0)')
    vDW, vDH, vTA, vTB, t = 1, 2, 3, 4, 6
    dma_lane(a, vDW, t, 3584); dma_lane(a, vDH, t, 1024)
    tr_lane_base(a, vTA, t, True); tr_lane_base(a, vTB, t, False)
    a(f's_lshr_b32 s40, s{sTile}, 1'); a('s_lshl_b32 s40, s40, 6')
    a(f'v_xor_b32 v{vTA}, s40, v{vTA}')
    a(f's_and_b32 s40, s{sTile}, 1'); a('s_lshl_b32 s40, s40, 6')
    a(f'v_xor_b32 v{vTB}, s40, v{vTB}')
    a(f's_lshl_b32 s40, s{sKh}, 11')
    a(f'v_add_u32 v{vTA}, s40, v{vTA}')
    a(f's_add_u32 s40, s40, 16384')
    a(f'v_add_u32 v{vTB}, s40, v{vTB}')
    a(f's_mul_i32 s40, s12, {16*3584}'); a(f's_lshl_b32 s41, s{sFt}, 7'); a('s_add_u32 s40, s40, s41')
    add64(a, 20, 4, 's40')
    a('s_lshl_b32 s40, s12, 14'); a(f's_lshl_b32 s41, s{sDt}, 7'); a('s_add_u32 s40, s40, s41'); a(f's_add_u32 s40, s40, {WS_H2}')
    add64(a, 22, 10, 's40')
    a('s_lshl_b32 s24, s12, 11')
    NB = 4
    def dma(c):
        b = (c % NB) * 32768
        for i in range(2):
            a(f's_add_u32 m0, s24, {b + i*1024}')
            a(f'global_load_lds_dwordx4 v{vDW}, s[20:21]')
            add64(a, 20, 20, 8 * 3584 if i == 0 else 120 * 3584)
            a(f's_add_u32 m0, s24, {b + 16384 + i*1024}')
            a(f'global_load_lds_dwordx4 v{vDH}, s[22:23]')
            add64(a, 22, 22, 8 * 1024 if i == 0 else 120 * 1024)
    D, FA, FB = 16, 32, 48
    for c in range(NB - 1): dma(c)
    for c in range(16):
        a(f's_waitcnt vmcnt({4 * min(NB - 2, 15 - c)})')
        a('s_barrier')
        if c + NB - 1 < 16: dma(c + NB - 1)
        b = (c % NB) * 32768
        a(f'v_add_u32 v{t}, {b}, v{vTA}')
        a(f'v_add_u32 v{t+1}, {b}, v{vTB}')
        for sgm in range(4):
            for j in range(2):
                a(f'ds_read_b64_tr_b16 {vr(FA+4*sgm+2*j,2)}, v{t} offset:{sgm*4096 + j*512}')
                a(f'ds_read_b64_tr_b16 {vr(FB+4*sgm+2*j,2)}, v{t+1} offset:{sgm*4096 + j*512}')
        for sgm in range(4):
            a(f's_waitcnt lgkmcnt({12 - 4*sgm})')
            a(f'v_mfma_f32_32x32x16_bf16 {vr(D,16)}, {vr(FA+4*sgm,4)}, {vr(FB+4*sgm,4)}, {"0" if (c == 0 and sgm == 0) else vr(D,16)}')
    combine_halves(a, D, sKh, sTile, t, 0)
    a(f's_cmp_lg_u32 s{sKh}, 0'); a('s_cbranch_scc1 L_g1_end')
    for i in range(4): a(f'ds_read_b128 {vr(FA+4*i,4)}, v{t} offset:{1024*i}')
    a(f'v_lshrrev_b32 v{t+2}, 5, v0'); a(f'v_lshlrev_b32 v{t+2}, 5, v{t+2}')
    a(f's_lshr_b32 s40, s{sTile}, 1'); a('s_lshl_b32 s40, s40, 6'); a(f's_lshl_b32 s41, s{sFt}, 7'); a('s_add_u32 s40, s40, s41')
    a(f'v_add_u32 v{t+2}, s40, v{t+2}')
    a(f'global_load_dwordx4 {vr(FB,4)}, v{t+2}, s[6:7]')
    a(f'global_load_dwordx4 {vr(FB+4,4)}, v{t+2}, s[6:7] offset:16')
    gelu_store(a, D, FA, FB, t, sDt, sTile, 10, '')
    a('L_g1_end:'); a('s_endpgm')
    a.raw(kernel_desc('g1_kernel', vgpr=128, accum=128))

def gelu_store(a, D, FA, FB, t, sDt, sTile, sWs, st, frag=False):
    a('s_waitcnt vmcnt(0) lgkmcnt(0)')
    a(f's_mov_b32 s42, {hex(f2u(0.044715))}')
    a(f's_mov_b32 s43, {hex(f2u(-2 * LOG2E * 0.7978845608028654))}')
    x, y = t, t + 1
    for i in range(16):
        if FA is not None: a(f'v_add_f32 v{D+i}, v{D+i}, v{FA+i}')
        if i % 2 == 0: a(f'v_lshlrev_b32 v{x}, 16, v{FB+i//2}')
        else: a(f'v_and_b32 v{x}, 0xffff0000, v{FB+i//2}')
        a(f'v_add_f32 v{D+i}, v{D+i}, v{x}')
        a(f'v_mul_f32 v{x}, v{D+i}, v{D+i}')
        a(f'v_fma_f32 v{x}, v{x}, s42, 1.0')
        a(f'v_mul_f32 v{x}, v{x}, v{D+i}')
        a(f'v_mul_f32 v{x}, s43, v{x}')
        a(f'v_exp_f32 v{x}, v{x}')
        a(f'v_add_f32 v{x}, 1.0, v{x}')
        a(f'v_rcp_f32 v{x}, v{x}')
        a(f'v_mul_f32 v{D+i}, v{D+i}, v{x}')
    for i in range(8): a(f'v_cvt_pk_bf16_f32 v{FB+i}, v{D+2*i}, v{D+2*i+1}')
    if frag:
        a(f'v_bfe_u32 v{x}, v0, 2, 2'); a(f'v_lshlrev_b32 v{x}, 3, v{x}')
        a(f'v_bfe_u32 v{y}, v0, 4, 1'); a(f'v_lshl_add_u32 v{x}, v{y}, 2, v{x}')
        a(f'v_and_b32 v{y}, 3, v0'); a(f'v_add_u32 v{x}, v{x}, v{y}')
        a(f'v_lshlrev_b32 v{x}, 4, v{x}')
        a(f'v_lshl_add_u32 v{x}, v{t+2}, 5, v{x}')
        a(f's_and_b32 s40, s{sTile}, 1'); a(f's_lshl_b32 s41, s{sDt}, 1'); a('s_add_u32 s40, s40, s41')
        a(f's_mul_i32 s40, s40, {112*1024}')
        a(f'v_add_u32 v{x}, s40, v{x}')
        add64(a, 44, sWs, WS_G)
        a(f'global_store_dwordx4 v{x}, {vr(FB,4)}, s[44:45]{st}')
        a(f'global_store_dwordx4 v{x}, {vr(FB+4,4)}, s[44:45] offset:512{st}')
        return
    a(f'v_and_b32 v{x}, 31, v0')
    a(f's_and_b32 s40, s{sTile}, 1'); a('s_lshl_b32 s40, s40, 5'); a(f's_lshl_b32 s41, s{sDt}, 6'); a('s_add_u32 s40, s40, s41')
    a(f'v_add_u32 v{x}, s40, v{x}')
    a(f'v_mul_u32_u24 v{x}, 3584, v{x}')
    a(f'v_add_u32 v{x}, v{x}, v{t+2}')
    add64(a, 44, sWs, WS_G)
    a(f'global_store_dwordx4 v{x}, {vr(FB,4)}, s[44:45]{st}')
    a(f'global_store_dwordx4 v{x}, {vr(FB+4,4)}, s[44:45] offset:16{st}')

def build_g2_kernel(a):
    header(a, 'g2_kernel')
    a('s_cmp_ge_u32 s2, 256'); a('s_cbranch_scc1 L_g2_end')
    a(f's_load_dwordx4 s[4:7], s[0:1], {KA["w2"]}')
    a(f's_load_dwordx2 s[8:9], s[0:1], {KA["out"]}')
    a(f's_load_dwordx2 s[10:11], s[0:1], {KA["ws"]}')
    a('v_lshrrev_b32 v1, 6, v0'); a('v_and_b32 v0, 63, v0'); a('v_readfirstlane_b32 s12, v1')
    sSt, sDt, sKh, sTile = 13, 14, 15, 16
    a(f's_and_b32 s{sSt}, s2, 7'); a(f's_lshl_b32 s{sSt}, s{sSt}, 2'); a('s_bfe_u32 s40, s2, 0x20003'); a(f's_add_u32 s{sSt}, s{sSt}, s40')
    a(f's_lshr_b32 s{sDt}, s2, 5')
    a(f's_lshr_b32 s{sKh}, s12, 2'); a(f's_and_b32 s{sTile}, s12, 3')
    a('s_waitcnt lgkmcnt(0)')
    vDW, vG, vTB, t = 1, 2, 4, 6
    dma_lane(a, vDW, t, 4096)
    tr_lane_base(a, vTB, t, False)
    a(f's_and_b32 s40, s{sTile}, 1'); a('s_lshl_b32 s40, s40, 6')
    a(f'v_xor_b32 v{vTB}, s40, v{vTB}')
    a(f's_lshl_b32 s40, s{sKh}, 11')
    a(f'v_add_u32 v{vTB}, s40, v{vTB}')
    a(f'v_bfe_u32 v{t}, v0, 2, 1'); a(f'v_lshlrev_b32 v{t}, 4, v{t}')
    a(f'v_bfe_u32 v{t+1}, v0, 3, 2'); a(f'v_lshl_add_u32 v{t}, v{t+1}, 2, v{t}')
    a(f'v_and_b32 v{t+1}, 3, v0'); a(f'v_add_u32 v{t}, v{t}, v{t+1}')
    a(f's_lshr_b32 s40, s{sTile}, 1'); a('s_lshl_b32 s40, s40, 5'); a(f's_lshl_b32 s41, s{sDt}, 6'); a('s_add_u32 s40, s40, s41')
    a(f'v_add_u32 v{t}, s40, v{t}')
    a(f'v_mul_u32_u24 v{t}, 3584, v{t}')
    a(f'v_lshrrev_b32 v{t+1}, 5, v0'); a(f'v_lshl_add_u32 v{t}, v{t+1}, 4, v{t}')
    a(f's_lshl_b32 s40, s{sKh}, 5')
    a(f'v_add_u32 v{vG}, s40, v{t}')
    add64(a, 22, 10, WS_G)
    a(f's_lshl_b32 s40, s12, {5+12}'); a(f's_lshl_b32 s41, s{sSt}, 7'); a('s_add_u32 s40, s40, s41')
    add64(a, 20, 4, 's40')
    a('s_lshl_b32 s24, s12, 12')
    NB = 4
    def dma(c):
        b = (c % NB) * 32768
        for i in range(4):
            a(f's_add_u32 m0, s24, {b + i*1024}')
            a(f'global_load_lds_dwordx4 v{vDW}, s[20:21]')
            add64(a, 20, 20, 8 * 4096 if i < 3 else (256 - 24) * 4096)
        for i in range(8):
            a(f'global_load_dwordx4 {ar((c % NB) * 32 + 4*i, 4)}, v{vG}, s[22:23] offset:{c*512 + i*64}')
    D, FB = 16, 32
    for c in range(NB - 1): dma(c)
    for c in range(7):
        a(f's_waitcnt vmcnt({12 * min(NB - 2, 6 - c)})')
        a('s_barrier')
        if c + NB - 1 < 7: dma(c + NB - 1)
        b = (c % NB) * 32768
        a(f'v_add_u32 v{t}, {b}, v{vTB}')
        for half in range(2):
            for i in range(4):
                for j in range(2):
                    a(f'ds_read_b64_tr_b16 {vr(FB+16*half+4*i+2*j,2)}, v{t} offset:{(4*half+i)*4096 + j*512}')
            if half == 1: pass
        for i in range(8):
            a(f's_waitcnt lgkmcnt({min(15, 14 - 2*i)})')
            a(f'v_mfma_f32_32x32x16_bf16 {vr(D,16)}, {ar((c % NB)*32 + 4*i,4)}, {vr(FB+4*i,4)}, {"0" if (c == 0 and i == 0) else vr(D,16)}')
    combine_halves(a, D, sKh, sTile, t, 0)
    a(f's_cmp_lg_u32 s{sKh}, 0'); a('s_cbranch_scc1 L_g2_end')
    FA = 32
    for i in range(4): a(f'ds_read_b128 {vr(FA+4*i,4)}, v{t} offset:{1024*i}')
    g2_epilogue(a, D, FA, t, sSt, sDt, sTile, 6, 8, 10, '')
    a('L_g2_end:'); a('s_endpgm')
    a.raw(kernel_desc('g2_kernel', vgpr=256, accum=128))

def g2_epilogue(a, D, FA, t, sSt, sDt, sTile, sB2, sOut, sWs, ld):
    X1, GB, B2 = 48, 56, 72
    a(f'v_and_b32 v{t+1}, 31, v0')
    a(f's_and_b32 s40, s{sTile}, 1'); a('s_lshl_b32 s40, s40, 5'); a(f's_lshl_b32 s41, s{sSt}, 6'); a('s_add_u32 s40, s40, s41')
    a(f'v_add_u32 v{t+1}, s40, v{t+1}')
    a(f'v_lshlrev_b32 v{t+2}, 1, v{t+1}')
    a(f'global_load_ushort v{B2}, v{t+2}, s[{sB2}:{sB2+1}]')
    a(f'v_lshrrev_b32 v{t+2}, 5, v0'); a(f'v_lshlrev_b32 v{t+2}, 4, v{t+2}')
    a(f's_lshr_b32 s40, s{sTile}, 1'); a('s_lshl_b32 s40, s40, 5'); a(f's_lshl_b32 s41, s{sDt}, 6'); a('s_add_u32 s40, s40, s41')
    a(f'v_add_u32 v{t+2}, s40, v{t+2}')
    a(f'v_lshlrev_b32 v{t+1}, 10, v{t+1}')
    a(f'v_lshl_add_u32 v{t+1}, v{t+2}, 1, v{t+1}')
    add64(a, 44, sWs, WS_X1)
    a(f'global_load_dwordx4 {vr(X1,4)}, v{t+1}, s[44:45]{ld}')
    a(f'global_load_dwordx4 {vr(X1+4,4)}, v{t+1}, s[44:45] offset:16{ld}')
    a(f'v_lshlrev_b32 v{t+2}, 2, v{t+2}')
    add64(a, 44, sWs, WS_MOD + 10240)
    for i in range(4): a(f'global_load_dwordx4 {vr(GB+4*i,4)}, v{t+2}, s[44:45] offset:{16*i}{ld}')
    a('s_waitcnt vmcnt(0) lgkmcnt(0)')
    a(f'v_lshlrev_b32 v{B2}, 16, v{B2}')
    x = t
    for i in range(16):
        if FA is not None: a(f'v_add_f32 v{D+i}, v{D+i}, v{FA+i}')
        a(f'v_add_f32 v{D+i}, v{D+i}, v{B2}')
        if i % 2 == 0: a(f'v_lshlrev_b32 v{x}, 16, v{X1+i//2}')
        else: a(f'v_and_b32 v{x}, 0xffff0000, v{X1+i//2}')
        a(f'v_fma_f32 v{D+i}, v{D+i}, v{GB+i}, v{x}')
    for i in range(8): a(f'v_cvt_pk_bf16_f32 v{X1+i}, v{D+2*i}, v{D+2*i+1}')
    a(f'global_store_dwordx4 v{t+1}, {vr(X1,4)}, s[{sOut}:{sOut+1}]')
    a(f'global_store_dwordx4 v{t+1}, {vr(X1+4,4)}, s[{sOut}:{sOut+1}] offset:16')

def g2_epi_loads(a, t, sSt, sDt, sTile, sB2, sWs, ld, X1, GB, B2):
    a(f'v_and_b32 v{t+1}, 31, v0')
    a(f's_and_b32 s40, s{sTile}, 1'); a('s_lshl_b32 s40, s40, 5'); a(f's_lshl_b32 s41, s{sSt}, 6'); a('s_add_u32 s40, s40, s41')
    a(f'v_add_u32 v{t+1}, s40, v{t+1}')
    a(f'v_lshlrev_b32 v{t+2}, 1, v{t+1}')
    a(f'global_load_ushort v{B2}, v{t+2}, s[{sB2}:{sB2+1}]')
    a(f'v_lshrrev_b32 v{t+2}, 5, v0'); a(f'v_lshlrev_b32 v{t+2}, 4, v{t+2}')
    a(f's_lshr_b32 s40, s{sTile}, 1'); a('s_lshl_b32 s40, s40, 5'); a(f's_lshl_b32 s41, s{sDt}, 6'); a('s_add_u32 s40, s40, s41')
    a(f'v_add_u32 v{t+2}, s40, v{t+2}')
    a(f'v_lshlrev_b32 v{t+1}, 10, v{t+1}')
    a(f'v_lshl_add_u32 v{t+1}, v{t+2}, 1, v{t+1}')
    add64(a, 44, sWs, WS_X1)
    a(f'global_load_dwordx4 {vr(X1,4)}, v{t+1}, s[44:45]{ld}')
    a(f'global_load_dwordx4 {vr(X1+4,4)}, v{t+1}, s[44:45] offset:16{ld}')
    a(f'v_lshlrev_b32 v{t+2}, 2, v{t+2}')
    add64(a, 44, sWs, WS_MOD + 10240)
    for i in range(4): a(f'global_load_dwordx4 {vr(GB+4*i,4)}, v{t+2}, s[44:45] offset:{16*i}{ld}')

def g2_epi_finish(a, D, FA, t, sOut, X1, GB, B2):
    a('s_waitcnt vmcnt(0) lgkmcnt(0)')
    a(f'v_lshlrev_b32 v{B2}, 16, v{B2}')
    x = t
    for i in range(16):
        a(f'v_add_f32 v{D+i}, v{D+i}, v{FA+i}')
        a(f'v_add_f32 v{D+i}, v{D+i}, v{B2}')
        if i % 2 == 0: a(f'v_lshlrev_b32 v{x}, 16, v{X1+i//2}')
        else: a(f'v_and_b32 v{x}, 0xffff0000, v{X1+i//2}')
        a(f'v_fma_f32 v{D+i}, v{D+i}, v{GB+i}, v{x}')
    for i in range(8): a(f'v_cvt_pk_bf16_f32 v{X1+i}, v{D+2*i}, v{D+2*i+1}')
    a(f'global_store_dwordx4 v{t+1}, {vr(X1,4)}, s[{sOut}:{sOut+1}]')
    a(f'global_store_dwordx4 v{t+1}, {vr(X1+4,4)}, s[{sOut}:{sOut+1}] offset:16')
```

```python
from asmlib import *
from layout import *
import struct
def f2u(f): return struct.unpack('<I', struct.pack('<f', f))[0]

L_MEM, L_KX, L_VX, L_QB, L_KB, L_OB, L_VB, L_MISC, L_W = 0, 8192, 16384, 24576, 26880, 29184, 31488, 32512, 32768
L_FQ, L_FK, L_FV = L_MISC + 16, L_MISC + 32, L_MISC + 48
ROWB = 288
LOG2E = 1.4426950408889634
QSCALE = (128 ** -0.5) * LOG2E
POLL_LIMIT = 30000
KLD = ' sc1'

sWq, sWk, sWv, sWo, sM0in, sDbg, sWs = 4, 6, 8, 10, 12, 14, 16
sH, sW, sS, sT2, sT0, sT1, sT3, sCnt = 18, 19, 20, 21, 22, 23, 24, 25
sMemR, sMemW, sPartW, sPartR, sKx, sVx, sKm, sVm, sMemC, sDbgM = 26, 28, 30, 32, 34, 36, 38, 40, 42, 44
sQs, sRole = 46, 47
sEx = 48
sMemB, sPartB = 50, 52
sPrevR, sPrevM = 54, 56
sPubM = 58
sWv8 = 60
sS1 = 61
sTag = 3
sTm = 96

vIdx, vL16, vWQ, vRO, vP, vWB, vVmo, vFW = range(8)
vRQ, vRK, vWO = 8, 9, 10
vPR, vPub, vKmo = 8, 9, 10
vT = 11
vDummy = 14
vFR = 15
vA = 16
vAc = 48
vAv = 56
vE = 60
WvR = 64

def wa_reg(tau, sig): return ar((tau * 8 + sig) * 8, 8)
def wv_reg(sig): return vr(WvR + sig * 8, 8)
def wo_off(t, c, hh): return c * 16384 + t * 2048 + hh * 1024

def add64(a, dst, src, val):
    a(f's_add_u32 s{dst}, s{src}, {val}')
    a(f's_addc_u32 s{dst+1}, s{src+1}, 0')

def emit_rec_setup(a, sst='', early_arrive=False):
    a(f's_and_b32 s{sW}, s{sWv8}, 3')
    a(f's_lshr_b32 s{sRole}, s{sWv8}, 2')
    lane = 40
    T = lambda i: 41 + i
    a(f'v_mov_b32 v{lane}, v0')
    a(f'v_lshlrev_b32 v{vL16}, 4, v{lane}')
    n, g = T(0), T(1)
    a(f'v_and_b32 v{n}, 15, v{lane}')
    a(f'v_lshrrev_b32 v{g}, 4, v{lane}')
    vWrow, vTrQ, vTrO = T(2), T(3), T(7)
    a(f'v_lshlrev_b32 v{vWrow}, 13, v{g}')
    a(f'v_lshl_add_u32 v{vWrow}, v{n}, 4, v{vWrow}')
    a(f's_lshl_b32 s{sT0}, s{sH}, 8')
    a(f's_lshl_b32 s{sT1}, s{sW}, 19')
    a(f's_add_u32 s{sT0}, s{sT0}, s{sT1}')
    a(f's_lshl_b32 s{sT1}, s{sRole}, 18')
    a(f's_add_u32 s{sT0}, s{sT0}, s{sT1}')
    for p in (sWq, sWk, sWv): add64(a, p, p, f's{sT0}')
    a(f's_lshl_b32 s{sT0}, s{sH}, 17')
    a(f's_lshl_b32 s{sT1}, s{sW}, 14')
    a(f's_add_u32 s{sT0}, s{sT0}, s{sT1}')
    a(f's_lshl_b32 s{sT1}, s{sRole}, 13')
    a(f's_add_u32 s{sT0}, s{sT0}, s{sT1}')
    add64(a, sWo, sWo, f's{sT0}')
    a(f's_lshl_b32 s{sT3}, s{sW}, 15')
    a(f's_add_u32 s{sT3}, s{sT3}, {L_W}')
    a(f'v_add_u32 v{vWB}, s{sT3}, v{vL16}')
    a(f's_lshl_b32 s{sT1}, s{sRole}, 13')
    a(f's_add_u32 s{sT3}, s{sT3}, s{sT1}')
    a(f'v_add_u32 v{vWB}, s{sT1}, v{vWB}')
    stages = [('q', 0), ('k', 1), ('q', 1), ('k', 0), ('v', 0), ('v', 1), ('o', 0), ('o', 1)]
    stages = [('q', 0), ('q', 1), ('k', 0), ('k', 1), ('v', 0), ('v', 1), ('o', 0), ('o', 1)]
    def dma(st):
        m, hf = stages[st]
        base = {'q': sWq, 'k': sWk, 'v': sWv, 'o': sWo}[m]
        for t in range(8):
            if m == 'o':
                goff = hf * 65536 + t * 1024; va = vL16
            else:
                goff = hf * 256 * 8192 + t * 32768; va = vWrow
            add64(a, sT0, base, goff)
            a(f's_add_u32 m0, s{sT3}, {hf * 16384 + t * 1024}')
            a(f'global_load_lds_dwordx4 v{va}, s[{sT0}:{sT0+1}]')
    r_, cc, t0, t1, m0a, m0b = T(9), T(10), T(11), T(12), T(13), T(14)
    a(f'v_lshrrev_b32 v{t0}, 3, v{lane}')
    a(f'v_lshlrev_b32 v{t0}, 10, v{t0}')
    a(f'v_bfe_u32 v{t1}, v{lane}, 1, 2')
    a(f'v_lshl_add_u32 v{t0}, v{t1}, 1, v{t0}')
    a(f'v_and_b32 v{t1}, 1, v{lane}')
    a(f'v_lshl_add_u32 v{t0}, v{t1}, 4, v{t0}')
    a(f's_lshl_b32 s{sT2}, s{sH}, 5')
    a(f'v_add_u32 v{t0}, s{sT2}, v{t0}')
    a(f'global_load_ushort v{m0a}, v{t0}, s[{sM0in}:{sM0in+1}]')
    a(f'global_load_ushort v{m0b}, v{t0}, s[{sM0in}:{sM0in+1}] offset:8')
    dma(0); dma(1)
    a(f'v_lshrrev_b32 v{r_}, 2, v{n}')
    a(f'v_and_b32 v{cc}, 3, v{n}')
    a(f'v_lshrrev_b32 v{t0}, 1, v{g}')
    a(f'v_lshlrev_b32 v{t0}, 4, v{t0}')
    a(f'v_and_b32 v{t1}, 1, v{g}')
    a(f'v_add_u32 v{t0}, v{t0}, v{t1}')
    a(f'v_and_b32 v{t1}, 1, v{r_}')
    a(f'v_lshl_add_u32 v{t0}, v{t1}, 2, v{t0}')
    a(f'v_lshrrev_b32 v{t1}, 1, v{r_}')
    a(f'v_lshl_add_u32 v{t0}, v{t1}, 1, v{t0}')
    a(f'v_lshlrev_b32 v{t0}, 8, v{t0}')
    a(f'v_lshl_add_u32 v{t0}, v{cc}, 3, v{t0}')
    a(f's_lshl_b32 s{sT2}, s{sW}, 6')
    a(f's_add_u32 s{sT2}, s{sT2}, {L_W}')
    a(f'v_add_u32 v{t0}, s{sT2}, v{t0}')
    for sp in range(4):
        a(f's_xor_b32 s{sT2}, s{sW}, {sp}')
        a(f's_lshl_b32 s{sT2}, s{sT2}, 15')
        a(f'v_add_u32 v{vTrQ+sp}, s{sT2}, v{t0}')
    a(f'v_lshrrev_b32 v{t0}, 1, v{g}')
    a(f'v_lshlrev_b32 v{t0}, 3, v{t0}')
    a(f'v_lshrrev_b32 v{t1}, 1, v{r_}')
    a(f'v_lshl_add_u32 v{t0}, v{t1}, 2, v{t0}')
    a(f'v_and_b32 v{t1}, 1, v{r_}')
    a(f'v_add_u32 v{t0}, v{t0}, v{t1}')
    a(f'v_lshlrev_b32 v{t0}, 10, v{t0}')
    a(f'v_and_b32 v{t1}, 1, v{g}')
    a(f'v_lshl_add_u32 v{t0}, v{t1}, 15, v{t0}')
    a(f'v_lshl_add_u32 v{t0}, v{cc}, 5, v{t0}')
    a(f's_lshl_b32 s{sT2}, s{sW}, 8')
    a(f's_lshl_b32 s{sCnt}, s{sRole}, 7')
    a(f's_add_u32 s{sT2}, s{sT2}, s{sCnt}')
    a(f's_add_u32 s{sT2}, s{sT2}, {L_W}')
    a(f'v_add_u32 v{vTrO}, s{sT2}, v{t0}')
    a(f'v_add_u32 v{vTrO+1}, 0x10000, v{vTrO}')
    a(f'v_and_b32 v{t0}, 1, v{lane}')
    a(f'v_mul_u32_u24 v{t0}, 0xAAAA, v{t0}')
    a(f'v_add_u32 v{vIdx}, 0x4444, v{t0}')
    a(f'v_mul_u32_u24 v{t0}, {2*ROWB}, v{g}')
    a(f'v_lshl_add_u32 v{t0}, v{n}, 2, v{t0}')
    a(f's_mul_i32 s{sCnt}, s{sRole}, {L_KB-L_QB}')
    a(f's_lshl_b32 s{sT2}, s{sW}, 6')
    a(f's_add_u32 s{sT2}, s{sT2}, s{sCnt}')
    a(f's_add_u32 s{sT2}, s{sT2}, {L_QB}')
    a(f'v_add_u32 v{vWQ}, s{sT2}, v{t0}')
    a(f'v_lshrrev_b32 v{t0}, 1, v{n}')
    a(f'v_mul_u32_u24 v{t0}, {ROWB}, v{t0}')
    a(f'v_lshl_add_u32 v{t0}, v{g}, 5, v{t0}')
    a(f'v_and_b32 v{t1}, 1, v{n}')
    a(f'v_lshl_add_u32 v{t0}, v{t1}, 4, v{t0}')
    a(f'v_add_u32 v{vRO}, {L_OB}, v{t0}')
    a(f'v_lshlrev_b32 v{t0}, 13, v{r_}')
    a(f'v_lshl_add_u32 v{t0}, v{g}, 10, v{t0}')
    a(f'v_lshl_add_u32 v{t0}, v{cc}, 4, v{t0}')
    a(f's_lshl_b32 s{sT2}, s{sW}, 16')
    a(f's_lshl_b32 s{sCnt}, s{sRole}, 15')
    a(f's_add_u32 s{sT2}, s{sT2}, s{sCnt}')
    a(f's_lshr_b32 s{sCnt}, s{sH}, 4')
    a(f's_lshl_b32 s{sCnt}, s{sCnt}, 12')
    a(f's_add_u32 s{sT2}, s{sT2}, s{sCnt}')
    a(f's_and_b32 s{sCnt}, s{sH}, 15')
    a(f's_lshl_b32 s{sCnt}, s{sCnt}, 6')
    a(f's_add_u32 s{sT2}, s{sT2}, s{sCnt}')
    a(f'v_add_u32 v{vP}, s{sT2}, v{t0}')
    a(f'v_lshlrev_b32 v{t0}, 4, v{n}')
    a(f's_lshl_b32 s{sT2}, s{sW}, 9')
    a(f's_lshl_b32 s{sCnt}, s{sRole}, 8')
    a(f's_add_u32 s{sT2}, s{sT2}, s{sCnt}')
    a(f'v_add_u32 v{vVmo}, s{sT2}, v{t0}')
    a(f's_lshl_b32 s{sT2}, s{sW}, 2')
    a(f'v_mov_b32 v{vFW}, s{sT2}')
    a(f'v_and_b32 v{t0}, 31, v{lane}')
    a(f'v_lshlrev_b32 v{t0}, 6, v{t0}')
    a(f'v_lshrrev_b32 v{t1}, 5, v{lane}')
    a(f'v_lshl_add_u32 v13, v{t1}, 24, v{t0}')
    LB = a.uid('su_b'); LE = a.uid('su_e')
    a(f's_cmp_lg_u32 s{sRole}, 0')
    a(f's_cbranch_scc1 {LB}')
    a(f'v_and_b32 v{t0}, 7, v{n}')
    a(f'v_mul_u32_u24 v{t0}, {ROWB}, v{t0}')
    a(f'v_lshl_add_u32 v{t0}, v{g}, 4, v{t0}')
    a(f'v_add_u32 v{vRQ}, {L_QB}, v{t0}')
    a(f's_lshl_b32 s{sT2}, s{sW}, 6')
    a(f's_add_u32 s{sT2}, s{sT2}, {L_OB}')
    a(f'v_add_u32 v{vWO}, s{sT2}, v{t0}')
    a(f'v_and_b32 v{t1}, 1, v{n}')
    a(f'v_lshl_add_u32 v{t1}, v{r_}, 1, v{t1}')
    a(f'v_mul_u32_u24 v{t0}, {ROWB}, v{t1}')
    a(f'v_lshl_add_u32 v{t0}, v{g}, 4, v{t0}')
    a(f'v_add_u32 v{vRK}, {L_KB}, v{t0}')
    a(f'v_lshlrev_b32 v{vFR}, 2, v{cc}')
    a(f's_branch {LE}')
    a(f'{LB}:')
    a(f's_lshl_b32 s{sT2}, s{sW}, 10')
    a(f'v_add_u32 v{vPR}, s{sT2}, v{vL16}')
    a(f'v_lshlrev_b32 v{t0}, 5, v{g}')
    a(f'v_lshl_add_u32 v{t0}, v{cc}, 3, v{t0}')
    a(f'v_and_b32 v{t0}, 63, v{t0}')
    a(f's_lshl_b32 s{sT2}, s{sW}, 6')
    a(f's_lshl_b32 s{sCnt}, s{sH}, 8')
    a(f's_add_u32 s{sT2}, s{sT2}, s{sCnt}')
    a(f'v_add_u32 v{vPub}, s{sT2}, v{t0}')
    a(f'v_bfe_u32 v{t0}, v{lane}, 2, 3'); a(f'v_lshlrev_b32 v{t0}, 8, v{t0}')
    a(f'v_lshl_add_u32 v{t0}, v{cc}, 4, v{t0}')
    a(f's_lshl_b32 s{sT2}, s{sW}, 6')
    a(f'v_add_u32 v{vKmo}, s{sT2}, v{t0}')
    a(f'v_and_b32 v{t0}, 31, v{lane}')
    a(f'v_lshlrev_b32 v{t0}, 6, v{t0}')
    a(f'v_lshrrev_b32 v{t1}, 5, v{lane}')
    a(f'v_lshl_add_u32 v15, v{t1}, 24, v{t0}')
    a(f'{LE}:')
    add64(a, sMemB, sWs, WS_MEM)
    add64(a, sPartB, sWs, WS_PART)
    a(f's_lshl_b32 s{sT2}, s{sH}, 13')
    a(f's_lshl_b32 s{sCnt}, s{sW}, 11')
    a(f's_add_u32 s{sCnt}, s{sCnt}, s{sT2}')
    add64(a, sKx, sWs, WS_K); add64(a, sKx, sKx, f's{sCnt}')
    add64(a, sVx, sWs, WS_V); add64(a, sVx, sVx, f's{sCnt}')
    a(f's_lshl_b32 s{sT2}, s{sH}, 11')
    add64(a, sKm, sWs, WS_KM); add64(a, sKm, sKm, f's{sT2}')
    add64(a, sVm, sWs, WS_VM); add64(a, sVm, sVm, f's{sT2}')
    add64(a, sDbgM, sWs, WS_MEMDBG)
    a(f's_mov_b32 s{sQs}, {hex(f2u(QSCALE))}')
    a(f's_mov_b32 s{sPubM}, 0x000f000f')
    a(f's_mov_b32 s{sPubM+1}, 0')
    a(f's_mov_b64 s[{sPartR}:{sPartR+1}], s[{sPartB}:{sPartB+1}]')
    a(f's_mov_b64 s[{sMemC}:{sMemC+1}], s[{sMemB}:{sMemB+1}]')
    a(f'v_mov_b32 v{t0}, 0')
    a(f'v_lshlrev_b32 v{t1}, 2, v{n}')
    a(f'ds_write_b32 v{t1}, v{t0} offset:{L_MISC+16}')
    CL = 16
    for i in range(4): a(f'v_mov_b32 v{CL+i}, -1')
    a(f's_lshl_b32 s{sT2}, s{sH}, 13')
    a(f's_lshl_b32 s{sCnt}, s{sWv8}, 10')
    a(f's_add_u32 s{sT2}, s{sT2}, s{sCnt}')
    a(f'v_add_u32 v{t0}, s{sT2}, v{vL16}')
    for par in range(4):
        a(f'global_store_dwordx4 v{t0}, v[{CL}:{CL+3}], s[{sPartB}:{sPartB+1}]{sst}')
        a(f'v_add_u32 v{t0}, 0x40000, v{t0}')
    a('s_waitcnt vmcnt(20)')
    a(f'v_lshl_or_b32 v{m0a}, v{m0b}, 16, v{m0a}')
    a(f'v_min_u32 v{m0a}, 0xfffffffe, v{m0a}')
    a(f's_cmp_eq_u32 s{sW}, 0')
    a(f's_cselect_b64 vcc, -1, 0')
    a(f'v_cndmask_b32 v{m0a}, -1, v{m0a}, vcc')
    a(f's_lshl_b32 s{sT2}, s{sW}, 13')
    a(f's_lshl_b32 s{sCnt}, s{sH}, 8')
    a(f's_add_u32 s{sT2}, s{sT2}, s{sCnt}')
    a(f'v_lshlrev_b32 v{t0}, 2, v{lane}')
    a(f'v_add_u32 v{t0}, s{sT2}, v{t0}')
    a(f'global_store_dword v{t0}, v{m0a}, s[{sMemB}:{sMemB+1}]{sst}')
    vTrV = T(15)
    a(f's_lshl_b32 s{sT2}, s{sRole}, 5')
    for sp in range(4): a(f'v_add_u32 v{vTrV+sp}, s{sT2}, v{vTrQ+sp}')
    TMP = 8
    for st in range(8):
        m, hf = stages[st]
        n_after = {0: 8 + 5, 7: 0}.get(st, 8)
        a(f's_waitcnt vmcnt({n_after})')
        a('s_barrier')
        if m in 'qk':
            Ls = a.uid('su_skip')
            a(f's_cmp_lg_u32 s{sRole}, {0 if m == "q" else 1}')
            a(f's_cbranch_scc1 {Ls}')
            for tau in range(2):
                for sp in range(4):
                    for j in range(4):
                        imm = (32 * (j >> 1) + 8 * (j & 1)) * 256 + tau * 32 + hf * 16384
                        sig = hf * 4 + sp
                        a(f'ds_read_b64_tr_b16 {ar((tau * 8 + sig) * 8 + 2 * j, 2)}, v{vTrQ+sp} offset:{imm}')
                    if sp % 2 == 1: a('s_waitcnt lgkmcnt(4)')
            a(f'{Ls}:')
        elif m == 'v':
            for sp in range(4):
                for j in range(4):
                    imm = (32 * (j >> 1) + 8 * (j & 1)) * 256 + hf * 16384
                    a(f'ds_read_b64_tr_b16 {vr(WvR + (hf * 4 + sp) * 8 + 2 * j, 2)}, v{vTrV+sp} offset:{imm}')
                if sp % 2 == 1: a('s_waitcnt lgkmcnt(4)')
        else:
            def tmp(t): return 16 + 8 * t if t < 3 else 52
            for t in range(4):
                for j in range(4):
                    imm = hf * 16384 + (j & 1) * 2048 + t * 8
                    a(f'ds_read_b64_tr_b16 {vr(tmp(t) + 2 * j, 2)}, v{vTrO + (j >> 1)} offset:{imm}')
                if t % 2 == 1: a('s_waitcnt lgkmcnt(4)')
        a('s_waitcnt lgkmcnt(0)')
        a('s_barrier')
        if m == 'o':
            Lb = a.uid('su_ob'); Le = a.uid('su_oe')
            a(f's_cmp_lg_u32 s{sRole}, 0')
            a(f's_cbranch_scc1 {Lb}')
            for t in range(4):
                for hh in range(2):
                    a(f'ds_write_b128 v{vWB}, {vr(tmp(t) + 4 * hh, 4)} offset:{wo_off(t, hf, hh)}')
            a(f's_branch {Le}')
            a(f'{Lb}:')
            for sp in range(4):
                for hh in range(2):
                    a(f'ds_write_b128 v{vWB}, {vr(WvR + (hf * 4 + sp) * 8 + 4 * hh, 4)} offset:{wo_off(sp, hf, hh)}')
            a('s_waitcnt lgkmcnt(0)')
            for t in range(4):
                for i in range(0, 8, 2):
                    a(f'v_mov_b64 {vr(WvR + (hf * 4 + t) * 8 + i, 2)}, {vr(tmp(t) + i, 2)}')
            a(f'{Le}:')
        if st + 2 < 8: dma(st + 2)
        if st == 2 and early_arrive:
            La = a.uid('arr')
            a(f's_cmp_lg_u32 s{sWv8}, 0'); a(f's_cbranch_scc1 {La}')
            a(f'v_mov_b32 v{vT}, 36'); a(f'v_mov_b32 v{vT+1}, 1')
            a('s_mov_b64 exec, 1')
            a(f'global_atomic_add v{vT}, v{vT+1}, s[{sDbg}:{sDbg+1}] sc1')
            a('s_mov_b64 exec, -1')
            a(f'{La}:')

def emit_heads_barrier(a, Lerr):
    a('s_waitcnt vmcnt(0) lgkmcnt(0)')
    a('s_barrier')
    Lskip = a.uid('hb_skip'); Lp = a.uid('hb_poll')
    a(f's_cmp_lg_u32 s{sWv8}, 0')
    a(f's_cbranch_scc1 {Lskip}')
    a(f'v_mov_b32 v{vT}, 36')
    a(f'v_mov_b32 v{vT+1}, 1')
    a('s_mov_b64 exec, 1')
    a(f'global_atomic_add v{vT}, v{vT+1}, s[{sDbg}:{sDbg+1}] sc1')
    a('s_mov_b64 exec, -1')
    a(f's_mov_b32 s{sCnt}, {POLL_LIMIT}')
    a(f'{Lp}:')
    a(f'global_load_dword v{vT+1}, v{vT}, s[{sDbg}:{sDbg+1}] sc1')
    a(f's_sub_u32 s{sCnt}, s{sCnt}, 1')
    a(f's_cbranch_scc1 {Lerr}')
    a('s_waitcnt vmcnt(0)')
    a(f'v_cmp_gt_u32 vcc, 32, v{vT+1}')
    a(f's_cbranch_vccnz {Lp}')
    a(f'{Lskip}:')
    a('s_barrier')

def smf(a, d, A, B, idx=None):
    a(f'v_smfmac_f32_16x16x64_bf16 {vr(d,4)}, {vr(A,4)}, {B}, v{vIdx if idx is None else idx}')
def mf(a, d, A, B, C):
    a(f'v_mfma_f32_16x16x32_bf16 {vr(d,4)}, {vr(A,4)}, {vr(B,4)}, {C if isinstance(C,str) else vr(C,4)}')
def mf16(a, d, A, B, C):
    a(f'v_mfma_f32_16x16x16_bf16 {vr(d,4)}, {vr(A,2)}, {vr(B,2)}, {vr(C,4)}')

class Stamps:
    def __init__(self, a, on): self.a = a; self.on = on; self.n = 0
    def __call__(self):
        if not self.on: return
        assert self.n < 16
        self.a(f's_memtime s[{64+2*self.n}:{65+2*self.n}]')
        self.n += 1
    def dump(self, step=40):
        if not self.on: return
        a = self.a
        L = a.uid('nodump')
        a(f's_cmp_lg_u32 s{sS}, {step}')
        a(f's_cbranch_scc1 {L}')
        a('s_waitcnt lgkmcnt(0)')
        a(f's_lshl_b32 s{sT2}, s{sH}, 9')
        a(f's_lshl_b32 s{sT3}, s{sWv8}, 6')
        a(f's_add_u32 s{sT2}, s{sT2}, s{sT3}')
        a(f'v_mov_b32 v{vT}, s{sT2}')
        for i in range(self.n):
            a(f'v_mov_b32 v{vT+1}, s{64+2*i}')
            a(f'global_store_dword v{vT}, v{vT+1}, s[{sDbgM}:{sDbgM+1}] offset:{4*i}')
        a(f'{L}:')

def poll2(a, R0, R1, voff, sbase, off0, off1, Lerr, opt, pre=None):
    def loads():
        a(f'global_load_dwordx4 {vr(R0,4)}, v{voff}, s[{sbase}:{sbase+1}] offset:{off0} sc1')
        a(f'global_load_dwordx4 {vr(R1,4)}, v{voff}, s[{sbase}:{sbase+1}] offset:{off1} sc1')
    def check():
        a(f'v_max3_u32 v{vT}, v{R0}, v{R0+1}, v{R0+2}')
        a(f'v_max3_u32 v{vT+1}, v{R1}, v{R1+1}, v{R1+2}')
        a(f'v_max3_u32 v{vT}, v{vT}, v{R0+3}, v{R1+3}')
        a(f'v_max_u32 v{vT}, v{vT}, v{vT+1}')
        a(f'v_cmp_eq_u32 vcc, -1, v{vT}')
    Lok = a.uid('p_ok'); Lp = a.uid('p_loop')
    depth = opt.get('pdepth', 2); gap = opt.get('pgap', 2)
    loads()
    if pre: pre()
    a(f's_mov_b32 s{sCnt}, {POLL_LIMIT}')
    a('s_waitcnt vmcnt(0)')
    check()
    a(f's_cbranch_vccz {Lok}')
    a('s_mov_b64 exec, vcc')
    for d in range(depth - 1):
        loads()
        for _ in range(gap): a('s_nop 7')
    a(f'{Lp}:')
    loads()
    a(f's_sub_u32 s{sCnt}, s{sCnt}, 1')
    a(f's_cbranch_scc1 {Lerr}')
    a(f's_waitcnt vmcnt({2 * (depth - 1)})')
    check()
    a('s_and_b64 exec, exec, vcc')
    a(f's_cbranch_execnz {Lp}')
    a('s_mov_b64 exec, -1')
    a(f'{Lok}:')

def poll1(a, R0, voff, sbase, off0, Lerr, opt, pre=None):
    def loads(): a(f'global_load_dwordx4 {vr(R0,4)}, v{voff}, s[{sbase}:{sbase+1}] offset:{off0} sc1')
    def check():
        a(f'v_max3_u32 v{vT}, v{R0}, v{R0+1}, v{R0+2}')
        a(f'v_max_u32 v{vT}, v{vT}, v{R0+3}')
        a(f'v_cmp_eq_u32 vcc, -1, v{vT}')
    Lok = a.uid('p_ok'); Lp = a.uid('p_loop')
    D = opt.get('mdepth', 1); gap = opt.get('mgap', 2)
    for _ in range(opt.get('mdelay', 0)): a('s_nop 7')
    if D == 1:
        loads()
        if pre: pre()
        a(f's_mov_b32 s{sCnt}, {POLL_LIMIT}')
        a('s_waitcnt vmcnt(0)')
        check()
        a(f's_cbranch_vccz {Lok}')
        a('s_mov_b64 exec, vcc')
        loads()
        a('s_nop 7'); a('s_nop 7')
        DD = 2
    else:
        loads()
        if pre: pre()
        else:
            for _ in range(gap): a('s_nop 7')
        a(f's_mov_b32 s{sCnt}, {POLL_LIMIT}')
        for d in range(D - 2):
            loads()
            for _ in range(gap): a('s_nop 7')
        DD = D
    a(f'{Lp}:')
    loads()
    a(f's_sub_u32 s{sCnt}, s{sCnt}, 1')
    a(f's_cbranch_scc1 {Lerr}')
    a(f's_waitcnt vmcnt({DD - 1})')
    check()
    a('s_and_b64 exec, exec, vcc')
    a(f's_cbranch_execnz {Lp}')
    a('s_mov_b64 exec, -1')
    a(f'{Lok}:')

def step_bases(a):
    a(f's_mov_b64 s[{sPrevR}:{sPrevR+1}], s[{sPartR}:{sPartR+1}]')
    a(f's_mov_b64 s[{sPrevM}:{sPrevM+1}], s[{sMemC}:{sMemC+1}]')
    a(f's_and_b32 s{sT2}, s{sS}, 3')
    a(f's_lshl_b32 s{sT2}, s{sT2}, 13')
    add64(a, sMemC, sMemB, f's{sT2}')
    a(f's_lshl_b32 s{sT3}, s{sW}, 10')
    a(f's_add_u32 s{sT3}, s{sT3}, 2048')
    add64(a, sMemR, sMemC, f's{sT3}')
    a(f's_add_u32 s{sS1}, s{sS}, 1')
    a(f's_bfe_u32 s{sTag}, s{sS}, 0x10002')
    a(f's_and_b32 s{sT2}, s{sS1}, 3')
    a(f's_lshl_b32 s{sT2}, s{sT2}, 13')
    add64(a, sMemW, sMemB, f's{sT2}')
    a(f's_and_b32 s{sT2}, s{sS}, 3')
    a(f's_lshl_b32 s{sT2}, s{sT2}, 18')
    add64(a, sPartW, sPartB, f's{sT2}')
    a(f's_lshl_b32 s{sT2}, s{sH}, 13')
    a(f's_add_u32 s{sT2}, s{sT2}, 2048')
    add64(a, sPartR, sPartW, f's{sT2}')

others = [(1, 0), (1, 1), (2, 0), (2, 1), (3, 0), (3, 1)]
AS = lambda sig: vA + 4 * sig

def wo_phase(a, st, first_bufs_loaded, bufs, OA, ACC, S):
    seq = [(t_, c) for c in range(2) for t_ in range(4)]
    nb = len(bufs)
    def WOL(i):
        t_, c = seq[i]; b = bufs[i % nb]
        a(f'ds_read_b128 {vr(b,4)}, v{vWB} offset:{wo_off(t_, c, 0)}')
        a(f'ds_read_b128 {vr(b+4,4)}, v{vWB} offset:{wo_off(t_, c, 1)}')
    a(f'ds_read_b128 {vr(OA,4)}, v{vRO}')
    a(f'ds_read_b128 {vr(OA+4,4)}, v{vRO} offset:128')
    issued = first_bufs_loaded
    after_oa = 0
    while issued < nb: WOL(issued); issued += 1; after_oa += 1
    order = ['OA0', 'OA1'] + [i for i in range(first_bufs_loaded, nb) for _ in range(2)]
    def wait_for(item):
        if item not in order: return
        idx = len(order) - 1 - order[::-1].index(item)
        a(f's_waitcnt lgkmcnt({min(15, len(order) - 1 - idx)})')
    for i in range(8):
        t_, c = seq[i]
        need_ = []
        if i == 0: need_.append('OA0')
        if i == 4: need_.append('OA1')
        need_.append(i)
        present = [x for x in need_ if x in order]
        if present:
            latest = max(present, key=lambda x: len(order) - 1 - order[::-1].index(x))
            wait_for(latest)
        if i == 0: S()
        smf(a, ACC + 4 * t_, OA + 4 * c, vr(bufs[i % nb], 8))
        if issued < 8:
            WOL(issued); order += [issued, issued]; issued += 1
    for t2 in range(4):
        a(f'v_add_f32 v{ACC+4*t2}, v{ACC+4*t2}, v{ACC+4*t2+1}')
        a(f'v_add_f32 v{ACC+4*t2+2}, v{ACC+4*t2+2}, v{ACC+4*t2+3}')
    a(f'v_cvt_pk_bf16_f32 v{ACC}, v{ACC}, v{ACC+4}')
    a(f'v_cvt_pk_bf16_f32 v{ACC+1}, v{ACC+8}, v{ACC+12}')
    a(f'v_cvt_pk_bf16_f32 v{ACC+2}, v{ACC+2}, v{ACC+6}')
    a(f'v_cvt_pk_bf16_f32 v{ACC+3}, v{ACC+10}, v{ACC+14}')
    for i in range(4): a(f'v_bfi_b32 v{ACC+i}, 1, s{sTag}, v{ACC+i}')
    a(f'global_store_dwordx4 v{vP}, {vr(ACC,4)}, s[{sPartW}:{sPartW+1}]{st}')
    return WOL


def epilogue_store(a, ACC, st):
    for t2 in range(4):
        a(f'v_add_f32 v{ACC+4*t2}, v{ACC+4*t2}, v{ACC+4*t2+1}')
        a(f'v_add_f32 v{ACC+4*t2+2}, v{ACC+4*t2+2}, v{ACC+4*t2+3}')
    a(f'v_cvt_pk_bf16_f32 v{ACC}, v{ACC}, v{ACC+4}')
    a(f'v_cvt_pk_bf16_f32 v{ACC+1}, v{ACC+8}, v{ACC+12}')
    a(f'v_cvt_pk_bf16_f32 v{ACC+2}, v{ACC+2}, v{ACC+6}')
    a(f'v_cvt_pk_bf16_f32 v{ACC+3}, v{ACC+10}, v{ACC+14}')
    for i in range(4): a(f'v_bfi_b32 v{ACC+i}, 1, s{sTag}, v{ACC+i}')
    a(f'global_store_dwordx4 v{vP}, {vr(ACC,4)}, s[{sPartW}:{sPartW+1}]{st}')

def poll2t(a, R0, R1, voff, sbase, off0, off1, Lerr, opt, tag):
    op = '0x80' if tag else '0xfe'
    def loads():
        a(f'global_load_dwordx4 {vr(R0,4)}, v{voff}, s[{sbase}:{sbase+1}] offset:{off0} sc1')
        a(f'global_load_dwordx4 {vr(R1,4)}, v{voff}, s[{sbase}:{sbase+1}] offset:{off1} sc1')
    def check():
        a(f'v_bitop3_b32 v{vT}, v{R0}, v{R0+1}, v{R0+2} bitop3:{op}')
        a(f'v_bitop3_b32 v{vT+1}, v{R1}, v{R1+1}, v{R1+2} bitop3:{op}')
        a(f'v_bitop3_b32 v{vT}, v{vT}, v{R0+3}, v{R1+3} bitop3:{op}')
        a(f'v_bitop3_b32 v{vT}, v{vT}, v{vT+1}, 1 bitop3:{"0x80" if tag else "0xa8"}')
        a(f'v_cmp_ne_u32 vcc, {tag}, v{vT}')
    Lok = a.uid('p_ok'); Lp = a.uid('p_loop')
    depth = opt.get('pdepth', 2); gap = opt.get('pgap', 2)
    a(f's_mov_b32 s{sCnt}, {POLL_LIMIT}')
    if not opt.get('pearly'):
        loads()
        a('s_waitcnt vmcnt(0)')
        check()
        a(f's_cbranch_vccz {Lok}')
        a('s_mov_b64 exec, vcc')
    for d in range(depth - 1):
        loads()
        for _ in range(gap): a('s_nop 7')
    a(f'{Lp}:')
    loads()
    a(f's_sub_u32 s{sCnt}, s{sCnt}, 1')
    a(f's_cbranch_scc1 {Lerr}')
    a(f's_waitcnt vmcnt({2 * (depth - 1)})')
    check()
    a('s_and_b64 exec, exec, vcc')
    a(f's_cbranch_execnz {Lp}')
    a('s_mov_b64 exec, -1')
    a(f'{Lok}:')

NOST = [False, ' sc1']
def vm_store(a, src, R):
    for i in range(4): a(f'v_mov_b32 v{R+i}, v{src}')
    a(f'v_permlane32_swap_b32 v{R}, v{R+2}')
    a(f'v_permlane32_swap_b32 v{R+1}, v{R+3}')
    a(f'v_permlane16_swap_b32 v{R}, v{R+1}')
    a(f'v_permlane16_swap_b32 v{R+2}, v{R+3}')
    a('s_mov_b64 exec, 0xffff')
    if not NOST[0]: a(f'global_store_dwordx4 v{vVmo}, {vr(R,4)}, s[{sVm}:{sVm+1}]{NOST[1]}')
    a('s_mov_b64 exec, -1')

def emit_loop_A(a, Lerr, Ldone, fast, debug, stamps, opt):
    st = '' if fast else ' sc1'
    S = Stamps(a, stamps)
    a(f's_setprio {opt.get("prioA", 2)}')
    for _ in range(opt.get('wdist', 1) - 1):
        add64(a, sKx, sKx, 32 * 8192)
        a(f'global_load_dword v12, v13, s[{sKx}:{sKx+1}]{KLD}')
    Lloop = a.uid('A_loop')
    a(f'{Lloop}:')
    step_bases(a)
    RA = vE
    a(f's_lshl_b32 s{sT2}, s{sW}, 10')
    a(f'v_add_u32 v{RA+3}, s{sT2}, v{vL16}')
    for sp in range(1, 4): a(f'v_xor_b32 v{RA+sp-1}, {sp*1024}, v{RA+3}')
    for i in range(0, 12, 2): a(f'v_mov_b64 {vr(vAc+i,2)}, 0')
    a(f'v_mov_b32 v14, s{sS1}')
    a('s_barrier')
    S()
    poll1(a, AS(0), vL16, sMemR, -2048, Lerr, opt)
    S()
    a(f'ds_write_b128 v{RA+3}, {vr(AS(0),4)}')
    q = vAc
    smf(a, q, AS(0), wa_reg(0, 0)); smf(a, q + 4, AS(0), wa_reg(1, 0))
    a('s_waitcnt lgkmcnt(0)')
    a('s_barrier')
    S()
    a(f'ds_read_b128 {vr(AS(4), 4)}, v{RA+3} offset:4096')
    for sp, hf in others:
        a(f'ds_read_b128 {vr(AS(hf * 4 + sp), 4)}, v{RA+sp-1} offset:{hf*4096}')
    smf(a, vAv, AS(0), wv_reg(0))
    osig = [hf * 4 + sp for sp, hf in others]
    kxh = [AS(0), AS(4), AS(osig[0]), AS(osig[1]), AS(osig[2]), AS(osig[3])]
    def KXL(f, home):
        kk, T = f >> 1, f & 1
        a(f'ds_read_b128 {vr(home,4)}, v{vL16} offset:{L_KX + T*4096 + kk*1024}')
    for i, sig in enumerate([4] + osig):
        a(f's_waitcnt lgkmcnt({6 - i})')
        for tau in range(2): smf(a, q + 4 * tau, AS(sig), wa_reg(tau, sig))
    S()
    def V(i): smf(a, vAv, AS(osig[i]), wv_reg(osig[i]))
    a('s_waitcnt vmcnt(0)')
    add64(a, sKx, sKx, 32 * 8192)
    if opt.get('warmpos', 0) == 0: a(f'global_load_dword v12, v13, s[{sKx}:{sKx+1}]{KLD}')
    KXL(0, kxh[0])
    a(f'v_add_f32 v{q}, v{q}, v{q+1}')
    a(f'v_add_f32 v{q+2}, v{q+2}, v{q+3}')
    a(f'v_add_f32 v{q+4}, v{q+4}, v{q+5}')
    a(f'v_add_f32 v{q+6}, v{q+6}, v{q+7}')
    a(f'v_cvt_pk_bf16_f32 v{q}, v{q}, v{q+4}')
    a(f'v_cvt_pk_bf16_f32 v{q+2}, v{q+2}, v{q+6}')
    a(f'ds_write2_b32 v{vWQ}, v{q}, v{q+2} offset0:0 offset1:{ROWB//4}')
    a(f'ds_write_b32 v{vFW}, v14 offset:{L_FQ}')
    S()
    a(f's_setprio {opt.get("prioAv", 0)}')
    smf(a, vAv, AS(4), wv_reg(4))
    KXL(1, kxh[1])
    V(4); V(5)
    V(0); V(1)
    KXL(2, kxh[2]); KXL(3, kxh[3])
    qb = [vAc, vAc + 4, AS(osig[4]), AS(osig[5])]
    F = vT
    Lr = a.uid('fwq')
    a(f's_mov_b32 s{sCnt}, {POLL_LIMIT}')
    a(f'{Lr}:')
    a(f'ds_read_b32 v{F}, v{vFR} offset:{L_FQ}')
    for kk in range(4): a(f'ds_read_b128 {vr(qb[kk],4)}, v{vRQ} offset:{kk*64}')
    a(f's_sub_u32 s{sCnt}, s{sCnt}, 1')
    a(f's_cbranch_scc1 {Lerr}')
    a('s_waitcnt lgkmcnt(4)')
    a(f'v_cmp_gt_u32 vcc, s{sS1}, v{F}')
    a(f's_cbranch_vccnz {Lr}')
    V(2); V(3)
    a(f's_setprio {opt.get("prioA", 2)}')
    KXL(4, kxh[4]); KXL(5, kxh[5])
    Sx0 = vE; Sx1 = 12 - 0
    S()
    a('s_waitcnt lgkmcnt(5)')
    mf(a, Sx0, kxh[0], qb[0], '0')
    KXL(6, kxh[0])
    a('s_waitcnt lgkmcnt(5)')
    mf(a, Sx0, kxh[2], qb[1], Sx0)
    Sx1 = kxh[2]
    a('s_waitcnt lgkmcnt(2)')
    mf(a, Sx0, kxh[4], qb[2], Sx0)
    KXL(7, kxh[4])
    mf(a, Sx1, kxh[1], qb[0], '0')
    mf(a, Sx1, kxh[3], qb[1], Sx1)
    km = [kxh[1], kxh[3], kxh[5], kxh[0]]
    a('s_waitcnt lgkmcnt(1)')
    mf(a, Sx0, kxh[0], qb[3], Sx0)
    mf(a, Sx1, kxh[5], qb[2], Sx1)
    Lr2 = a.uid('fwk')
    a(f's_mov_b32 s{sCnt}, {POLL_LIMIT}')
    a('s_waitcnt lgkmcnt(0)')
    mf(a, Sx1, kxh[4], qb[3], Sx1)
    S()
    VM0 = vAv
    Lk2 = a.uid('fwk_ok')
    a(f'ds_read_b32 v{F}, v{vFR} offset:{L_FK}')
    for kk in range(4): a(f'ds_read_b128 {vr(km[kk],4)}, v{vRK} offset:{kk*64}')
    a('s_waitcnt lgkmcnt(4)')
    a(f'v_cmp_gt_u32 vcc, s{sS1}, v{F}')
    a(f's_cbranch_vccz {Lk2}')
    a(f'{Lr2}:')
    a(f'ds_read_b32 v{F}, v{vFR} offset:{L_FK}')
    a(f's_sub_u32 s{sCnt}, s{sCnt}, 1')
    a(f's_cbranch_scc1 {Lerr}')
    a('s_waitcnt lgkmcnt(0)')
    a(f'v_cmp_gt_u32 vcc, s{sS1}, v{F}')
    a(f's_cbranch_vccnz {Lr2}')
    for kk in range(4): a(f'ds_read_b128 {vr(km[kk],4)}, v{vRK} offset:{kk*64}')
    a(f'{Lk2}:')
    Sm = kxh[4]
    a(f'v_add_f32 v{vAv}, v{vAv}, v{vAv+1}')
    a(f'v_add_f32 v{vAv+2}, v{vAv+2}, v{vAv+3}')
    a('s_waitcnt lgkmcnt(3)')
    mf(a, Sm, km[0], qb[0], '0')
    a(f'v_cvt_pk_bf16_f32 v{VM0}, v{vAv}, v{vAv+2}')
    a(f'v_mov_b32 v{VM0+1}, 0')
    a('s_waitcnt lgkmcnt(2)')
    mf(a, Sm, km[1], qb[1], Sm)
    mx = vT; t = vAv + 2; u = vAv + 3
    SX = [Sx0 + i for i in range(4)] + [Sx1 + i for i in range(4)]
    a(f'v_max3_f32 v{mx}, v{SX[0]}, v{SX[1]}, v{SX[2]}')
    a(f'v_max3_f32 v{t}, v{SX[4]}, v{SX[5]}, v{SX[6]}')
    a('s_waitcnt lgkmcnt(1)')
    mf(a, Sm, km[2], qb[2], Sm)
    a(f'v_max3_f32 v{mx}, v{mx}, v{SX[3]}, v{SX[7]}')
    a('s_waitcnt lgkmcnt(0)')
    mf(a, Sm, km[3], qb[3], Sm)
    vm_store(a, VM0, km[2])
    add64(a, sVm, sVm, 32 * 2048)
    a(f's_cmp_eq_u32 s{sS}, 63')
    a(f's_cbranch_scc1 {Ldone}')
    VX0, VX1, VM1, F3 = km[0], km[1], km[2], km[3]
    a(f's_lshl_b32 s{sT2}, s{sW}, 11')
    a(f'v_add_u32 v{u}, s{sT2}, v{vL16}')
    a(f'ds_read_b128 {vr(VX0,4)}, v{u} offset:{L_VX}')
    a(f'ds_read_b128 {vr(VX1,4)}, v{u} offset:{L_VX+1024}')
    a(f'v_lshrrev_b32 v{km[3]+1}, 2, v{vL16}')
    a(f's_lshl_b32 s{sT2}, s{sW}, 8')
    a(f'v_add_u32 v{km[3]+1}, s{sT2}, v{km[3]+1}')
    S()
    a(f'v_max3_f32 v{mx}, v{mx}, v{t}, v{Sm}')
    a(f'v_max_f32 v{mx}, v{mx}, v{Sm+1}')
    a(f'v_mov_b32 v{t}, v{mx}')
    a(f'v_permlane32_swap_b32 v{mx}, v{t}')
    a(f'v_max_f32 v{mx}, v{mx}, v{t}')
    a(f'v_mov_b32 v{t}, v{mx}')
    a(f'v_permlane16_swap_b32 v{mx}, v{t}')
    a(f'v_max_f32 v{mx}, v{mx}, v{t}')
    a(f'v_mul_f32 v{mx}, s{sQs}, v{mx}')
    for r in SX:
        a(f'v_fma_f32 v{r}, v{r}, s{sQs}, -v{mx}')
        a(f'v_exp_f32 v{r}, v{r}')
    PX = Sx0
    a(f'v_cvt_pk_bf16_f32 v{PX}, v{SX[0]}, v{SX[1]}')
    a(f'v_cvt_pk_bf16_f32 v{PX+1}, v{SX[2]}, v{SX[3]}')
    a(f'v_cvt_pk_bf16_f32 v{PX+2}, v{SX[4]}, v{SX[5]}')
    a(f'v_cvt_pk_bf16_f32 v{PX+3}, v{SX[6]}, v{SX[7]}')
    O = vAc; LS = qb[2]; ONE = qb[3]
    a(f'v_mov_b32 v{ONE}, 0x3f803f80')
    a(f'v_mov_b32 v{ONE+1}, 0x3f803f80')
    a(f'v_mov_b64 {vr(ONE+2,2)}, {vr(ONE,2)}')
    Lr3 = a.uid('fwv')
    a(f's_mov_b32 s{sCnt}, {POLL_LIMIT}')
    a(f'ds_read_b32 v{F3}, v{vFW} offset:{L_FV}')
    a(f'ds_read_b32 v{VM1}, v{km[3]+1} offset:{L_VB}')
    a('s_waitcnt lgkmcnt(2)')
    mf(a, LS, ONE, PX, '0')
    a(f'v_fma_f32 v{t}, v{Sm}, s{sQs}, -v{mx}')
    a(f'v_fma_f32 v{u}, v{Sm+1}, s{sQs}, -v{mx}')
    mf(a, O, VX0, PX, '0')
    a(f'v_exp_f32 v{t}, v{t}')
    a(f'v_exp_f32 v{u}, v{u}')
    mf(a, O + 4, VX1, PX, '0')
    PM = Sm + 2
    a(f'v_mov_b32 v{PM+1}, 0')
    a(f'v_cvt_pk_bf16_f32 v{PM}, v{t}, v{u}')
    a(f'v_mov_b32 v{VM1+1}, 0')
    Lv = a.uid('fwv_in')
    a(f's_branch {Lv}')
    a(f'{Lr3}:')
    a(f'ds_read_b32 v{F3}, v{vFW} offset:{L_FV}')
    a(f'ds_read_b32 v{VM1}, v{km[3]+1} offset:{L_VB}')
    a(f's_sub_u32 s{sCnt}, s{sCnt}, 1')
    a(f's_cbranch_scc1 {Lerr}')
    a(f'{Lv}:')
    a('s_waitcnt lgkmcnt(0)')
    a(f'v_cmp_gt_u32 vcc, s{sS1}, v{F3}')
    a(f's_cbranch_vccnz {Lr3}')
    mf16(a, LS, ONE, PM, LS)
    mf16(a, O, VM0, PM, O)
    mf16(a, O + 4, VM1, PM, O + 4)
    S()
    seq = [(t_, c) for c in range(2) for t_ in range(4)]
    bufs = [AS(0), AS(4)]
    for i in range(2):
        t_, c = seq[i]
        a(f'ds_read_b128 {vr(bufs[i],4)}, v{vWB} offset:{wo_off(t_, c, 0)}')
        a(f'ds_read_b128 {vr(bufs[i]+4,4)}, v{vWB} offset:{wo_off(t_, c, 1)}')
    a(f'v_rcp_f32 v{t}, v{LS}')
    OP = vE
    for i in range(4):
        a(f'v_mul_f32 v{O+2*i}, v{O+2*i}, v{t}')
        a(f'v_mul_f32 v{O+2*i+1}, v{O+2*i+1}, v{t}')
        a(f'v_cvt_pk_bf16_f32 v{OP+i}, v{O+2*i}, v{O+2*i+1}')
    a(f'ds_write_b128 v{vWO}, {vr(OP,4)}')
    t_, c = seq[2]
    a(f'ds_read_b128 {vr(AS(6),4)}, v{vWB} offset:{wo_off(t_, c, 0)}')
    a(f'ds_read_b128 {vr(AS(7),4)}, v{vWB} offset:{wo_off(t_, c, 1)}')
    ACC = vAc
    for i in range(0, 12, 2): a(f'v_mov_b64 {vr(ACC+i,2)}, 0')
    a('s_waitcnt lgkmcnt(2)')
    S()
    a('s_barrier')
    for i in range(12, 16, 2): a(f'v_mov_b64 {vr(ACC+i,2)}, 0')
    bufs = [AS(0), AS(4), AS(6)]
    wo_phase(a, st, 3, bufs, AS(2), ACC, S)
    S()
    S.dump()
    a(f's_add_u32 s{sS}, s{sS}, 1')
    a.fence(4)
    a(f's_branch {Lloop}')

def emit_loop_B(a, Lerr, Ldone, fast, debug, stamps, opt):
    st = '' if fast else ' sc1'
    S = Stamps(a, stamps)
    bK, bV, bO, bOwn, RA = 16, 24, 28, 56, 60
    osig = [0] + [hf * 4 + sp for sp, hf in others]
    BS = {sig: bO + 4 * i for i, sig in enumerate(osig)}
    def kv_dma():
        a(f's_lshl_b32 s{sT2}, s{sW}, 11')
        a(f's_add_u32 m0, s{sT2}, {L_KX}')
        a(f'global_load_lds_dwordx4 v{vL16}, s[{sKx}:{sKx+1}]{KLD}')
        a(f'global_load_lds_dwordx4 v{vL16}, s[{sKx}:{sKx+1}] offset:1024{KLD}')
        a(f's_add_u32 m0, s{sT2}, {L_VX}')
        a(f'global_load_lds_dwordx4 v{vL16}, s[{sVx}:{sVx+1}]{KLD}')
        a(f'global_load_lds_dwordx4 v{vL16}, s[{sVx}:{sVx+1}] offset:1024{KLD}')
        add64(a, sKx, sKx, 32 * 8192)
        add64(a, sVx, sVx, 32 * 8192)
    def WVL(sig, b):
        a(f'ds_read_b128 {vr(b,4)}, v{vWB} offset:{wo_off(sig & 3, sig >> 2, 0)}')
        a(f'ds_read_b128 {vr(b+4,4)}, v{vWB} offset:{wo_off(sig & 3, sig >> 2, 1)}')
    kv_dma()
    a(f'v_mov_b32 v{vDummy}, 0')
    a(f's_setprio {opt.get("prioB", 0)}')
    Lloop = a.uid('B_loop')
    step_bases(a)
    a(f'{Lloop}:')
    a('s_barrier')
    S()
    def pre():
        WVL(4, bO + 8)
        for sp in range(1, 4): a(f'v_xor_b32 v{RA+sp-1}, {sp*1024}, v{vPR}')
        for i in range(0, 12, 2): a(f'v_mov_b64 {vr(bK+i,2)}, 0')
        a(f'v_mov_b32 v{vT+2}, s{sS1}')
    poll1(a, bOwn, vL16, sMemR, 2048, Lerr, opt, pre)
    S()
    a(f's_setprio {opt.get("prioBk", 1)}')
    a(f'ds_write_b128 v{vPR}, {vr(bOwn,4)} offset:4096')
    k = bK
    smf(a, k, bOwn, wa_reg(0, 4)); smf(a, k + 4, bOwn, wa_reg(1, 4))
    a('s_waitcnt lgkmcnt(0)')
    a('s_barrier')
    S()
    smf(a, bV, bOwn, vr(bO + 8, 8))
    a(f'ds_read_b128 {vr(BS[0], 4)}, v{vPR}')
    for sp, hf in others:
        a(f'ds_read_b128 {vr(BS[hf * 4 + sp], 4)}, v{RA+sp-1} offset:{hf*4096}')
    mg = opt.get('mega')
    X = bOwn
    for i, sig in enumerate(osig):
        a(f's_waitcnt lgkmcnt({6 - i + (2 if i >= 3 else 0)})')
        for tau in range(2): smf(a, k + 4 * tau, BS[sig], wa_reg(tau, sig))
        if i == 2:
            a('s_waitcnt vmcnt(0)')
            WVL(osig[0], X)
    S()
    a(f'v_add_f32 v{k}, v{k}, v{k+1}')
    a(f'v_add_f32 v{k+2}, v{k+2}, v{k+3}')
    a(f'v_add_f32 v{k+4}, v{k+4}, v{k+5}')
    a(f'v_add_f32 v{k+6}, v{k+6}, v{k+7}')
    a(f'v_cvt_pk_bf16_f32 v{vT}, v{k}, v{k+4}')
    a(f'v_cvt_pk_bf16_f32 v{vT+1}, v{k+2}, v{k+6}')
    a(f'ds_write2_b32 v{vWQ}, v{vT}, v{vT+1} offset0:0 offset1:{ROWB//4}')
    a(f'ds_write_b32 v{vFW}, v{vT+2} offset:{L_FK}')
    S()
    a(f's_setprio {opt.get("prioB", 0)}')
    Y = bK
    WVL(osig[1], Y)
    a('s_waitcnt lgkmcnt(4)')
    smf(a, bV, BS[osig[0]], vr(X, 8))
    WVL(osig[2], X)
    a('s_waitcnt lgkmcnt(2)')
    smf(a, bV, BS[osig[1]], vr(Y, 8))
    X, Y = Y, X
    Z = bO
    WVL(osig[3], X); WVL(osig[4], Z)
    a('s_waitcnt lgkmcnt(4)')
    smf(a, bV, BS[osig[2]], vr(Y, 8))
    WVL(osig[5], Y)
    a('s_waitcnt lgkmcnt(4)')
    smf(a, bV, BS[osig[3]], vr(X, 8))
    WVL(osig[6], X)
    a('s_waitcnt lgkmcnt(4)')
    smf(a, bV, BS[osig[4]], vr(Z, 8))
    a('s_waitcnt lgkmcnt(2)')
    smf(a, bV, BS[osig[5]], vr(Y, 8))
    a(f'v_lshrrev_b32 v{vT+1}, 2, v{vPR}')
    a('s_waitcnt lgkmcnt(0)')
    smf(a, bV, BS[osig[6]], vr(X, 8))
    a(f'v_add_f32 v{bV}, v{bV}, v{bV+1}')
    a(f'v_add_f32 v{bV+2}, v{bV+2}, v{bV+3}')
    a(f'v_cvt_pk_bf16_f32 v{vT}, v{bV}, v{bV+2}')
    a(f'ds_write_b32 v{vT+1}, v{vT} offset:{L_VB}')
    a(f'ds_write_b32 v{vFW}, v{vT+2} offset:{L_FV}')
    a(f'v_lshrrev_b32 v{vT+1}, 6, v{vL16}'); a(f'v_and_b32 v{vT+1}, 7, v{vT+1}'); a(f'v_mul_u32_u24 v{vT+1}, {ROWB}, v{vT+1}')
    a(f'v_and_b32 v32, 0x30, v{vL16}'); a(f'v_add_u32 v{vT+1}, v{vT+1}, v32'); a(f'v_lshl_add_u32 v{vT+1}, v{vFW}, 4, v{vT+1}')
    a(f'ds_read_b128 v[36:39], v{vT+1} offset:{L_KB}')
    vm_store(a, vT, 32)
    add64(a, sVm, sVm, 32 * 2048)
    a('s_waitcnt lgkmcnt(0)')
    a('s_mov_b64 exec, 0xffffffff')
    if not NOST[0]: a(f'global_store_dwordx4 v{vKmo}, v[36:39], s[{sKm}:{sKm+1}]{NOST[1]}')
    a('s_mov_b64 exec, -1')
    add64(a, sKm, sKm, 32 * 2048)
    a(f's_cmp_eq_u32 s{sS}, 63')
    a(f's_cbranch_scc1 {Ldone}')
    S()
    if mg:
        Lnp = a.uid('nprog')
        a(f's_cmp_lg_u32 s{sW}, 0'); a(f's_cbranch_scc1 {Lnp}')
        a(f's_lshl_b32 s{sT2}, s{sH}, 7'); a(f's_add_u32 s{sT2}, s{sT2}, {FL_PROG}')
        a(f'v_mov_b32 v{vT}, s{sT2}'); a(f'v_mov_b32 v{vT+1}, s{sS}')
        a('s_mov_b64 exec, 1')
        a(f'global_store_dword v{vT}, v{vT+1}, s[{mg["sFl"]}:{mg["sFl"]+1}] sc1')
        a('s_mov_b64 exec, -1')
        a(f'{Lnp}:')
        Lok = a.uid('cntok'); Lsp = a.uid('cntsp')
        a(f's_add_u32 s{mg["sCnt"]}, s{mg["sCnt"]}, 128')
        a(f'v_mov_b32 v15, s{mg["sCnt"]}')
        a(f's_cmp_ge_u32 s{sS}, {63 - opt.get("wdist", 1)}'); a(f's_cbranch_scc1 {Lok}')
        a(f's_mov_b32 s{sCnt}, 8000')
        a(f'{Lsp}:')
        a(f'v_and_b32 v{vDummy}, 0xff, v{vDummy}')
        a(f'v_cmp_eq_u32 vcc, 4, v{vDummy}')
        a(f's_cbranch_vccnz {Lok}')
        a(f'global_load_dword v{vDummy}, v15, s[{mg["sFl"]}:{mg["sFl"]+1}] offset:{128*opt.get("wdist", 1)} sc1')
        a(f's_sub_u32 s{sCnt}, s{sCnt}, 1'); a(f's_cbranch_scc1 {Lerr}')
        a('s_waitcnt vmcnt(0)')
        a(f's_branch {Lsp}')
        a(f'{Lok}:')
        a(f'global_load_dword v{vDummy}, v15, s[{mg["sFl"]}:{mg["sFl"]+1}] offset:{128*opt.get("wdist", 1) + 128} sc1')
    Lnr = a.uid('norearm')
    a(f's_cmp_eq_u32 s{sS}, 0')
    a(f's_cbranch_scc1 {Lnr}')
    a(f'v_mov_b64 {vr(32,2)}, -1')
    a(f's_mov_b64 exec, s[{sPubM}:{sPubM+1}]')
    a(f'global_store_dwordx2 v{vPub}, {vr(32,2)}, s[{sPrevM}:{sPrevM+1}]{st}')
    a('s_mov_b64 exec, -1')
    a(f'{Lnr}:')
    ACC = 48
    for i in range(0, 16, 2): a(f'v_mov_b64 {vr(ACC+i,2)}, 0')
    PB = 28; SA = 36; SI = 40; RD = 44; OA = 16
    a('s_waitcnt lgkmcnt(0)')
    S()
    a('s_barrier')
    a(f'ds_read_b128 {vr(OA,4)}, v{vRO}')
    a(f'ds_read_b128 {vr(OA+4,4)}, v{vRO} offset:128')
    a(f's_setprio {opt.get("prioBwo", 3)}')
    a('s_waitcnt lgkmcnt(1)')
    S()
    for t_ in range(4): smf(a, ACC + 4 * t_, OA, vr(WvR + t_ * 8, 8))
    a('s_waitcnt lgkmcnt(0)')
    for t_ in range(4): smf(a, ACC + 4 * t_, OA + 4, vr(WvR + (4 + t_) * 8, 8))
    epilogue_store(a, ACC, st)
    a(f's_setprio {opt.get("prioB", 0)}')
    S()
    kv_dma()
    cc_, n_, one = 41, 42, 43
    a(f'v_bfe_u32 v{cc_}, v{vL16}, 4, 2')
    a(f'v_bfe_u32 v{n_}, v{vL16}, 6, 2')
    a(f'v_cmp_eq_u32 vcc, 3, v{cc_}')
    a(f'v_mov_b32 v{one}, 0x3f80')
    a(f'v_mov_b32 v{RD}, 0x3f800000')
    a(f'v_cndmask_b32 v{one}, v{one}, v{RD}, vcc')
    a(f'v_cndmask_b32 v{cc_}, v{cc_}, 0, vcc')
    a(f'v_or_b32 v{cc_}, 12, v{cc_}')
    a(f'v_mul_u32_u24 v{SI}, 0x1111, v{cc_}')
    a(f'v_cmp_eq_u32 vcc, 0, v{n_}')
    a(f'v_cndmask_b32 v{SA}, 0, v{one}, vcc')
    a(f'v_cmp_eq_u32 vcc, 1, v{n_}')
    a(f'v_cndmask_b32 v{SA+1}, 0, v{one}, vcc')
    a(f'v_mov_b64 {vr(SA+2,2)}, {vr(SA,2)}')
    a(f'v_mov_b64 {vr(RD,2)}, 0')
    a(f'v_mov_b64 {vr(RD+2,2)}, 0')
    a(f's_mov_b64 s[{sEx}:{sEx+1}], s[{sMemW}:{sMemW+1}]')
    a(f's_mov_b32 s{sT0}, s{sTag}')
    a(f's_add_u32 s{sS}, s{sS}, 1')
    step_bases(a)
    for _ in range(opt.get('rdelay', 2)): a('s_nop 15')
    Lt1 = a.uid('tag1'); Ltd = a.uid('tagd')
    a(f's_cmp_lg_u32 s{sT0}, 0'); a(f's_cbranch_scc1 {Lt1}')
    poll2t(a, PB, PB + 4, vPR, sPrevR, -2048, 2048, Lerr, opt, 0)
    a(f's_branch {Ltd}')
    a(f'{Lt1}:')
    poll2t(a, PB, PB + 4, vPR, sPrevR, -2048, 2048, Lerr, opt, 1)
    a(f'{Ltd}:')
    S()
    smf(a, RD, SA, vr(PB, 8), idx=SI)
    for i in range(4): a(f'v_add_f32_dpp v{RD+i}, v{RD+i}, v{RD+i} row_ror:4 row_mask:0xf bank_mask:0xf')
    for i in range(4): a(f'v_add_f32_dpp v{RD+i}, v{RD+i}, v{RD+i} row_ror:8 row_mask:0xf bank_mask:0xf')
    a(f'v_cvt_pk_bf16_f32 v{RD}, v{RD}, v{RD+1}')
    a(f'v_cvt_pk_bf16_f32 v{RD+1}, v{RD+2}, v{RD+3}')
    a(f's_mov_b64 exec, s[{sPubM}:{sPubM+1}]')
    a(f'global_store_dwordx2 v{vPub}, {vr(RD,2)}, s[{sEx}:{sEx+1}]{st}')
    if debug:
        add64(a, sDbgM, sDbgM, 8192)
        a(f'global_store_dwordx2 v{vPub}, {vr(RD,2)}, s[{sDbgM}:{sDbgM+1}]')
    a('s_mov_b64 exec, -1')
    S()
    S.dump(41)
    a(f's_branch {Lloop}')

def build_rec_test(fast=True, debug=False, stamps=False, **opt):
    NOST[0] = bool(opt.get('nost')); NOST[1] = opt.get('stf', ' sc1')
    a = Asm()
    a.raw('; @launch kernel=rec_kernel grid=(256,1,1) block=(512,1,1) lds=163840')
    a.raw('.amdgcn_target "amdgcn-amd-amdhsa--gfx950"\n.text\n.globl rec_kernel\n.p2align 8\n.type rec_kernel,@function\nrec_kernel:')
    a('s_cmp_ge_u32 s2, 256')
    a('s_cbranch_scc1 L_end')
    a(f's_load_dwordx4 s[{sWq}:{sWq+3}], s[0:1], {KA["Wq"]}')
    a(f's_load_dwordx4 s[{sWv}:{sWv+3}], s[0:1], {KA["Wv"]}')
    a(f's_load_dwordx2 s[{sM0in}:{sM0in+1}], s[0:1], {KA["mem0"]}')
    a(f's_load_dwordx2 s[{sDbg}:{sDbg+1}], s[0:1], {KA["dbg"]}')
    a(f's_load_dwordx2 s[{sWs}:{sWs+1}], s[0:1], {KA["ws"]}')
    a(f'v_lshrrev_b32 v1, 6, v0')
    a(f'v_and_b32 v0, 63, v0')
    a(f'v_readfirstlane_b32 s{sWv8}, v1')
    a(f's_getreg_b32 s{sT2}, hwreg(HW_REG_XCC_ID, 0, 4)')
    a('s_waitcnt lgkmcnt(0)')
    a(f's_cmp_lg_u32 s{sT2}, 0')
    a('s_cbranch_scc1 L_end')
    a(f's_cmp_lg_u32 s{sWv8}, 0')
    a('s_cbranch_scc1 L_role_wait')
    a('v_mov_b32 v2, 0')
    a('v_mov_b32 v3, 1')
    a('s_mov_b64 exec, 1')
    a(f'global_atomic_add v4, v2, v3, s[{sDbg}:{sDbg+1}] sc0 sc1')
    a('s_waitcnt vmcnt(0)')
    a(f'v_mov_b32 v2, {L_MISC}')
    a('ds_write_b32 v2, v4')
    a('s_mov_b64 exec, -1')
    a('s_waitcnt lgkmcnt(0)')
    a('L_role_wait:')
    a('s_barrier')
    a(f'v_mov_b32 v2, {L_MISC}')
    a('ds_read_b32 v4, v2')
    a('s_waitcnt lgkmcnt(0)')
    a(f'v_readfirstlane_b32 s{sH}, v4')
    a('s_nop 3')
    a(f's_cmp_ge_u32 s{sH}, 32')
    a('s_cbranch_scc1 L_end')
    a(f's_memrealtime s[{sTm}:{sTm+1}]')
    emit_rec_setup(a)
    emit_heads_barrier(a, 'L_err')
    a(f's_memrealtime s[{sTm+2}:{sTm+3}]')
    a(f's_mov_b32 s{sS}, 0')
    a('s_waitcnt lgkmcnt(0)')
    a(f's_cmp_lg_u32 s{sRole}, 0')
    a('s_cbranch_scc1 L_roleB')
    emit_loop_A(a, 'L_err', 'L_done', fast, debug, stamps, opt)
    a('L_roleB:')
    emit_loop_B(a, 'L_err', 'L_done', fast, debug, stamps, opt)
    a('L_err:')
    a('s_mov_b64 exec, -1')
    a('v_mov_b32 v11, 40')
    a('v_mov_b32 v12, 1')
    a(f'global_atomic_add v11, v12, s[{sDbg}:{sDbg+1}] sc1')
    a('L_done:')
    a(f's_memrealtime s[100:101]')
    a('s_waitcnt vmcnt(0) lgkmcnt(0)')
    a(f's_cmp_lg_u32 s{sH}, 5')
    a('s_cbranch_scc1 L_end')
    a(f's_sub_u32 s{sT0}, s{sTm+2}, s{sTm}')
    a(f's_sub_u32 s{sT1}, s100, s{sTm+2}')
    a(f'v_mov_b32 v18, s{sT0}')
    a(f'v_mov_b32 v19, s{sT1}')
    a('v_mov_b32 v16, 64')
    a(f'global_store_dwordx2 v16, v[18:19], s[{sDbg}:{sDbg+1}]')
    a('L_end:')
    a('s_endpgm')
    a.raw(kernel_desc('rec_kernel', vgpr=256, accum=128))
    return a.text()

if __name__ == '__main__':
    open('rec_test.s', 'w').write(build_rec_test(debug=True))
    open('rec_test_nd.s', 'w').write(build_rec_test())
    open('rec_test_st.s', 'w').write(build_rec_test(stamps=True))
    for i, o in enumerate([dict(nost=1), dict(stf=''), dict(warmpos=9), dict(nost=1, warmpos=9)]):
        open(f'rec_x{i}.s', 'w').write(build_rec_test(**o))
```

```python
from asmlib import *
from layout import *
import pre, qkv, att, mlp
import rec8 as rec5
from pre import add64, f2u, unpack8, ln_stats
KNAME = 'adaLN_cond__memory_aug_recurrent_mem_tr__mixer_token_mlp__prompt_kernel'
sWid, sWave, sDbgP, sWsP, sFl, sLim = 90, 91, 92, 94, 96, 98
WLIM = 8000
SC = ' sc1'

def wave_poll(a, sbase, off_expr, cmp, val, Lerr, vt=10, mask=None, sleep=2, drain=True):
    L = a.uid('wp'); Lok = a.uid('wpok')
    a(f'v_mov_b32 v{vt}, {off_expr}')
    a(f's_mov_b32 s{sLim}, {WLIM}')
    a(f'{L}:')
    a(f'global_load_dword v{vt+1}, v{vt}, s[{sbase}:{sbase+1}] sc1')
    a('s_waitcnt vmcnt(0)')
    if mask is not None: a(f'v_and_b32 v{vt+1}, {mask}, v{vt+1}')
    a(f'v_cmp_{cmp}_u32 vcc, {val}, v{vt+1}')
    a(f's_cbranch_vccnz {Lok}')
    a(f's_sleep {sleep}')
    a(f's_sub_u32 s{sLim}, s{sLim}, 1')
    a(f's_cbranch_scc0 {L}')
    a(f's_branch {Lerr}')
    a(f'{Lok}:')

def wg_wait(a, polls, Lerr):
    L = a.uid('wgw')
    a(f's_cmp_lg_u32 s{sWave}, 0')
    a(f's_cbranch_scc1 {L}')
    polls()
    a(f'{L}:')
    a('s_barrier')

def signal(a, sbase, off_expr, val, vt=10):
    a(f'v_mov_b32 v{vt}, {off_expr}')
    a(f'v_mov_b32 v{vt+1}, {val}')
    a('s_mov_b64 exec, 1')
    a(f'global_atomic_add v{vt}, v{vt+1}, s[{sbase}:{sbase+1}] sc1')
    a('s_mov_b64 exec, -1')

def wg_signal(a, sbase, off_expr, val):
    a('s_waitcnt vmcnt(0)')
    a('s_barrier')
    L = a.uid('wgs')
    a(f's_cmp_lg_u32 s{sWave}, 0')
    a(f's_cbranch_scc1 {L}')
    signal(a, sbase, off_expr, val)
    a(f'{L}:')

def stamp(a, idx, on):
    if not on: return
    L = a.uid('stp')
    a(f's_cmp_lg_u32 s{sWave}, 0'); a(f's_cbranch_scc1 {L}')
    a('s_memrealtime s[100:101]')
    a(f's_lshl_b32 s99, s{sWid}, 7')
    a(f's_add_u32 s99, s99, {WS_MEMDBG + 4*idx}')
    a('v_mov_b32 v11, s99')
    a('s_waitcnt lgkmcnt(0)')
    a('v_mov_b32 v12, s100')
    a(f'global_store_dword v11, v12, s[{sWsP}:{sWsP+1}]')
    a(f'{L}:')

def build(stamps=False, recopt=None, psleep=1):
    recopt = recopt or {}
    a = Asm()
    a.raw(f'; @launch grid=(256,1,1) block=(512,1,1) lds=163840')
    a.raw('.amdgcn_target "amdgcn-amd-amdhsa--gfx950"\n.text')
    pre.header(a, KNAME)
    a('s_cmp_ge_u32 s2, 256'); a('s_cbranch_scc1 L_end')
    a(f's_load_dwordx4 s[{sDbgP}:{sDbgP+3}], s[0:1], {KA["dbg"]}')
    a('v_lshrrev_b32 v1, 6, v0'); a('v_and_b32 v0, 63, v0'); a(f'v_readfirstlane_b32 s{sWave}, v1')
    a('s_getreg_b32 s20, hwreg(HW_REG_XCC_ID, 0, 4)')
    a('s_waitcnt lgkmcnt(0)')
    add64(a, sFl, sWsP, WS_FL)
    LM = 163840 - 64
    a(f's_load_dwordx4 s[12:15], s[0:1], {KA["c"]}')
    a(f's_load_dwordx2 s[16:17], s[0:1], {KA["x"]}')
    a(f's_mov_b32 s{sWid}, s2')
    stamp(a, 0, stamps)
    off, m_, r, t = 61, 62, 63, 64
    R, X, SA, CA = 68, 72, 80, 88
    a('s_waitcnt lgkmcnt(0)')
    a(f's_cmp_lg_u32 s{sWave}, 7'); a('s_cbranch_scc1 L_role_skip')
    a('s_and_b32 s20, s20, 7')
    a('v_mov_b32 v2, 0'); a('v_mov_b32 v3, 1')
    a('s_mov_b64 exec, 1')
    a(f's_cmp_lg_u32 s20, {9 if recopt.get("noxcd") else 0}'); a('s_cbranch_scc1 L_role_worker')
    a(f'global_atomic_add v4, v2, v3, s[{sDbgP}:{sDbgP+1}] sc0 sc1')
    a('s_waitcnt vmcnt(0)')
    a('v_readfirstlane_b32 s22, v4')
    a('s_cmp_lt_u32 s22, 32'); a('s_cbranch_scc1 L_role_done')
    a('L_role_worker:')
    a('v_mov_b32 v2, 128')
    a(f'global_atomic_add v4, v2, v3, s[{sDbgP}:{sDbgP+1}] sc0 sc1')
    a('s_waitcnt vmcnt(0)')
    a('v_readfirstlane_b32 s22, v4')
    a('s_sub_u32 s23, 255, s22')
    a('s_add_u32 s22, s22, 32')
    a('s_cmp_lt_u32 s22, 256')
    a('s_cselect_b32 s22, s22, s23')
    a('L_role_done:')
    a('v_mov_b32 v4, s22'); a(f'v_mov_b32 v2, {LM}')
    a('ds_write_b32 v2, v4')
    a('s_mov_b64 exec, -1')
    a('s_waitcnt lgkmcnt(0)')
    a('L_role_skip:')
    a('s_cmp_ge_u32 s2, 64'); a('s_cbranch_scc1 L_nomod')
    a('s_and_b32 s19, s2, 7'); a('s_sub_u32 s19, s19, 1'); a('s_cmp_ge_u32 s19, 6'); a('s_cbranch_scc1 L_nomod')
    a('s_lshr_b32 s18, s2, 3'); a('s_mul_i32 s18, s18, 6'); a('s_add_u32 s18, s18, s19')
    a('v_lshlrev_b32 v2, 4, v0'); a('s_lshl_b32 s19, s18, 10'); a('v_add_u32 v2, s19, v2')
    for i in range(4): a(f'v_mov_b32 v{4+i}, 0')
    a(f'global_store_dwordx4 v2, v[4:7], s[{sFl}:{sFl+1}] sc1')
    add64(a, 20, sWsP, WS_MOD)
    pre.emit_mod_task(a, 18, sWave, 12, 14, 20, SC, lds_base=16384)
    wg_signal(a, sDbgP, 44, 1)
    a('L_nomod:')
    a('s_barrier')
    a(f'v_mov_b32 v2, {LM}')
    a('ds_read_b32 v4, v2')
    a('s_waitcnt lgkmcnt(0)')
    a(f'v_readfirstlane_b32 s{sWid}, v4')
    a('s_nop 3')
    a(f's_cmp_ge_u32 s{sWid}, 256')
    a('s_cbranch_scc1 L_end')
    a(f's_cmp_lt_u32 s{sWid}, 32')
    a('s_cbranch_scc1 L_head')
    a(f's_sub_u32 s{sWid}, s{sWid}, 32')
    add64(a, 20, sWsP, WS_MOD); add64(a, 22, sWsP, WS_H)
    a(f's_load_dwordx4 s[4:7], s[0:1], {KA["Wq"]}')
    a(f's_load_dwordx2 s[8:9], s[0:1], {KA["Wv"]}')
    g = qkv.QKV(a, 4, 6, 8, sWsP, sWave, st=SC)
    g.vDma, g.vTr0, g.vTr1, g.vSK, g.vSV, g.vT = 100, 101, 102, 103, 104, 105
    WT = 32768
    sGrp = 18
    a(f's_mov_b32 s{sGrp}, s{sWid}')
    g.setup()
    a(f'v_add_u32 v{g.vTr0}, {WT}, v{g.vTr0}'); a(f'v_add_u32 v{g.vTr1}, {WT}, v{g.vTr1}')
    a(f's_mov_b32 s{g.sBuf}, {WT}')
    a('L_ln_loop:')
    a(f's_lshl_b32 s40, s{sGrp}, 3'); a(f's_add_u32 s40, s40, s{sWave}'); a('s_lshl_b32 s40, s40, 10')
    a(f'v_lshlrev_b32 v{t}, 4, v0'); a(f'v_add_u32 v{off}, s40, v{t}')
    a(f'global_load_dwordx4 {vr(R,4)}, v{off}, s[16:17]')
    a('s_waitcnt lgkmcnt(0)')
    a(f's_cmp_ge_u32 s{sWid}, 192'); a('s_cbranch_scc1 L_now')
    g.dma(sWid)
    a('s_waitcnt vmcnt(8)')
    a('s_branch L_now2')
    a('L_now:')
    a('s_waitcnt vmcnt(0)')
    a('L_now2:')
    unpack8(a, R, X)
    ln_stats(a, X, m_, r, t)
    wg_wait(a, lambda: wave_poll(a, sDbgP, 44, 'le', 48, 'L_err', vt=44, sleep=1), 'L_err')
    a(f'v_lshlrev_b32 v{t}, 5, v0')
    a(f'global_load_dwordx4 {vr(SA,4)}, v{t}, s[20:21] sc1')
    a(f'global_load_dwordx4 {vr(SA+4,4)}, v{t}, s[20:21] offset:16 sc1')
    a(f'global_load_dwordx4 {vr(CA,4)}, v{t}, s[20:21] offset:2048 sc1')
    a(f'global_load_dwordx4 {vr(CA+4,4)}, v{t}, s[20:21] offset:2064 sc1')
    a('s_waitcnt vmcnt(0)')
    for i in range(8):
        a(f'v_add_f32 v{CA+i}, 1.0, v{CA+i}')
        a(f'v_fma_f32 v{X+i}, v{X+i}, v{CA+i}, v{SA+i}')
    for i in range(4): a(f'v_cvt_pk_bf16_f32 v{R+i}, v{X+2*i}, v{X+2*i+1}')
    a(f's_mul_i32 s40, s{sWave}, 1040')
    a(f'v_lshlrev_b32 v{t}, 4, v0'); a(f'v_add_u32 v{t}, s40, v{t}')
    a(f'ds_write_b128 v{t}, {vr(R,4)}')
    a(f'v_and_b32 v{t}, 7, v0'); a(f'v_mul_u32_u24 v{m_}, 1040, v{t}')
    a(f'v_lshrrev_b32 v{r}, 3, v0'); a(f's_lshl_b32 s40, s{sWave}, 3'); a(f'v_add_u32 v{r}, s40, v{r}')
    a(f'v_lshl_add_u32 v{m_}, v{r}, 4, v{m_}')
    a('s_waitcnt lgkmcnt(0)'); a('s_barrier')
    a(f'ds_read_b128 {vr(R,4)}, v{m_}')
    a(f'v_lshlrev_b32 v{r}, 9, v{r}'); a(f'v_lshl_add_u32 v{r}, v{t}, 4, v{r}')
    a(f's_lshr_b32 s40, s{sGrp}, 2'); a('s_lshl_b32 s40, s40, 15'); a(f's_and_b32 s41, s{sGrp}, 3'); a('s_lshl_b32 s41, s41, 7'); a('s_add_u32 s40, s40, s41')
    a(f'v_add_u32 v{r}, s40, v{r}')
    a('s_waitcnt lgkmcnt(0)')
    a(f'global_store_dwordx4 v{r}, {vr(R,4)}, s[22:23] sc1')
    a(f's_lshr_b32 s40, s{sGrp}, 2'); a('s_lshl_b32 s40, s40, 6'); a(f's_add_u32 s40, s40, {FL_HD}')
    a('s_waitcnt vmcnt(0)')
    signal(a, sFl, 's40', 1, vt=44)
    a(f's_add_u32 s{sGrp}, s{sGrp}, 32')
    a(f's_cmp_lt_u32 s{sGrp}, 224'); a('s_cbranch_scc1 L_ln_done')
    a(f's_cmp_lt_u32 s{sGrp}, 256'); a('s_cbranch_scc1 L_ln_loop')
    a('L_ln_done:')
    stamp(a, 1, stamps)
    a(f's_cmp_ge_u32 s{sWid}, 192'); a('s_cbranch_scc1 L_qkv_done')
    a('s_barrier')
    sRb, sSeg = 18, 19
    vH = 106
    a(f'v_lshlrev_b32 v110, 4, v0')
    for i in range(1, 8): a(f'v_add_u32 v{110+i}, {4096*i}, v110')
    hld = lambda ks: a(f'global_load_dwordx4 {ar(4*ks,4)}, v{110 + (ks >> 2)}, s[24:25] offset:{1024*(ks & 3)} sc1')
    a(f's_lshl_b32 s40, s{sWave}, 15'); a(f's_add_u32 s40, s40, {WS_H}')
    add64(a, 24, sWsP, 's40')
    a(f's_lshl_b32 s40, s{sWave}, 6'); a(f's_add_u32 s26, s40, {FL_HD}')
    wave_poll(a, sFl, 's26', 'le', 32, 'L_err', vt=108)
    for ks in range(32): hld(ks)
    a(f's_mov_b32 s{sRb}, 0')
    a(f's_cmp_lt_u32 s{sWid}, 128'); a('s_cselect_b32 s27, 1, 0x100')
    a(f's_bfe_u32 s28, s{sWid}, 0x50001'); a('s_lshl_b32 s28, s28, 2')
    a(f's_lshl_b32 s40, s{sWave}, 7'); a('s_add_u32 s28, s28, s40')
    for isV in (False, True):
        tag = 'v' if isV else 'k'
        if not isV:
            a(f's_sub_u32 s40, s{sWid}, 64'); a('s_cmp_lt_u32 s40, 64'); a('s_cbranch_scc1 L_qkv_loop_v')
        a(f'L_qkv_loop_{tag}:')
        add64(a, 24, 24, 8 * 32768)
        a('s_add_u32 s26, s26, 512')
        Lnp = a.uid('nopoll')
        a(f's_cmp_eq_u32 s{sRb}, 7'); a(f's_cbranch_scc1 {Lnp}')
        wave_poll(a, sFl, 's26', 'le', 32, 'L_err', vt=108)
        a(f'{Lnp}:')
        a('s_waitcnt vmcnt(0)')
        a(f's_cmp_eq_u32 s{sRb}, 7')
        a(f's_cselect_b32 s40, {8*32768}, 0')
        a('s_sub_u32 s24, s24, s40'); a('s_subb_u32 s25, s25, 0')
        NS = 4
        def rd(ks):
            for nt in range(2):
                for j in range(2):
                    d = g.WF + ((ks % NS) * 2 + nt) * 4 + 2 * j
                    a(f'ds_read_b64_tr_b16 {vr(d,2)}, v{g.vTr0 if nt == 0 else g.vTr1} offset:{ks*2048 + j*512}')
        for ks in range(NS - 1): rd(ks)
        for ks in range(32):
            if ks + NS - 1 < 32: rd(ks + NS - 1)
            a(f's_waitcnt lgkmcnt({4*min(31 - ks, NS - 1)})')
            for nt in range(2):
                W = vr(g.WF + ((ks % NS) * 2 + nt) * 4, 4); H = ar(4 * ks, 4); D = vr(g.ACC + 16 * nt, 16)
                A_, B_ = (H, W) if isV else (W, H)
                a(f'v_mfma_f32_32x32x16_bf16 {D}, {A_}, {B_}, {"0" if ks == 0 else D}')
            if ks >= 1: hld(ks - 1)
        g.out_base(sWid, sRb, isV)
        hld(31)
        g.epilogue(isV)
        a('s_waitcnt vmcnt(0)')
        signal(a, sFl, 's28', 's27', vt=108)
        a('s_add_u32 s28, s28, 1024')
        a(f's_add_u32 s{sRb}, s{sRb}, 1')
        a(f's_cmp_lt_u32 s{sRb}, 8')
        a(f's_cbranch_scc1 L_qkv_loop_{tag}')
        if not isV: a('s_branch L_qkv_done')
    a('L_qkv_done:')
    a('s_waitcnt vmcnt(0)')
    a('s_barrier')
    stamp(a, 2, stamps)
    a(f's_load_dwordx2 s[4:5], s[0:1], {KA["Wo"]}')
    a(f's_load_dwordx4 s[8:11], s[0:1], {KA["w1"]}')
    sH, sSeg, sG1, sFt, sDt, sKh, sTile = 13, 14, 15, 18, 19, 20, 21
    a(f's_and_b32 s{sH}, s{sWid}, 31'); a(f's_lshr_b32 s{sSeg}, s{sWid}, 5')
    a(f's_lshr_b32 s{sFt}, s{sWid}, 3'); a(f's_and_b32 s{sDt}, s{sWid}, 7')
    a(f's_lshr_b32 s{sKh}, s{sWave}, 2'); a(f's_and_b32 s{sTile}, s{sWave}, 3')
    a(f's_mov_b32 s{sG1}, 0')
    a('s_waitcnt lgkmcnt(0)')
    A_ = att.ATT(a, 4, sWsP, sWave, sH, st=SC, ld=SC)
    A_.setup()
    vDm, vTA, vTB = 124, 125, 126
    G1L = 32768
    Lh = a.uid('g1h'); Le = a.uid('g1e')
    a(f's_cmp_lg_u32 s{sKh}, 0'); a(f's_cbranch_scc1 {Lh}')
    mlp.dma_lane(a, vDm, 16, 3584)
    a(f's_mul_i32 s40, s{sTile}, {8*3584}'); a(f's_lshl_b32 s41, s{sFt}, 7'); a('s_add_u32 s40, s40, s41')
    add64(a, 22, 8, 's40')
    a(f's_mov_b32 s24, {32*3584}')
    a(f's_branch {Le}')
    a(f'{Lh}:')
    mlp.dma_lane(a, vDm, 16, 1024)
    a(f's_lshl_b32 s40, s{sTile}, 13'); a(f's_lshl_b32 s41, s{sDt}, 7'); a('s_add_u32 s40, s40, s41'); a(f's_add_u32 s40, s40, {WS_H2}')
    add64(a, 22, sWsP, 's40')
    a(f's_mov_b32 s24, {32*1024}')
    a(f'{Le}:')
    a(f's_lshl_b32 s25, s{sWave}, 10'); a(f's_add_u32 s25, s25, {G1L}')
    mlp.tr_lane_base(a, vTA, 16, True); mlp.tr_lane_base(a, vTB, 16, False)
    a(f's_lshr_b32 s40, s{sTile}, 1'); a('s_lshl_b32 s40, s40, 6'); a(f'v_xor_b32 v{vTA}, s40, v{vTA}')
    a(f's_and_b32 s40, s{sTile}, 1'); a('s_lshl_b32 s40, s40, 6'); a(f'v_xor_b32 v{vTB}, s40, v{vTB}')
    a(f's_lshl_b32 s40, s{sKh}, 11'); a(f's_add_u32 s40, s40, {G1L}')
    a(f'v_add_u32 v{vTA}, s40, v{vTA}'); a('s_add_u32 s40, s40, 4096'); a(f'v_add_u32 v{vTB}, s40, v{vTB}')
    for i in range(16): a(f'v_accvgpr_write_b32 a{64+i}, 0')
    LN = 163840 - 64

    def g1_batch(blocking):
        Lx = a.uid('g1x'); Lw = a.uid('g1w'); Lp = a.uid('g1p')
        a(f's_cmp_lg_u32 s{sWave}, 0'); a(f's_cbranch_scc1 {Lw}')
        a(f's_mov_b32 s{sLim}, {WLIM}')
        a(f'{Lp}:')
        a(f'v_and_b32 v16, 7, v0'); a(f'v_add_u32 v16, s{sG1}, v16')
        a(f'v_cmp_gt_u32 s[40:41], 64, v16')
        a(f'v_min_u32 v16, 63, v16'); a('v_lshlrev_b32 v16, 7, v16')
        a(f'v_add_u32 v16, {FL_H2D}, v16')
        a(f'global_load_dword v17, v16, s[{sFl}:{sFl+1}] sc1')
        a('s_waitcnt vmcnt(0)')
        a('v_cmp_le_u32 vcc, 32, v17')
        a('s_and_b32 s40, s40, vcc_lo')
        a('s_and_b32 s40, s40, 0xff')
        a('s_not_b32 s40, s40')
        a('s_ff1_i32_b32 s42, s40')
        if blocking:
            Lgo = a.uid('g1go')
            a('s_cmp_lg_u32 s42, 0'); a(f's_cbranch_scc1 {Lgo}')
            a('s_sleep 1'); a(f's_sub_u32 s{sLim}, s{sLim}, 1'); a(f's_cbranch_scc0 {Lp}'); a('s_branch L_err')
            a(f'{Lgo}:')
        a('v_mov_b32 v16, s42'); a(f'v_mov_b32 v17, {LN}')
        a('ds_write_b32 v17, v16'); a('s_waitcnt lgkmcnt(0)')
        a(f'{Lw}:')
        a('s_barrier')
        a(f'v_mov_b32 v17, {LN}'); a('ds_read_b32 v16, v17'); a('s_waitcnt lgkmcnt(0)')
        a('v_readfirstlane_b32 s42, v16')
        a('s_barrier')
        a('s_cmp_eq_u32 s42, 0'); a(f's_cbranch_scc1 {Lx}')
        Ld = a.uid('g1d'); Lm = a.uid('g1m')
        a('s_mov_b32 s43, 0'); a('s_mov_b32 s44, s25')
        a(f'{Ld}:')
        a('s_mov_b32 m0, s44')
        a(f'global_load_lds_dwordx4 v{vDm}, s[22:23] sc1')
        add64(a, 22, 22, 's24')
        a('s_add_u32 s44, s44, 8192'); a('s_add_u32 s43, s43, 1'); a('s_cmp_lt_u32 s43, s42'); a(f's_cbranch_scc1 {Ld}')
        a('s_waitcnt vmcnt(0)'); a('s_barrier')
        a(f'v_mov_b32 v16, v{vTA}'); a(f'v_mov_b32 v17, v{vTB}'); a('s_mov_b32 s43, 0')
        a(f'{Lm}:')
        for j in range(2):
            a(f'ds_read_b64_tr_b16 {vr(20+2*j,2)}, v16 offset:{j*512}')
            a(f'ds_read_b64_tr_b16 {vr(24+2*j,2)}, v17 offset:{j*512}')
        a('v_add_u32 v16, 8192, v16'); a('v_add_u32 v17, 8192, v17')
        a('s_waitcnt lgkmcnt(0)')
        a(f'v_mfma_f32_32x32x16_bf16 {ar(64,16)}, {vr(20,4)}, {vr(24,4)}, {ar(64,16)}')
        a('s_add_u32 s43, s43, 1'); a('s_cmp_lt_u32 s43, s42'); a(f's_cbranch_scc1 {Lm}')
        a(f's_add_u32 s{sG1}, s{sG1}, s42')
        a(f'{Lx}:')

    a('L_att_loop:')
    def polls():
        a(f's_lshl_b32 s40, s{sSeg}, 7'); a(f's_lshl_b32 s41, s{sH}, 2'); a('s_add_u32 s40, s40, s41')
        wave_poll(a, sFl, 's40', 'eq', 0x204, 'L_err', vt=16)
    wg_wait(a, polls, 'L_err')
    def polls2():
        a(f's_lshl_b32 s40, s{sH}, 7'); a(f's_add_u32 s40, s40, {FL_PROG}')
        wave_poll(a, sFl, 's40', 'lt', f's{sSeg}', 'L_err', vt=10, sleep=psleep)
    def mid():
        wg_wait(a, polls2, 'L_err')
        stamp(a, 8, stamps)
    A_.mid = mid; A_.wide = True
    A_.task(sSeg)
    stamp(a, 9, stamps)
    a(f's_lshl_b32 s26, s{sSeg}, 7'); a(f's_add_u32 s26, s26, {FL_ATTD}')
    wg_signal(a, sFl, 's26', 1)
    stamp(a, 10, stamps)
    a(f's_cmp_ge_u32 s{sSeg}, 57'); a('s_cbranch_scc1 L_skip_g1')
    g1_batch(False)
    a('L_skip_g1:')
    wg_wait(a, lambda: wave_poll(a, sFl, 's26', 'le', 32, 'L_err', vt=16, sleep=1), 'L_err')
    stamp(a, 11, stamps)
    emit_red_row(a, sSeg, sH)
    stamp(a, 12, stamps)
    a(f's_add_u32 s{sSeg}, s{sSeg}, 7')
    a(f's_cmp_lt_u32 s{sSeg}, 64'); a('s_cbranch_scc1 L_att_loop')
    a('L_g1_tail:')
    g1_batch(True)
    a(f's_cmp_lt_u32 s{sG1}, 64'); a('s_cbranch_scc1 L_g1_tail')
    stamp(a, 3, stamps)
    D, FA, FB, t = 16, 32, 48, 6
    a.fence(12)
    for i in range(16): a(f'v_accvgpr_read_b32 v{D+i}, a{64+i}')
    a(f'v_lshrrev_b32 v{t+2}, 5, v0'); a(f'v_lshlrev_b32 v{t+2}, 5, v{t+2}')
    a(f's_lshr_b32 s40, s{sTile}, 1'); a('s_lshl_b32 s40, s40, 6'); a(f's_lshl_b32 s41, s{sFt}, 7'); a('s_add_u32 s40, s40, s41')
    a(f'v_add_u32 v{t+2}, s40, v{t+2}')
    a(f'global_load_dwordx4 {vr(FB,4)}, v{t+2}, s[10:11]')
    a(f'global_load_dwordx4 {vr(FB+4,4)}, v{t+2}, s[10:11] offset:16')
    mlp.combine_halves(a, D, sKh, sTile, t, 0)
    a(f's_cmp_lg_u32 s{sKh}, 0'); a('s_cbranch_scc1 L_gelu_done')
    for i in range(4): a(f'ds_read_b128 {vr(FA+4*i,4)}, v{t} offset:{1024*i}')
    mlp.gelu_store(a, D, FA, FB, t, sDt, sTile, sWsP, SC, frag=True)
    a('L_gelu_done:')
    a(f's_lshl_b32 s26, s{sDt}, 7'); a(f's_add_u32 s26, s26, {FL_GD}')
    wg_signal(a, sFl, 's26', 1)
    a('L_g2:')
    emit_g2(a, stamps)
    a('s_branch L_end')
    a('L_head:')
    emit_head(a, recopt, stamps)
    a('L_err:')
    a('s_mov_b64 exec, -1')
    a('v_mov_b32 v11, 40'); a('v_mov_b32 v12, 1')
    a(f'global_atomic_add v11, v12, s[{sDbgP}:{sDbgP+1}] sc1')
    a('L_end:')
    a('s_endpgm')
    a.raw(kernel_desc(KNAME, vgpr=256, accum=128))
    return a.text()

def emit_red_row(a, sSeg, sH):
    L16, t, m, r = 1, 8, 9, 10
    P, ACC, XR, MD = 16, 80, 88, 96
    RL = 16384
    a(f's_load_dwordx2 s[46:47], s[0:1], {KA["x"]}')
    a(f's_lshl_b32 s41, s{sSeg}, 20')
    a(f's_lshl_b32 s43, s{sWave}, 17'); a('s_add_u32 s41, s41, s43')
    a(f's_lshl_b32 s43, s{sH}, 10'); a('s_add_u32 s41, s41, s43')
    a(f's_add_u32 s41, s41, {WS_ATTP}')
    add64(a, 44, sWsP, 's41')
    for i in range(4):
        a(f'global_load_dwordx4 {vr(P+4*i,4)}, v{L16}, s[44:45] sc1')
        if i < 3: add64(a, 44, 44, 32768)
    a(f's_lshl_b32 s41, s{sSeg}, 15'); a('s_add_u32 s41, s41, s43')
    a(f'v_add_u32 v11, s41, v{L16}')
    a('s_waitcnt lgkmcnt(0)')
    a(f'global_load_dwordx4 {vr(XR,4)}, v11, s[46:47]')
    add64(a, 44, sWsP, WS_MOD + 4096 + 2048)
    a(f'v_lshlrev_b32 v{t}, 5, v0')
    for k, off in enumerate((-2048, 0, 2048)):
        a(f'global_load_dwordx4 {vr(MD+8*k,4)}, v{t}, s[44:45] offset:{off} sc1')
        a(f'global_load_dwordx4 {vr(MD+8*k+4,4)}, v{t}, s[44:45] offset:{off+16} sc1')
    a('s_mov_b32 s46, 0x00003f80'); a('s_mov_b32 s47, 0x3f800000')
    for i in range(8): a(f'v_mov_b32 v{ACC+i}, 0')
    for i in range(4):
        a(f's_waitcnt vmcnt({3 - i + 7})')
        for d in range(4):
            a(f'v_dot2_f32_bf16 v{ACC+2*d}, v{P+4*i+d}, s46, v{ACC+2*d}')
            a(f'v_dot2_f32_bf16 v{ACC+2*d+1}, v{P+4*i+d}, s47, v{ACC+2*d+1}')
    a(f's_lshl_b32 s41, s{sWave}, 11')
    a(f'v_add_u32 v{t}, s41, v{L16}')
    a.fence(3)
    a(f'ds_write_b128 v{t}, {vr(ACC,4)} offset:{RL}')
    a(f'ds_write_b128 v{t}, {vr(ACC+4,4)} offset:{RL+1024}')
    a('s_waitcnt lgkmcnt(0)')
    a('s_barrier')
    Lend = a.uid('redr_end')
    a(f's_cmp_lg_u32 s{sWave}, 0'); a(f's_cbranch_scc1 {Lend}')
    for w in range(1, 8):
        a(f'ds_read_b128 {vr(P+8*(w-1),4)}, v{L16} offset:{RL + 2048*w}')
        a(f'ds_read_b128 {vr(P+8*(w-1)+4,4)}, v{L16} offset:{RL + 2048*w + 1024}')
    X = 72
    a('s_waitcnt vmcnt(0)')
    unpack8(a, XR, X)
    for w in range(1, 8):
        a(f's_waitcnt lgkmcnt({2*(7-w)})')
        for i in range(8): a(f'v_add_f32 v{ACC+i}, v{ACC+i}, v{P+8*(w-1)+i}')
    for i in range(8): a(f'v_fmac_f32 v{X+i}, v{ACC+i}, v{MD+i}')
    for i in range(4): a(f'v_cvt_pk_bf16_f32 v{XR+i}, v{X+2*i}, v{X+2*i+1}')
    add64(a, 44, sWsP, WS_X1)
    a(f'global_store_dwordx4 v11, {vr(XR,4)}, s[44:45] sc1')
    unpack8(a, XR, X)
    ln_stats(a, X, m, r, t)
    for i in range(8):
        a(f'v_add_f32 v{MD+16+i}, 1.0, v{MD+16+i}')
        a(f'v_fma_f32 v{X+i}, v{X+i}, v{MD+16+i}, v{MD+8+i}')
    ln_stats(a, X, m, r, t)
    for i in range(4): a(f'v_cvt_pk_bf16_f32 v{P+i}, v{X+2*i}, v{X+2*i+1}')
    add64(a, 44, sWsP, WS_H2)
    a(f'global_store_dwordx4 v11, {vr(P,4)}, s[44:45] sc1')
    a(f's_lshl_b32 s41, s{sSeg}, 7'); a(f's_add_u32 s41, s41, {FL_H2D}')
    a('s_waitcnt vmcnt(0)')
    signal(a, sFl, 's41', 1, vt=16)
    a(f'{Lend}:')

def emit_g2(a, stamps):
    a(f's_load_dwordx4 s[4:7], s[0:1], {KA["w2"]}')
    a(f's_load_dwordx2 s[8:9], s[0:1], {KA["out"]}')
    sSt, sDt, sKq, sMt = 13, 14, 15, 16
    a(f's_lshr_b32 s{sSt}, s{sWid}, 3'); a(f's_and_b32 s{sDt}, s{sWid}, 7')
    a(f's_lshr_b32 s{sKq}, s{sWave}, 1'); a(f's_and_b32 s{sMt}, s{sWave}, 1')
    vDW, vG, vTB, t = 1, 2, 4, 6
    mlp.dma_lane(a, vDW, t, 4096)
    mlp.tr_lane_base(a, vTB, t, False)
    a(f's_lshl_b32 s40, s{sKq}, 11')
    a(f'v_add_u32 v{vTB}, s40, v{vTB}')
    a(f's_lshl_b32 s41, s{sDt}, 1'); a(f's_add_u32 s40, s{sMt}, s41')
    a(f's_mul_i32 s40, s40, {112*1024}'); a(f's_lshl_b32 s41, s{sKq}, 10'); a('s_add_u32 s40, s40, s41')
    a(f'v_lshlrev_b32 v{vG}, 4, v0'); a(f'v_add_u32 v{vG}, s40, v{vG}')
    add64(a, 22, sWsP, WS_G)
    a('s_waitcnt lgkmcnt(0)')
    a(f's_lshl_b32 s40, s{sWave}, 17'); a(f's_lshl_b32 s41, s{sSt}, 7'); a('s_add_u32 s40, s40, s41')
    add64(a, 20, 4, 's40')
    a(f's_lshl_b32 s24, s{sWave}, 12')
    NB = 5
    def dmaw(c):
        b = (c % NB) * 32768
        for i in range(4):
            a(f's_add_u32 m0, s24, {b + i*1024}')
            a(f'global_load_lds_dwordx4 v{vDW}, s[20:21]')
            add64(a, 20, 20, 8 * 4096 if i < 3 else (256 - 24) * 4096)
    a('s_barrier')
    for c in range(NB): dmaw(c)
    X1, GB, B2, vO = 96, 100, 108, 9
    a(f'v_and_b32 v{vO}, 31, v0')
    a(f's_lshr_b32 s40, s{sKq}, 1'); a('s_lshl_b32 s40, s40, 5'); a(f's_lshl_b32 s41, s{sSt}, 6'); a('s_add_u32 s40, s40, s41')
    a(f'v_add_u32 v{vO}, s40, v{vO}')
    a(f'v_lshlrev_b32 v{vO+1}, 1, v{vO}')
    a(f'global_load_ushort v{B2}, v{vO+1}, s[6:7]')
    a(f'v_lshrrev_b32 v{vO+1}, 5, v0'); a(f'v_lshlrev_b32 v{vO+1}, 4, v{vO+1}')
    a(f's_lshl_b32 s40, s{sMt}, 5'); a(f's_lshl_b32 s41, s{sDt}, 6'); a('s_add_u32 s40, s40, s41')
    a(f's_and_b32 s41, s{sKq}, 1'); a('s_lshl_b32 s41, s41, 3'); a('s_add_u32 s40, s40, s41')
    a(f'v_add_u32 v{vO+1}, s40, v{vO+1}')
    a(f'v_lshlrev_b32 v{vO}, 10, v{vO}'); a(f'v_lshl_add_u32 v{vO}, v{vO+1}, 1, v{vO}')
    a(f'v_lshlrev_b32 v{vO+1}, 2, v{vO+1}')
    add64(a, 44, sWsP, WS_MOD + 10240)
    for i in range(2): a(f'global_load_dwordx4 {vr(GB+4*i,4)}, v{vO+1}, s[44:45] offset:{16*i} sc1')
    a(f's_lshl_b32 s26, s{sDt}, 7'); a(f's_add_u32 s26, s26, {FL_GD}')
    wg_wait(a, lambda: wave_poll(a, sFl, 's26', 'le', 28, 'L_err', vt=16, sleep=1), 'L_err')
    stamp(a, 4, stamps)
    order = []
    for f in range(28):
        a(f'global_load_dwordx4 {ar(4*f, 4)}, v{vG}, s[22:23] sc1')
        add64(a, 22, 22, 4096); order.append(f // 4)
    add64(a, 44, sWsP, WS_X1)
    a(f'global_load_dwordx4 {vr(X1,4)}, v{vO}, s[44:45] sc1'); order.append('e')
    D, FB = 16, 48
    a(f'v_xor_b32 v{vTB+1}, 64, v{vTB}')
    for c in range(7):
        last = max(i for i, o in enumerate(order) if o == c)
        a(f's_waitcnt vmcnt({min(63, len(order) - 1 - last)})')
        if c == 0 or c >= 5: a('s_barrier')
        b = (c % NB) * 32768
        a(f'v_add_u32 v{t}, {b}, v{vTB}'); a(f'v_add_u32 v{t+1}, {b}, v{vTB+1}')
        for i in range(4):
            for nt in range(2):
                for j in range(2):
                    a(f'ds_read_b64_tr_b16 {vr(FB+8*i+4*nt+2*j,2)}, v{t+nt} offset:{i*8192 + j*512}')
        for i in range(4):
            for nt in range(2):
                a(f's_waitcnt lgkmcnt({min(15, 14 - 4*i - 2*nt)})')
                a(f'v_mfma_f32_32x32x16_bf16 {vr(D+16*nt,16)}, {ar(16*c + 4*i,4)}, {vr(FB+8*i+4*nt,4)}, {"0" if (c == 0 and i == 0) else vr(D+16*nt,16)}')
        if c < 2:
            a('s_barrier')
            dmaw(c + 5); order += [c + 5] * 4
    a('s_barrier')
    a(f's_lshl_b32 s40, s{sMt}, 15'); a(f's_lshl_b32 s41, s{sKq}, 11'); a('s_add_u32 s40, s40, s41')
    a(f'v_lshlrev_b32 v{t}, 4, v0'); a(f'v_add_u32 v{t+1}, s40, v{t}')
    for p in range(4):
        for k in range(2): a(f'ds_write_b128 v{t+1}, {vr(D+8*p+4*k,4)} offset:{p*8192 + k*1024}')
    a(f's_lshl_b32 s40, s{sMt}, 15'); a(f's_lshl_b32 s41, s{sKq}, 13'); a('s_add_u32 s40, s40, s41')
    a(f'v_add_u32 v{t+1}, s40, v{t}')
    a('s_waitcnt lgkmcnt(0)'); a('s_barrier')
    for q in range(4):
        for k in range(2): a(f'ds_read_b128 {vr(FB+8*q+4*k,4)}, v{t+1} offset:{q*2048 + k*1024}')
    a('s_waitcnt vmcnt(0) lgkmcnt(0)')
    a(f'v_lshlrev_b32 v{B2}, 16, v{B2}')
    for i in range(8):
        a(f'v_add_f32 v{FB+i}, v{FB+i}, v{FB+8+i}'); a(f'v_add_f32 v{FB+16+i}, v{FB+16+i}, v{FB+24+i}')
        a(f'v_add_f32 v{FB+i}, v{FB+i}, v{FB+16+i}'); a(f'v_add_f32 v{FB+i}, v{FB+i}, v{B2}')
        if i % 2 == 0: a(f'v_lshlrev_b32 v{t}, 16, v{X1+i//2}')
        else: a(f'v_and_b32 v{t}, 0xffff0000, v{X1+i//2}')
        a(f'v_fma_f32 v{FB+i}, v{FB+i}, v{GB+i}, v{t}')
    for i in range(4): a(f'v_cvt_pk_bf16_f32 v{X1+i}, v{FB+2*i}, v{FB+2*i+1}')
    a(f'global_store_dwordx4 v{vO}, {vr(X1,4)}, s[8:9]')
    stamp(a, 5, stamps)

def emit_head(a, opt, stamps):
    R = rec5
    a(f's_load_dwordx4 s[{R.sWq}:{R.sWq+3}], s[0:1], {KA["Wq"]}')
    a(f's_load_dwordx4 s[{R.sWv}:{R.sWv+3}], s[0:1], {KA["Wv"]}')
    a(f's_load_dwordx2 s[{R.sM0in}:{R.sM0in+1}], s[0:1], {KA["mem0"]}')
    a(f's_mov_b64 s[{R.sDbg}:{R.sDbg+1}], s[{sDbgP}:{sDbgP+1}]')
    a(f's_mov_b64 s[{R.sWs}:{R.sWs+1}], s[{sWsP}:{sWsP+1}]')
    a(f's_mov_b32 s{R.sH}, s{sWid}'); a(f's_mov_b32 s{R.sWv8}, s{sWave}')
    a(f's_add_u32 s{sWid}, s{sWid}, 224')
    a('s_waitcnt lgkmcnt(0)')
    a('s_barrier')
    R.emit_rec_setup(a, SC, early_arrive=True)
    stamp(a, 1, stamps)
    a(f's_lshl_b32 s62, s{R.sH}, 2')
    Lw = a.uid('hw'); L1 = a.uid('hw1')
    a(f's_cmp_ge_u32 s{sWave}, 3'); a(f's_cbranch_scc1 {Lw}')
    a(f's_cmp_lg_u32 s{sWave}, 0'); a(f's_cbranch_scc1 {L1}')
    wave_poll(a, sDbgP, 36, 'le', 32, 'L_err', vt=11, sleep=1)
    a(f's_branch {Lw}')
    a(f'{L1}:')
    wave_poll(a, sDbgP, 44, 'le', 48, 'L_err', vt=11, sleep=1)
    a(f's_lshl_b32 s63, s{sWave}, 7'); a('s_add_u32 s63, s63, s62'); a('s_sub_u32 s63, s63, 128')
    wave_poll(a, sFl, 's63', 'eq', 4, 'L_err', vt=11, mask=0xff, sleep=1)
    a(f'{Lw}:')
    a('v_mov_b32 v11, 0')
    a(f'global_load_dword v12, v11, s[{sDbgP}:{sDbgP+1}] sc1')
    a('s_waitcnt vmcnt(0) lgkmcnt(0)')
    a('v_readfirstlane_b32 s63, v12')
    a('s_barrier')
    stamp(a, 2, stamps)
    if opt.get('force_slow'): a('s_mov_b32 s63, 0')
    a(f's_mov_b32 s{R.sS}, 0')
    o = dict(opt); o['mega'] = dict(sFl=sFl, sCnt=62)
    a('s_cmp_lt_u32 s63, 32'); a('s_cbranch_scc1 L_slow')
    for fast in (True, False):
        tag = 'f' if fast else 's'
        if not fast: a('L_slow:')
        a(f's_cmp_lg_u32 s{R.sRole}, 0'); a(f's_cbranch_scc1 L_roleB_{tag}')
        R.emit_loop_A(a, 'L_err', 'L_rec_done', fast, False, False, o)
        a(f'L_roleB_{tag}:')
        R.emit_loop_B(a, 'L_err', 'L_rec_done', fast, False, False, o)
    a('L_rec_done:')
    a('s_setprio 0')
    a('s_waitcnt vmcnt(0) lgkmcnt(0)')
    a('s_barrier')
    L = a.uid('fin')
    a(f's_cmp_lg_u32 s{sWave}, 0'); a(f's_cbranch_scc1 {L}')
    a(f's_lshl_b32 s40, s{R.sH}, 7'); a(f's_add_u32 s40, s40, {FL_PROG}')
    a('v_mov_b32 v11, s40'); a('v_mov_b32 v12, 64')
    a(f'global_store_dword v11, v12, s[{sFl}:{sFl+1}] sc1')
    a(f'{L}:')
    stamp(a, 3, stamps)
    a('v_mbcnt_lo_u32_b32 v0, -1, 0'); a('v_mbcnt_hi_u32_b32 v0, -1, v0')
    a('s_branch L_g2')

if __name__ == '__main__':
    open('mega.s', 'w').write(build())
    open('mega_st.s', 'w').write(build(stamps=True))
    open('mega_slow.s', 'w').write(build(recopt=dict(noxcd=1)))
```

```python
from asmlib import *
from layout import *
import struct
def f2u(f): return struct.unpack('<I', struct.pack('<f', f))[0]

L_MEM, L_KX, L_VX, L_QB, L_KB, L_OB, L_VB, L_MISC, L_W = 0, 8192, 16384, 24576, 26880, 29184, 31488, 32512, 32768
L_FQ, L_FK, L_FV = L_MISC + 16, L_MISC + 32, L_MISC + 48
ROWB = 288
LOG2E = 1.4426950408889634
QSCALE = (128 ** -0.5) * LOG2E
POLL_LIMIT = 30000
KLD = ' sc1'

sWq, sWk, sWv, sWo, sM0in, sDbg, sWs = 4, 6, 8, 10, 12, 14, 16
sH, sW, sS, sT2, sT0, sT1, sT3, sCnt = 18, 19, 20, 21, 22, 23, 24, 25
sMemR, sMemW, sPartW, sPartR, sKx, sVx, sKm, sVm, sMemC, sDbgM = 26, 28, 30, 32, 34, 36, 38, 40, 42, 44
sQs, sRole = 46, 47
sEx = 48
sMemB, sPartB = 50, 52
sPrevR, sPrevM = 54, 56
sPubM = 58
sWv8 = 60
sS1 = 61
sTag = 3
sTm = 96

vIdx, vL16, vWQ, vRO, vP, vWB, vVmo, vFW = range(8)
vRQ, vRK, vWO = 8, 9, 10
vPR, vPub, vKmo = 8, 9, 10
vT = 11
vDummy = 14
vFR = 15
vA = 16
vAc = 48
vAv = 56
vE = 60
WvR = 64

def wa_reg(tau, sig): return ar((tau * 8 + sig) * 8, 8)
def wv_reg(sig): return vr(WvR + sig * 8, 8)
def wo_off(t, c, hh): return c * 16384 + t * 2048 + hh * 1024

def add64(a, dst, src, val):
    a(f's_add_u32 s{dst}, s{src}, {val}')
    a(f's_addc_u32 s{dst+1}, s{src+1}, 0')

def emit_rec_setup(a, sst='', early_arrive=False):
    a(f's_and_b32 s{sW}, s{sWv8}, 3')
    a(f's_lshr_b32 s{sRole}, s{sWv8}, 2')
    lane = 40
    T = lambda i: 41 + i
    a(f'v_mov_b32 v{lane}, v0')
    a(f'v_lshlrev_b32 v{vL16}, 4, v{lane}')
    n, g = T(0), T(1)
    a(f'v_and_b32 v{n}, 15, v{lane}')
    a(f'v_lshrrev_b32 v{g}, 4, v{lane}')
    vWrow, vTrQ, vTrO = T(2), T(3), T(7)
    a(f'v_lshlrev_b32 v{vWrow}, 13, v{g}')
    a(f'v_lshl_add_u32 v{vWrow}, v{n}, 4, v{vWrow}')
    a(f's_lshl_b32 s{sT0}, s{sH}, 8')
    a(f's_lshl_b32 s{sT1}, s{sW}, 19')
    a(f's_add_u32 s{sT0}, s{sT0}, s{sT1}')
    a(f's_lshl_b32 s{sT1}, s{sRole}, 18')
    a(f's_add_u32 s{sT0}, s{sT0}, s{sT1}')
    for p in (sWq, sWk, sWv): add64(a, p, p, f's{sT0}')
    a(f's_lshl_b32 s{sT0}, s{sH}, 17')
    a(f's_lshl_b32 s{sT1}, s{sW}, 14')
    a(f's_add_u32 s{sT0}, s{sT0}, s{sT1}')
    a(f's_lshl_b32 s{sT1}, s{sRole}, 13')
    a(f's_add_u32 s{sT0}, s{sT0}, s{sT1}')
    add64(a, sWo, sWo, f's{sT0}')
    a(f's_lshl_b32 s{sT3}, s{sW}, 15')
    a(f's_add_u32 s{sT3}, s{sT3}, {L_W}')
    a(f'v_add_u32 v{vWB}, s{sT3}, v{vL16}')
    a(f's_lshl_b32 s{sT1}, s{sRole}, 13')
    a(f's_add_u32 s{sT3}, s{sT3}, s{sT1}')
    a(f'v_add_u32 v{vWB}, s{sT1}, v{vWB}')
    stages = [('q', 0), ('k', 1), ('q', 1), ('k', 0), ('v', 0), ('v', 1), ('o', 0), ('o', 1)]
    stages = [('q', 0), ('q', 1), ('k', 0), ('k', 1), ('v', 0), ('v', 1), ('o', 0), ('o', 1)]
    def dma(st):
        m, hf = stages[st]
        base = {'q': sWq, 'k': sWk, 'v': sWv, 'o': sWo}[m]
        for t in range(8):
            if m == 'o':
                goff = hf * 65536 + t * 1024; va = vL16
            else:
                goff = hf * 256 * 8192 + t * 32768; va = vWrow
            add64(a, sT0, base, goff)
            a(f's_add_u32 m0, s{sT3}, {hf * 16384 + t * 1024}')
            a(f'global_load_lds_dwordx4 v{va}, s[{sT0}:{sT0+1}]')
    r_, cc, t0, t1, m0a, m0b = T(9), T(10), T(11), T(12), T(13), T(14)
    a(f'v_lshrrev_b32 v{t0}, 3, v{lane}')
    a(f'v_lshlrev_b32 v{t0}, 10, v{t0}')
    a(f'v_bfe_u32 v{t1}, v{lane}, 1, 2')
    a(f'v_lshl_add_u32 v{t0}, v{t1}, 1, v{t0}')
    a(f'v_and_b32 v{t1}, 1, v{lane}')
    a(f'v_lshl_add_u32 v{t0}, v{t1}, 4, v{t0}')
    a(f's_lshl_b32 s{sT2}, s{sH}, 5')
    a(f'v_add_u32 v{t0}, s{sT2}, v{t0}')
    a(f'global_load_ushort v{m0a}, v{t0}, s[{sM0in}:{sM0in+1}]')
    a(f'global_load_ushort v{m0b}, v{t0}, s[{sM0in}:{sM0in+1}] offset:8')
    dma(0); dma(1)
    a(f'v_lshrrev_b32 v{r_}, 2, v{n}')
    a(f'v_and_b32 v{cc}, 3, v{n}')
    a(f'v_lshrrev_b32 v{t0}, 1, v{g}')
    a(f'v_lshlrev_b32 v{t0}, 4, v{t0}')
    a(f'v_and_b32 v{t1}, 1, v{g}')
    a(f'v_add_u32 v{t0}, v{t0}, v{t1}')
    a(f'v_and_b32 v{t1}, 1, v{r_}')
    a(f'v_lshl_add_u32 v{t0}, v{t1}, 2, v{t0}')
    a(f'v_lshrrev_b32 v{t1}, 1, v{r_}')
    a(f'v_lshl_add_u32 v{t0}, v{t1}, 1, v{t0}')
    a(f'v_lshlrev_b32 v{t0}, 8, v{t0}')
    a(f'v_lshl_add_u32 v{t0}, v{cc}, 3, v{t0}')
    a(f's_lshl_b32 s{sT2}, s{sW}, 6')
    a(f's_add_u32 s{sT2}, s{sT2}, {L_W}')
    a(f'v_add_u32 v{t0}, s{sT2}, v{t0}')
    for sp in range(4):
        a(f's_xor_b32 s{sT2}, s{sW}, {sp}')
        a(f's_lshl_b32 s{sT2}, s{sT2}, 15')
        a(f'v_add_u32 v{vTrQ+sp}, s{sT2}, v{t0}')
    a(f'v_lshrrev_b32 v{t0}, 1, v{g}')
    a(f'v_lshlrev_b32 v{t0}, 3, v{t0}')
    a(f'v_lshrrev_b32 v{t1}, 1, v{r_}')
    a(f'v_lshl_add_u32 v{t0}, v{t1}, 2, v{t0}')
    a(f'v_and_b32 v{t1}, 1, v{r_}')
    a(f'v_add_u32 v{t0}, v{t0}, v{t1}')
    a(f'v_lshlrev_b32 v{t0}, 10, v{t0}')
    a(f'v_and_b32 v{t1}, 1, v{g}')
    a(f'v_lshl_add_u32 v{t0}, v{t1}, 15, v{t0}')
    a(f'v_lshl_add_u32 v{t0}, v{cc}, 5, v{t0}')
    a(f's_lshl_b32 s{sT2}, s{sW}, 8')
    a(f's_lshl_b32 s{sCnt}, s{sRole}, 7')
    a(f's_add_u32 s{sT2}, s{sT2}, s{sCnt}')
    a(f's_add_u32 s{sT2}, s{sT2}, {L_W}')
    a(f'v_add_u32 v{vTrO}, s{sT2}, v{t0}')
    a(f'v_add_u32 v{vTrO+1}, 0x10000, v{vTrO}')
    a(f'v_and_b32 v{t0}, 1, v{lane}')
    a(f'v_mul_u32_u24 v{t0}, 0xAAAA, v{t0}')
    a(f'v_add_u32 v{vIdx}, 0x4444, v{t0}')
    a(f'v_mul_u32_u24 v{t0}, {2*ROWB}, v{g}')
    a(f'v_lshl_add_u32 v{t0}, v{n}, 2, v{t0}')
    a(f's_mul_i32 s{sCnt}, s{sRole}, {L_KB-L_QB}')
    a(f's_lshl_b32 s{sT2}, s{sW}, 6')
    a(f's_add_u32 s{sT2}, s{sT2}, s{sCnt}')
    a(f's_add_u32 s{sT2}, s{sT2}, {L_QB}')
    a(f'v_add_u32 v{vWQ}, s{sT2}, v{t0}')
    a(f'v_lshrrev_b32 v{t0}, 1, v{n}')
    a(f'v_mul_u32_u24 v{t0}, {ROWB}, v{t0}')
    a(f'v_lshl_add_u32 v{t0}, v{g}, 5, v{t0}')
    a(f'v_and_b32 v{t1}, 1, v{n}')
    a(f'v_lshl_add_u32 v{t0}, v{t1}, 4, v{t0}')
    a(f'v_add_u32 v{vRO}, {L_OB}, v{t0}')
    a(f'v_lshlrev_b32 v{t0}, 13, v{r_}')
    a(f'v_lshl_add_u32 v{t0}, v{g}, 10, v{t0}')
    a(f'v_lshl_add_u32 v{t0}, v{cc}, 4, v{t0}')
    a(f's_lshl_b32 s{sT2}, s{sW}, 16')
    a(f's_lshl_b32 s{sCnt}, s{sRole}, 15')
    a(f's_add_u32 s{sT2}, s{sT2}, s{sCnt}')
    a(f's_lshr_b32 s{sCnt}, s{sH}, 4')
    a(f's_lshl_b32 s{sCnt}, s{sCnt}, 12')
    a(f's_add_u32 s{sT2}, s{sT2}, s{sCnt}')
    a(f's_and_b32 s{sCnt}, s{sH}, 15')
    a(f's_lshl_b32 s{sCnt}, s{sCnt}, 6')
    a(f's_add_u32 s{sT2}, s{sT2}, s{sCnt}')
    a(f'v_add_u32 v{vP}, s{sT2}, v{t0}')
    a(f'v_lshlrev_b32 v{t0}, 4, v{n}')
    a(f's_lshl_b32 s{sT2}, s{sW}, 9')
    a(f's_lshl_b32 s{sCnt}, s{sRole}, 8')
    a(f's_add_u32 s{sT2}, s{sT2}, s{sCnt}')
    a(f'v_add_u32 v{vVmo}, s{sT2}, v{t0}')
    a(f's_lshl_b32 s{sT2}, s{sW}, 2')
    a(f'v_mov_b32 v{vFW}, s{sT2}')
    a(f'v_and_b32 v{t0}, 31, v{lane}')
    a(f'v_lshlrev_b32 v{t0}, 6, v{t0}')
    a(f'v_lshrrev_b32 v{t1}, 5, v{lane}')
    a(f'v_lshl_add_u32 v13, v{t1}, 24, v{t0}')
    LB = a.uid('su_b'); LE = a.uid('su_e')
    a(f's_cmp_lg_u32 s{sRole}, 0')
    a(f's_cbranch_scc1 {LB}')
    a(f'v_and_b32 v{t0}, 7, v{n}')
    a(f'v_mul_u32_u24 v{t0}, {ROWB}, v{t0}')
    a(f'v_lshl_add_u32 v{t0}, v{g}, 4, v{t0}')
    a(f'v_add_u32 v{vRQ}, {L_QB}, v{t0}')
    a(f's_lshl_b32 s{sT2}, s{sW}, 6')
    a(f's_add_u32 s{sT2}, s{sT2}, {L_OB}')
    a(f'v_add_u32 v{vWO}, s{sT2}, v{t0}')
    a(f'v_and_b32 v{t1}, 1, v{n}')
    a(f'v_lshl_add_u32 v{t1}, v{r_}, 1, v{t1}')
    a(f'v_mul_u32_u24 v{t0}, {ROWB}, v{t1}')
    a(f'v_lshl_add_u32 v{t0}, v{g}, 4, v{t0}')
    a(f'v_add_u32 v{vRK}, {L_KB}, v{t0}')
    a(f'v_lshlrev_b32 v{vFR}, 2, v{cc}')
    a(f's_branch {LE}')
    a(f'{LB}:')
    a(f's_lshl_b32 s{sT2}, s{sW}, 10')
    a(f'v_add_u32 v{vPR}, s{sT2}, v{vL16}')
    a(f'v_lshlrev_b32 v{t0}, 5, v{g}')
    a(f'v_lshl_add_u32 v{t0}, v{cc}, 3, v{t0}')
    a(f'v_and_b32 v{t0}, 63, v{t0}')
    a(f's_lshl_b32 s{sT2}, s{sW}, 6')
    a(f's_lshl_b32 s{sCnt}, s{sH}, 8')
    a(f's_add_u32 s{sT2}, s{sT2}, s{sCnt}')
    a(f'v_add_u32 v{vPub}, s{sT2}, v{t0}')
    a(f'v_bfe_u32 v{t0}, v{lane}, 2, 3'); a(f'v_lshlrev_b32 v{t0}, 8, v{t0}')
    a(f'v_lshl_add_u32 v{t0}, v{cc}, 4, v{t0}')
    a(f's_lshl_b32 s{sT2}, s{sW}, 6')
    a(f'v_add_u32 v{vKmo}, s{sT2}, v{t0}')
    a(f'v_and_b32 v{t0}, 31, v{lane}')
    a(f'v_lshlrev_b32 v{t0}, 6, v{t0}')
    a(f'v_lshrrev_b32 v{t1}, 5, v{lane}')
    a(f'v_lshl_add_u32 v15, v{t1}, 24, v{t0}')
    a(f'{LE}:')
    add64(a, sMemB, sWs, WS_MEM)
    add64(a, sPartB, sWs, WS_PART)
    a(f's_lshl_b32 s{sT2}, s{sH}, 13')
    a(f's_lshl_b32 s{sCnt}, s{sW}, 11')
    a(f's_add_u32 s{sCnt}, s{sCnt}, s{sT2}')
    add64(a, sKx, sWs, WS_K); add64(a, sKx, sKx, f's{sCnt}')
    add64(a, sVx, sWs, WS_V); add64(a, sVx, sVx, f's{sCnt}')
    a(f's_lshl_b32 s{sT2}, s{sH}, 11')
    add64(a, sKm, sWs, WS_KM); add64(a, sKm, sKm, f's{sT2}')
    add64(a, sVm, sWs, WS_VM); add64(a, sVm, sVm, f's{sT2}')
    add64(a, sDbgM, sWs, WS_MEMDBG)
    a(f's_mov_b32 s{sQs}, {hex(f2u(QSCALE))}')
    a(f's_mov_b32 s{sPubM}, 0x000f000f')
    a(f's_mov_b32 s{sPubM+1}, 0')
    a(f's_mov_b64 s[{sPartR}:{sPartR+1}], s[{sPartB}:{sPartB+1}]')
    a(f's_mov_b64 s[{sMemC}:{sMemC+1}], s[{sMemB}:{sMemB+1}]')
    a(f'v_mov_b32 v{t0}, 0')
    a(f'v_lshlrev_b32 v{t1}, 2, v{n}')
    a(f'ds_write_b32 v{t1}, v{t0} offset:{L_MISC+16}')
    CL = 16
    for i in range(4): a(f'v_mov_b32 v{CL+i}, -1')
    a(f's_lshl_b32 s{sT2}, s{sH}, 13')
    a(f's_lshl_b32 s{sCnt}, s{sWv8}, 10')
    a(f's_add_u32 s{sT2}, s{sT2}, s{sCnt}')
    a(f'v_add_u32 v{t0}, s{sT2}, v{vL16}')
    for par in range(4):
        a(f'global_store_dwordx4 v{t0}, v[{CL}:{CL+3}], s[{sPartB}:{sPartB+1}]{sst}')
        a(f'v_add_u32 v{t0}, 0x40000, v{t0}')
    a('s_waitcnt vmcnt(20)')
    a(f'v_lshl_or_b32 v{m0a}, v{m0b}, 16, v{m0a}')
    a(f'v_min_u32 v{m0a}, 0xfffffffe, v{m0a}')
    a(f's_cmp_eq_u32 s{sW}, 0')
    a(f's_cselect_b64 vcc, -1, 0')
    a(f'v_cndmask_b32 v{m0a}, -1, v{m0a}, vcc')
    a(f's_lshl_b32 s{sT2}, s{sW}, 13')
    a(f's_lshl_b32 s{sCnt}, s{sH}, 8')
    a(f's_add_u32 s{sT2}, s{sT2}, s{sCnt}')
    a(f'v_lshlrev_b32 v{t0}, 2, v{lane}')
    a(f'v_add_u32 v{t0}, s{sT2}, v{t0}')
    a(f'global_store_dword v{t0}, v{m0a}, s[{sMemB}:{sMemB+1}]{sst}')
    vTrV = T(15)
    a(f's_lshl_b32 s{sT2}, s{sRole}, 5')
    for sp in range(4): a(f'v_add_u32 v{vTrV+sp}, s{sT2}, v{vTrQ+sp}')
    TMP = 8
    for st in range(8):
        m, hf = stages[st]
        n_after = {0: 8 + 5, 7: 0}.get(st, 8)
        a(f's_waitcnt vmcnt({n_after})')
        a('s_barrier')
        if m in 'qk':
            Ls = a.uid('su_skip')
            a(f's_cmp_lg_u32 s{sRole}, {0 if m == "q" else 1}')
            a(f's_cbranch_scc1 {Ls}')
            for tau in range(2):
                for sp in range(4):
                    for j in range(4):
                        imm = (32 * (j >> 1) + 8 * (j & 1)) * 256 + tau * 32 + hf * 16384
                        sig = hf * 4 + sp
                        a(f'ds_read_b64_tr_b16 {ar((tau * 8 + sig) * 8 + 2 * j, 2)}, v{vTrQ+sp} offset:{imm}')
                    if sp % 2 == 1: a('s_waitcnt lgkmcnt(4)')
            a(f'{Ls}:')
        elif m == 'v':
            for sp in range(4):
                for j in range(4):
                    imm = (32 * (j >> 1) + 8 * (j & 1)) * 256 + hf * 16384
                    a(f'ds_read_b64_tr_b16 {vr(WvR + (hf * 4 + sp) * 8 + 2 * j, 2)}, v{vTrV+sp} offset:{imm}')
                if sp % 2 == 1: a('s_waitcnt lgkmcnt(4)')
        else:
            def tmp(t): return 16 + 8 * t if t < 3 else 52
            for t in range(4):
                for j in range(4):
                    imm = hf * 16384 + (j & 1) * 2048 + t * 8
                    a(f'ds_read_b64_tr_b16 {vr(tmp(t) + 2 * j, 2)}, v{vTrO + (j >> 1)} offset:{imm}')
                if t % 2 == 1: a('s_waitcnt lgkmcnt(4)')
        a('s_waitcnt lgkmcnt(0)')
        a('s_barrier')
        if m == 'o':
            Lb = a.uid('su_ob'); Le = a.uid('su_oe')
            a(f's_cmp_lg_u32 s{sRole}, 0')
            a(f's_cbranch_scc1 {Lb}')
            for t in range(4):
                for hh in range(2):
                    a(f'ds_write_b128 v{vWB}, {vr(tmp(t) + 4 * hh, 4)} offset:{wo_off(t, hf, hh)}')
            a(f's_branch {Le}')
            a(f'{Lb}:')
            for sp in range(4):
                for hh in range(2):
                    a(f'ds_write_b128 v{vWB}, {vr(WvR + (hf * 4 + sp) * 8 + 4 * hh, 4)} offset:{wo_off(sp, hf, hh)}')
            a('s_waitcnt lgkmcnt(0)')
            for t in range(4):
                for i in range(0, 8, 2):
                    a(f'v_mov_b64 {vr(WvR + (hf * 4 + t) * 8 + i, 2)}, {vr(tmp(t) + i, 2)}')
            a(f'{Le}:')
        if st + 2 < 8: dma(st + 2)
        if st == 2 and early_arrive:
            La = a.uid('arr')
            a(f's_cmp_lg_u32 s{sWv8}, 0'); a(f's_cbranch_scc1 {La}')
            a(f'v_mov_b32 v{vT}, 36'); a(f'v_mov_b32 v{vT+1}, 1')
            a('s_mov_b64 exec, 1')
            a(f'global_atomic_add v{vT}, v{vT+1}, s[{sDbg}:{sDbg+1}] sc1')
            a('s_mov_b64 exec, -1')
            a(f'{La}:')

def emit_heads_barrier(a, Lerr):
    a('s_waitcnt vmcnt(0) lgkmcnt(0)')
    a('s_barrier')
    Lskip = a.uid('hb_skip'); Lp = a.uid('hb_poll')
    a(f's_cmp_lg_u32 s{sWv8}, 0')
    a(f's_cbranch_scc1 {Lskip}')
    a(f'v_mov_b32 v{vT}, 36')
    a(f'v_mov_b32 v{vT+1}, 1')
    a('s_mov_b64 exec, 1')
    a(f'global_atomic_add v{vT}, v{vT+1}, s[{sDbg}:{sDbg+1}] sc1')
    a('s_mov_b64 exec, -1')
    a(f's_mov_b32 s{sCnt}, {POLL_LIMIT}')
    a(f'{Lp}:')
    a(f'global_load_dword v{vT+1}, v{vT}, s[{sDbg}:{sDbg+1}] sc1')
    a(f's_sub_u32 s{sCnt}, s{sCnt}, 1')
    a(f's_cbranch_scc1 {Lerr}')
    a('s_waitcnt vmcnt(0)')
    a(f'v_cmp_gt_u32 vcc, 32, v{vT+1}')
    a(f's_cbranch_vccnz {Lp}')
    a(f'{Lskip}:')
    a('s_barrier')

def smf(a, d, A, B, idx=None):
    a(f'v_smfmac_f32_16x16x64_bf16 {vr(d,4)}, {vr(A,4)}, {B}, v{vIdx if idx is None else idx}')
def mf(a, d, A, B, C):
    a(f'v_mfma_f32_16x16x32_bf16 {vr(d,4)}, {vr(A,4)}, {vr(B,4)}, {C if isinstance(C,str) else vr(C,4)}')
def mf16(a, d, A, B, C):
    a(f'v_mfma_f32_16x16x16_bf16 {vr(d,4)}, {vr(A,2)}, {vr(B,2)}, {vr(C,4)}')

class Stamps:
    def __init__(self, a, on): self.a = a; self.on = on; self.n = 0
    def __call__(self):
        if not self.on: return
        assert self.n < 16
        self.a(f's_memtime s[{64+2*self.n}:{65+2*self.n}]')
        self.n += 1
    def dump(self, step=40):
        if not self.on: return
        a = self.a
        L = a.uid('nodump')
        a(f's_cmp_lg_u32 s{sS}, {step}')
        a(f's_cbranch_scc1 {L}')
        a('s_waitcnt lgkmcnt(0)')
        a(f's_lshl_b32 s{sT2}, s{sH}, 9')
        a(f's_lshl_b32 s{sT3}, s{sWv8}, 6')
        a(f's_add_u32 s{sT2}, s{sT2}, s{sT3}')
        a(f'v_mov_b32 v{vT}, s{sT2}')
        for i in range(self.n):
            a(f'v_mov_b32 v{vT+1}, s{64+2*i}')
            a(f'global_store_dword v{vT}, v{vT+1}, s[{sDbgM}:{sDbgM+1}] offset:{4*i}')
        a(f'{L}:')

def poll2(a, R0, R1, voff, sbase, off0, off1, Lerr, opt, pre=None):
    def loads():
        a(f'global_load_dwordx4 {vr(R0,4)}, v{voff}, s[{sbase}:{sbase+1}] offset:{off0} sc1')
        a(f'global_load_dwordx4 {vr(R1,4)}, v{voff}, s[{sbase}:{sbase+1}] offset:{off1} sc1')
    def check():
        a(f'v_max3_u32 v{vT}, v{R0}, v{R0+1}, v{R0+2}')
        a(f'v_max3_u32 v{vT+1}, v{R1}, v{R1+1}, v{R1+2}')
        a(f'v_max3_u32 v{vT}, v{vT}, v{R0+3}, v{R1+3}')
        a(f'v_max_u32 v{vT}, v{vT}, v{vT+1}')
        a(f'v_cmp_eq_u32 vcc, -1, v{vT}')
    Lok = a.uid('p_ok'); Lp = a.uid('p_loop')
    depth = opt.get('pdepth', 2); gap = opt.get('pgap', 2)
    loads()
    if pre: pre()
    a(f's_mov_b32 s{sCnt}, {POLL_LIMIT}')
    a('s_waitcnt vmcnt(0)')
    check()
    a(f's_cbranch_vccz {Lok}')
    a('s_mov_b64 exec, vcc')
    for d in range(depth - 1):
        loads()
        for _ in range(gap): a('s_nop 7')
    a(f'{Lp}:')
    loads()
    a(f's_sub_u32 s{sCnt}, s{sCnt}, 1')
    a(f's_cbranch_scc1 {Lerr}')
    a(f's_waitcnt vmcnt({2 * (depth - 1)})')
    check()
    a('s_and_b64 exec, exec, vcc')
    a(f's_cbranch_execnz {Lp}')
    a('s_mov_b64 exec, -1')
    a(f'{Lok}:')

def poll1(a, R0, voff, sbase, off0, Lerr, opt, pre=None):
    def loads(): a(f'global_load_dwordx4 {vr(R0,4)}, v{voff}, s[{sbase}:{sbase+1}] offset:{off0} sc1')
    def check():
        a(f'v_max3_u32 v{vT}, v{R0}, v{R0+1}, v{R0+2}')
        a(f'v_max_u32 v{vT}, v{vT}, v{R0+3}')
        a(f'v_cmp_eq_u32 vcc, -1, v{vT}')
    Lok = a.uid('p_ok'); Lp = a.uid('p_loop')
    D = opt.get('mdepth', 1); gap = opt.get('mgap', 2)
    for _ in range(opt.get('mdelay', 0)): a('s_nop 7')
    if D == 1:
        loads()
        if pre: pre()
        a(f's_mov_b32 s{sCnt}, {POLL_LIMIT}')
        a('s_waitcnt vmcnt(0)')
        check()
        a(f's_cbranch_vccz {Lok}')
        a('s_mov_b64 exec, vcc')
        loads()
        a('s_nop 7'); a('s_nop 7')
        DD = 2
    else:
        loads()
        if pre: pre()
        else:
            for _ in range(gap): a('s_nop 7')
        a(f's_mov_b32 s{sCnt}, {POLL_LIMIT}')
        for d in range(D - 2):
            loads()
            for _ in range(gap): a('s_nop 7')
        DD = D
    a(f'{Lp}:')
    loads()
    a(f's_sub_u32 s{sCnt}, s{sCnt}, 1')
    a(f's_cbranch_scc1 {Lerr}')
    a(f's_waitcnt vmcnt({DD - 1})')
    check()
    a('s_and_b64 exec, exec, vcc')
    a(f's_cbranch_execnz {Lp}')
    a('s_mov_b64 exec, -1')
    a(f'{Lok}:')

def step_bases(a):
    a(f's_mov_b64 s[{sPrevR}:{sPrevR+1}], s[{sPartR}:{sPartR+1}]')
    a(f's_mov_b64 s[{sPrevM}:{sPrevM+1}], s[{sMemC}:{sMemC+1}]')
    a(f's_and_b32 s{sT2}, s{sS}, 3')
    a(f's_lshl_b32 s{sT2}, s{sT2}, 13')
    add64(a, sMemC, sMemB, f's{sT2}')
    a(f's_lshl_b32 s{sT3}, s{sW}, 10')
    a(f's_add_u32 s{sT3}, s{sT3}, 2048')
    add64(a, sMemR, sMemC, f's{sT3}')
    a(f's_add_u32 s{sS1}, s{sS}, 1')
    a(f's_bfe_u32 s{sTag}, s{sS}, 0x10002')
    a(f's_and_b32 s{sT2}, s{sS1}, 3')
    a(f's_lshl_b32 s{sT2}, s{sT2}, 13')
    add64(a, sMemW, sMemB, f's{sT2}')
    a(f's_and_b32 s{sT2}, s{sS}, 3')
    a(f's_lshl_b32 s{sT2}, s{sT2}, 18')
    add64(a, sPartW, sPartB, f's{sT2}')
    a(f's_lshl_b32 s{sT2}, s{sH}, 13')
    a(f's_add_u32 s{sT2}, s{sT2}, 2048')
    add64(a, sPartR, sPartW, f's{sT2}')

others = [(1, 0), (1, 1), (2, 0), (2, 1), (3, 0), (3, 1)]
AS = lambda sig: vA + 4 * sig

def wo_phase(a, st, first_bufs_loaded, bufs, OA, ACC, S):
    seq = [(t_, c) for c in range(2) for t_ in range(4)]
    nb = len(bufs)
    def WOL(i):
        t_, c = seq[i]; b = bufs[i % nb]
        a(f'ds_read_b128 {vr(b,4)}, v{vWB} offset:{wo_off(t_, c, 0)}')
        a(f'ds_read_b128 {vr(b+4,4)}, v{vWB} offset:{wo_off(t_, c, 1)}')
    a(f'ds_read_b128 {vr(OA,4)}, v{vRO}')
    a(f'ds_read_b128 {vr(OA+4,4)}, v{vRO} offset:128')
    issued = first_bufs_loaded
    after_oa = 0
    while issued < nb: WOL(issued); issued += 1; after_oa += 1
    order = ['OA0', 'OA1'] + [i for i in range(first_bufs_loaded, nb) for _ in range(2)]
    def wait_for(item):
        if item not in order: return
        idx = len(order) - 1 - order[::-1].index(item)
        a(f's_waitcnt lgkmcnt({min(15, len(order) - 1 - idx)})')
    for i in range(8):
        t_, c = seq[i]
        need_ = []
        if i == 0: need_.append('OA0')
        if i == 4: need_.append('OA1')
        need_.append(i)
        present = [x for x in need_ if x in order]
        if present:
            latest = max(present, key=lambda x: len(order) - 1 - order[::-1].index(x))
            wait_for(latest)
        if i == 0: S()
        smf(a, ACC + 4 * t_, OA + 4 * c, vr(bufs[i % nb], 8))
        if issued < 8:
            WOL(issued); order += [issued, issued]; issued += 1
    for t2 in range(4):
        a(f'v_add_f32 v{ACC+4*t2}, v{ACC+4*t2}, v{ACC+4*t2+1}')
        a(f'v_add_f32 v{ACC+4*t2+2}, v{ACC+4*t2+2}, v{ACC+4*t2+3}')
    a(f'v_cvt_pk_bf16_f32 v{ACC}, v{ACC}, v{ACC+4}')
    a(f'v_cvt_pk_bf16_f32 v{ACC+1}, v{ACC+8}, v{ACC+12}')
    a(f'v_cvt_pk_bf16_f32 v{ACC+2}, v{ACC+2}, v{ACC+6}')
    a(f'v_cvt_pk_bf16_f32 v{ACC+3}, v{ACC+10}, v{ACC+14}')
    for i in range(4): a(f'v_bfi_b32 v{ACC+i}, 1, s{sTag}, v{ACC+i}')
    a(f'global_store_dwordx4 v{vP}, {vr(ACC,4)}, s[{sPartW}:{sPartW+1}]{st}')
    return WOL


def epilogue_store(a, ACC, st):
    for t2 in range(4):
        a(f'v_add_f32 v{ACC+4*t2}, v{ACC+4*t2}, v{ACC+4*t2+1}')
        a(f'v_add_f32 v{ACC+4*t2+2}, v{ACC+4*t2+2}, v{ACC+4*t2+3}')
    a(f'v_cvt_pk_bf16_f32 v{ACC}, v{ACC}, v{ACC+4}')
    a(f'v_cvt_pk_bf16_f32 v{ACC+1}, v{ACC+8}, v{ACC+12}')
    a(f'v_cvt_pk_bf16_f32 v{ACC+2}, v{ACC+2}, v{ACC+6}')
    a(f'v_cvt_pk_bf16_f32 v{ACC+3}, v{ACC+10}, v{ACC+14}')
    for i in range(4): a(f'v_bfi_b32 v{ACC+i}, 1, s{sTag}, v{ACC+i}')
    a(f'global_store_dwordx4 v{vP}, {vr(ACC,4)}, s[{sPartW}:{sPartW+1}]{st}')

def poll2t(a, R0, R1, voff, sbase, off0, off1, Lerr, opt, tag):
    op = '0x80' if tag else '0xfe'
    def loads():
        a(f'global_load_dwordx4 {vr(R0,4)}, v{voff}, s[{sbase}:{sbase+1}] offset:{off0} sc1')
        a(f'global_load_dwordx4 {vr(R1,4)}, v{voff}, s[{sbase}:{sbase+1}] offset:{off1} sc1')
    def check():
        a(f'v_bitop3_b32 v{vT}, v{R0}, v{R0+1}, v{R0+2} bitop3:{op}')
        a(f'v_bitop3_b32 v{vT+1}, v{R1}, v{R1+1}, v{R1+2} bitop3:{op}')
        a(f'v_bitop3_b32 v{vT}, v{vT}, v{R0+3}, v{R1+3} bitop3:{op}')
        a(f'v_bitop3_b32 v{vT}, v{vT}, v{vT+1}, 1 bitop3:{"0x80" if tag else "0xa8"}')
        a(f'v_cmp_ne_u32 vcc, {tag}, v{vT}')
    Lok = a.uid('p_ok'); Lp = a.uid('p_loop')
    depth = opt.get('pdepth', 2); gap = opt.get('pgap', 2)
    a(f's_mov_b32 s{sCnt}, {POLL_LIMIT}')
    if not opt.get('pearly'):
        loads()
        a('s_waitcnt vmcnt(0)')
        check()
        a(f's_cbranch_vccz {Lok}')
        a('s_mov_b64 exec, vcc')
    for d in range(depth - 1):
        loads()
        for _ in range(gap): a('s_nop 7')
    a(f'{Lp}:')
    loads()
    a(f's_sub_u32 s{sCnt}, s{sCnt}, 1')
    a(f's_cbranch_scc1 {Lerr}')
    a(f's_waitcnt vmcnt({2 * (depth - 1)})')
    check()
    a('s_and_b64 exec, exec, vcc')
    a(f's_cbranch_execnz {Lp}')
    a('s_mov_b64 exec, -1')
    a(f'{Lok}:')

NOST = [False, ' sc1']
def vm_store(a, src, R):
    for i in range(4): a(f'v_mov_b32 v{R+i}, v{src}')
    a(f'v_permlane32_swap_b32 v{R}, v{R+2}')
    a(f'v_permlane32_swap_b32 v{R+1}, v{R+3}')
    a(f'v_permlane16_swap_b32 v{R}, v{R+1}')
    a(f'v_permlane16_swap_b32 v{R+2}, v{R+3}')
    a('s_mov_b64 exec, 0xffff')
    if not NOST[0]: a(f'global_store_dwordx4 v{vVmo}, {vr(R,4)}, s[{sVm}:{sVm+1}]{NOST[1]}')
    a('s_mov_b64 exec, -1')

def emit_loop_A(a, Lerr, Ldone, fast, debug, stamps, opt):
    st = '' if fast else ' sc1'
    S = Stamps(a, stamps)
    a(f's_setprio {opt.get("prioA", 2)}')
    for _ in range(opt.get('wdist', 1) - 1):
        add64(a, sKx, sKx, 32 * 8192)
        a(f'global_load_dword v12, v13, s[{sKx}:{sKx+1}]{KLD}')
    Lloop = a.uid('A_loop')
    if opt.get('align'):
        a.raw(f'    .p2align {opt["align"]}')
        for _ in range(opt.get('apadA', 0)): a('s_nop 0')
    a(f'{Lloop}:')
    step_bases(a)
    RA = vE
    a(f's_lshl_b32 s{sT2}, s{sW}, 10')
    a(f'v_add_u32 v{RA+3}, s{sT2}, v{vL16}')
    for sp in range(1, 4): a(f'v_xor_b32 v{RA+sp-1}, {sp*1024}, v{RA+3}')
    for i in range(0, 12, 2): a(f'v_mov_b64 {vr(vAc+i,2)}, 0')
    a(f'v_mov_b32 v14, s{sS1}')
    a('s_barrier')
    S()
    poll1(a, AS(0), vL16, sMemR, -2048, Lerr, opt)
    S()
    a(f'ds_write_b128 v{RA+3}, {vr(AS(0),4)}')
    q = vAc
    smf(a, q, AS(0), wa_reg(0, 0)); smf(a, q + 4, AS(0), wa_reg(1, 0))
    a('s_waitcnt lgkmcnt(0)')
    a('s_barrier')
    S()
    a(f'ds_read_b128 {vr(AS(4), 4)}, v{RA+3} offset:4096')
    for sp, hf in others:
        a(f'ds_read_b128 {vr(AS(hf * 4 + sp), 4)}, v{RA+sp-1} offset:{hf*4096}')
    smf(a, vAv, AS(0), wv_reg(0))
    osig = [hf * 4 + sp for sp, hf in others]
    kxh = [AS(0), AS(4), AS(osig[0]), AS(osig[1]), AS(osig[2]), AS(osig[3])]
    def KXL(f, home):
        kk, T = f >> 1, f & 1
        a(f'ds_read_b128 {vr(home,4)}, v{vL16} offset:{L_KX + T*4096 + kk*1024}')
    for i, sig in enumerate([4] + osig):
        a(f's_waitcnt lgkmcnt({6 - i})')
        for tau in range(2): smf(a, q + 4 * tau, AS(sig), wa_reg(tau, sig))
    S()
    def V(i): smf(a, vAv, AS(osig[i]), wv_reg(osig[i]))
    a('s_waitcnt vmcnt(0)')
    add64(a, sKx, sKx, 32 * 8192)
    if opt.get('warmpos', 0) == 0: a(f'global_load_dword v12, v13, s[{sKx}:{sKx+1}]{KLD}')
    KXL(0, kxh[0])
    a(f'v_add_f32 v{q}, v{q}, v{q+1}')
    a(f'v_add_f32 v{q+2}, v{q+2}, v{q+3}')
    a(f'v_add_f32 v{q+4}, v{q+4}, v{q+5}')
    a(f'v_add_f32 v{q+6}, v{q+6}, v{q+7}')
    a(f'v_cvt_pk_bf16_f32 v{q}, v{q}, v{q+4}')
    a(f'v_cvt_pk_bf16_f32 v{q+2}, v{q+2}, v{q+6}')
    a(f'ds_write2_b32 v{vWQ}, v{q}, v{q+2} offset0:0 offset1:{ROWB//4}')
    a(f'ds_write_b32 v{vFW}, v14 offset:{L_FQ}')
    S()
    a(f's_setprio {opt.get("prioAv", 0)}')
    smf(a, vAv, AS(4), wv_reg(4))
    KXL(1, kxh[1])
    V(4); V(5)
    V(0); V(1)
    KXL(2, kxh[2]); KXL(3, kxh[3])
    qb = [vAc, vAc + 4, AS(osig[4]), AS(osig[5])]
    F = vT
    Lr = a.uid('fwq')
    a(f's_mov_b32 s{sCnt}, {POLL_LIMIT}')
    a(f'{Lr}:')
    a(f'ds_read_b32 v{F}, v{vFR} offset:{L_FQ}')
    for kk in range(4): a(f'ds_read_b128 {vr(qb[kk],4)}, v{vRQ} offset:{kk*64}')
    a(f's_sub_u32 s{sCnt}, s{sCnt}, 1')
    a(f's_cbranch_scc1 {Lerr}')
    a('s_waitcnt lgkmcnt(4)')
    a(f'v_cmp_gt_u32 vcc, s{sS1}, v{F}')
    a(f's_cbranch_vccnz {Lr}')
    V(2); V(3)
    a(f's_setprio {opt.get("prioA", 2)}')
    KXL(4, kxh[4]); KXL(5, kxh[5])
    Sx0 = vE; Sx1 = 12 - 0
    S()
    a('s_waitcnt lgkmcnt(5)')
    mf(a, Sx0, kxh[0], qb[0], '0')
    KXL(6, kxh[0])
    a('s_waitcnt lgkmcnt(5)')
    mf(a, Sx0, kxh[2], qb[1], Sx0)
    Sx1 = kxh[2]
    a('s_waitcnt lgkmcnt(2)')
    mf(a, Sx0, kxh[4], qb[2], Sx0)
    KXL(7, kxh[4])
    mf(a, Sx1, kxh[1], qb[0], '0')
    mf(a, Sx1, kxh[3], qb[1], Sx1)
    km = [kxh[1], kxh[3], kxh[5], kxh[0]]
    a('s_waitcnt lgkmcnt(1)')
    mf(a, Sx0, kxh[0], qb[3], Sx0)
    mf(a, Sx1, kxh[5], qb[2], Sx1)
    Lr2 = a.uid('fwk')
    a(f's_mov_b32 s{sCnt}, {POLL_LIMIT}')
    a('s_waitcnt lgkmcnt(0)')
    mf(a, Sx1, kxh[4], qb[3], Sx1)
    S()
    VM0 = vAv
    Lk2 = a.uid('fwk_ok')
    a(f'ds_read_b32 v{F}, v{vFR} offset:{L_FK}')
    for kk in range(4): a(f'ds_read_b128 {vr(km[kk],4)}, v{vRK} offset:{kk*64}')
    a('s_waitcnt lgkmcnt(4)')
    a(f'v_cmp_gt_u32 vcc, s{sS1}, v{F}')
    a(f's_cbranch_vccz {Lk2}')
    a(f'{Lr2}:')
    a(f'ds_read_b32 v{F}, v{vFR} offset:{L_FK}')
    a(f's_sub_u32 s{sCnt}, s{sCnt}, 1')
    a(f's_cbranch_scc1 {Lerr}')
    a('s_waitcnt lgkmcnt(0)')
    a(f'v_cmp_gt_u32 vcc, s{sS1}, v{F}')
    a(f's_cbranch_vccnz {Lr2}')
    for kk in range(4): a(f'ds_read_b128 {vr(km[kk],4)}, v{vRK} offset:{kk*64}')
    a(f'{Lk2}:')
    Sm = kxh[4]
    a(f'v_add_f32 v{vAv}, v{vAv}, v{vAv+1}')
    a(f'v_add_f32 v{vAv+2}, v{vAv+2}, v{vAv+3}')
    a('s_waitcnt lgkmcnt(3)')
    mf(a, Sm, km[0], qb[0], '0')
    a(f'v_cvt_pk_bf16_f32 v{VM0}, v{vAv}, v{vAv+2}')
    a(f'v_mov_b32 v{VM0+1}, 0')
    a('s_waitcnt lgkmcnt(2)')
    mf(a, Sm, km[1], qb[1], Sm)
    mx = vT; t = vAv + 2; u = vAv + 3
    SX = [Sx0 + i for i in range(4)] + [Sx1 + i for i in range(4)]
    a(f'v_max3_f32 v{mx}, v{SX[0]}, v{SX[1]}, v{SX[2]}')
    a(f'v_max3_f32 v{t}, v{SX[4]}, v{SX[5]}, v{SX[6]}')
    a('s_waitcnt lgkmcnt(1)')
    mf(a, Sm, km[2], qb[2], Sm)
    a(f'v_max3_f32 v{mx}, v{mx}, v{SX[3]}, v{SX[7]}')
    a('s_waitcnt lgkmcnt(0)')
    mf(a, Sm, km[3], qb[3], Sm)
    vm_store(a, VM0, km[2])
    add64(a, sVm, sVm, 32 * 2048)
    a(f's_cmp_eq_u32 s{sS}, 63')
    a(f's_cbranch_scc1 {Ldone}')
    VX0, VX1, VM1, F3 = km[0], km[1], km[2], km[3]
    a(f's_lshl_b32 s{sT2}, s{sW}, 11')
    a(f'v_add_u32 v{u}, s{sT2}, v{vL16}')
    a(f'ds_read_b128 {vr(VX0,4)}, v{u} offset:{L_VX}')
    a(f'ds_read_b128 {vr(VX1,4)}, v{u} offset:{L_VX+1024}')
    a(f'v_lshrrev_b32 v{km[3]+1}, 2, v{vL16}')
    a(f's_lshl_b32 s{sT2}, s{sW}, 8')
    a(f'v_add_u32 v{km[3]+1}, s{sT2}, v{km[3]+1}')
    S()
    a(f'v_max3_f32 v{mx}, v{mx}, v{t}, v{Sm}')
    a(f'v_max_f32 v{mx}, v{mx}, v{Sm+1}')
    a(f'v_mov_b32 v{t}, v{mx}')
    a(f'v_permlane32_swap_b32 v{mx}, v{t}')
    a(f'v_max_f32 v{mx}, v{mx}, v{t}')
    a(f'v_mov_b32 v{t}, v{mx}')
    a(f'v_permlane16_swap_b32 v{mx}, v{t}')
    a(f'v_max_f32 v{mx}, v{mx}, v{t}')
    a(f'v_mul_f32 v{mx}, s{sQs}, v{mx}')
    for r in SX:
        a(f'v_fma_f32 v{r}, v{r}, s{sQs}, -v{mx}')
        a(f'v_exp_f32 v{r}, v{r}')
    PX = Sx0
    a(f'v_cvt_pk_bf16_f32 v{PX}, v{SX[0]}, v{SX[1]}')
    a(f'v_cvt_pk_bf16_f32 v{PX+1}, v{SX[2]}, v{SX[3]}')
    a(f'v_cvt_pk_bf16_f32 v{PX+2}, v{SX[4]}, v{SX[5]}')
    a(f'v_cvt_pk_bf16_f32 v{PX+3}, v{SX[6]}, v{SX[7]}')
    O = vAc; LS = qb[2]; ONE = qb[3]
    a(f'v_mov_b32 v{ONE}, 0x3f803f80')
    a(f'v_mov_b32 v{ONE+1}, 0x3f803f80')
    a(f'v_mov_b64 {vr(ONE+2,2)}, {vr(ONE,2)}')
    Lr3 = a.uid('fwv')
    a(f's_mov_b32 s{sCnt}, {POLL_LIMIT}')
    a(f'ds_read_b32 v{F3}, v{vFW} offset:{L_FV}')
    a(f'ds_read_b32 v{VM1}, v{km[3]+1} offset:{L_VB}')
    a('s_waitcnt lgkmcnt(2)')
    mf(a, LS, ONE, PX, '0')
    a(f'v_fma_f32 v{t}, v{Sm}, s{sQs}, -v{mx}')
    a(f'v_fma_f32 v{u}, v{Sm+1}, s{sQs}, -v{mx}')
    mf(a, O, VX0, PX, '0')
    a(f'v_exp_f32 v{t}, v{t}')
    a(f'v_exp_f32 v{u}, v{u}')
    mf(a, O + 4, VX1, PX, '0')
    PM = Sm + 2
    a(f'v_mov_b32 v{PM+1}, 0')
    a(f'v_cvt_pk_bf16_f32 v{PM}, v{t}, v{u}')
    a(f'v_mov_b32 v{VM1+1}, 0')
    Lv = a.uid('fwv_in')
    a(f's_branch {Lv}')
    a(f'{Lr3}:')
    a(f'ds_read_b32 v{F3}, v{vFW} offset:{L_FV}')
    a(f'ds_read_b32 v{VM1}, v{km[3]+1} offset:{L_VB}')
    a(f's_sub_u32 s{sCnt}, s{sCnt}, 1')
    a(f's_cbranch_scc1 {Lerr}')
    a(f'{Lv}:')
    a('s_waitcnt lgkmcnt(0)')
    a(f'v_cmp_gt_u32 vcc, s{sS1}, v{F3}')
    a(f's_cbranch_vccnz {Lr3}')
    mf16(a, LS, ONE, PM, LS)
    mf16(a, O, VM0, PM, O)
    mf16(a, O + 4, VM1, PM, O + 4)
    S()
    seq = [(t_, c) for c in range(2) for t_ in range(4)]
    bufs = [AS(0), AS(4)]
    for i in range(2):
        t_, c = seq[i]
        a(f'ds_read_b128 {vr(bufs[i],4)}, v{vWB} offset:{wo_off(t_, c, 0)}')
        a(f'ds_read_b128 {vr(bufs[i]+4,4)}, v{vWB} offset:{wo_off(t_, c, 1)}')
    a(f'v_rcp_f32 v{t}, v{LS}')
    OP = vE
    for i in range(4):
        a(f'v_mul_f32 v{O+2*i}, v{O+2*i}, v{t}')
        a(f'v_mul_f32 v{O+2*i+1}, v{O+2*i+1}, v{t}')
        a(f'v_cvt_pk_bf16_f32 v{OP+i}, v{O+2*i}, v{O+2*i+1}')
    a(f'ds_write_b128 v{vWO}, {vr(OP,4)}')
    t_, c = seq[2]
    a(f'ds_read_b128 {vr(AS(6),4)}, v{vWB} offset:{wo_off(t_, c, 0)}')
    a(f'ds_read_b128 {vr(AS(7),4)}, v{vWB} offset:{wo_off(t_, c, 1)}')
    ACC = vAc
    for i in range(0, 12, 2): a(f'v_mov_b64 {vr(ACC+i,2)}, 0')
    a('s_waitcnt lgkmcnt(2)')
    S()
    a('s_barrier')
    for i in range(12, 16, 2): a(f'v_mov_b64 {vr(ACC+i,2)}, 0')
    bufs = [AS(0), AS(4), AS(6)]
    wo_phase(a, st, 3, bufs, AS(2), ACC, S)
    S()
    S.dump()
    a(f's_add_u32 s{sS}, s{sS}, 1')
    a.fence(4)
    a(f's_branch {Lloop}')

def emit_loop_B(a, Lerr, Ldone, fast, debug, stamps, opt):
    st = '' if fast else ' sc1'
    S = Stamps(a, stamps)
    bK, bV, bO, bOwn, RA = 16, 24, 28, 56, 60
    osig = [0] + [hf * 4 + sp for sp, hf in others]
    BS = {sig: bO + 4 * i for i, sig in enumerate(osig)}
    def kv_dma():
        a(f's_lshl_b32 s{sT2}, s{sW}, 11')
        a(f's_add_u32 m0, s{sT2}, {L_KX}')
        a(f'global_load_lds_dwordx4 v{vL16}, s[{sKx}:{sKx+1}]{KLD}')
        a(f'global_load_lds_dwordx4 v{vL16}, s[{sKx}:{sKx+1}] offset:1024{KLD}')
        a(f's_add_u32 m0, s{sT2}, {L_VX}')
        a(f'global_load_lds_dwordx4 v{vL16}, s[{sVx}:{sVx+1}]{KLD}')
        a(f'global_load_lds_dwordx4 v{vL16}, s[{sVx}:{sVx+1}] offset:1024{KLD}')
        add64(a, sKx, sKx, 32 * 8192)
        add64(a, sVx, sVx, 32 * 8192)
    def WVL(sig, b):
        a(f'ds_read_b128 {vr(b,4)}, v{vWB} offset:{wo_off(sig & 3, sig >> 2, 0)}')
        a(f'ds_read_b128 {vr(b+4,4)}, v{vWB} offset:{wo_off(sig & 3, sig >> 2, 1)}')
    kv_dma()
    a(f'v_mov_b32 v{vDummy}, 0')
    a(f's_setprio {opt.get("prioB", 0)}')
    Lloop = a.uid('B_loop')
    step_bases(a)
    if opt.get('align'):
        a.raw(f'    .p2align {opt["align"]}')
        for _ in range(opt.get('apadB', 0)): a('s_nop 0')
    a(f'{Lloop}:')
    a('s_barrier')
    S()
    def pre():
        WVL(4, bO + 8)
        for sp in range(1, 4): a(f'v_xor_b32 v{RA+sp-1}, {sp*1024}, v{vPR}')
        for i in range(0, 12, 2): a(f'v_mov_b64 {vr(bK+i,2)}, 0')
        a(f'v_mov_b32 v{vT+2}, s{sS1}')
    poll1(a, bOwn, vL16, sMemR, 2048, Lerr, opt, pre)
    S()
    a(f's_setprio {opt.get("prioBk", 1)}')
    a(f'ds_write_b128 v{vPR}, {vr(bOwn,4)} offset:4096')
    k = bK
    smf(a, k, bOwn, wa_reg(0, 4)); smf(a, k + 4, bOwn, wa_reg(1, 4))
    a('s_waitcnt lgkmcnt(0)')
    a('s_barrier')
    S()
    smf(a, bV, bOwn, vr(bO + 8, 8))
    a(f'ds_read_b128 {vr(BS[0], 4)}, v{vPR}')
    for sp, hf in others:
        a(f'ds_read_b128 {vr(BS[hf * 4 + sp], 4)}, v{RA+sp-1} offset:{hf*4096}')
    mg = opt.get('mega')
    X = bOwn
    for i, sig in enumerate(osig):
        a(f's_waitcnt lgkmcnt({6 - i + (2 if i >= 3 else 0)})')
        for tau in range(2): smf(a, k + 4 * tau, BS[sig], wa_reg(tau, sig))
        if i == 2:
            a('s_waitcnt vmcnt(0)')
            WVL(osig[0], X)
    S()
    a(f'v_add_f32 v{k}, v{k}, v{k+1}')
    a(f'v_add_f32 v{k+2}, v{k+2}, v{k+3}')
    a(f'v_add_f32 v{k+4}, v{k+4}, v{k+5}')
    a(f'v_add_f32 v{k+6}, v{k+6}, v{k+7}')
    a(f'v_cvt_pk_bf16_f32 v{vT}, v{k}, v{k+4}')
    a(f'v_cvt_pk_bf16_f32 v{vT+1}, v{k+2}, v{k+6}')
    a(f'ds_write2_b32 v{vWQ}, v{vT}, v{vT+1} offset0:0 offset1:{ROWB//4}')
    a(f'ds_write_b32 v{vFW}, v{vT+2} offset:{L_FK}')
    S()
    a(f's_setprio {opt.get("prioB", 0)}')
    Y = bK
    WVL(osig[1], Y)
    a('s_waitcnt lgkmcnt(4)')
    smf(a, bV, BS[osig[0]], vr(X, 8))
    WVL(osig[2], X)
    a('s_waitcnt lgkmcnt(2)')
    smf(a, bV, BS[osig[1]], vr(Y, 8))
    X, Y = Y, X
    Z = bO
    WVL(osig[3], X); WVL(osig[4], Z)
    a('s_waitcnt lgkmcnt(4)')
    smf(a, bV, BS[osig[2]], vr(Y, 8))
    WVL(osig[5], Y)
    a('s_waitcnt lgkmcnt(4)')
    smf(a, bV, BS[osig[3]], vr(X, 8))
    WVL(osig[6], X)
    a('s_waitcnt lgkmcnt(4)')
    smf(a, bV, BS[osig[4]], vr(Z, 8))
    a('s_waitcnt lgkmcnt(2)')
    smf(a, bV, BS[osig[5]], vr(Y, 8))
    a(f'v_lshrrev_b32 v{vT+1}, 2, v{vPR}')
    a('s_waitcnt lgkmcnt(0)')
    smf(a, bV, BS[osig[6]], vr(X, 8))
    a(f'v_add_f32 v{bV}, v{bV}, v{bV+1}')
    a(f'v_add_f32 v{bV+2}, v{bV+2}, v{bV+3}')
    a(f'v_cvt_pk_bf16_f32 v{vT}, v{bV}, v{bV+2}')
    a(f'ds_write_b32 v{vT+1}, v{vT} offset:{L_VB}')
    a(f'ds_write_b32 v{vFW}, v{vT+2} offset:{L_FV}')
    if mg:
        Lnp = a.uid('nprog')
        a(f's_cmp_lg_u32 s{sW}, 0'); a(f's_cbranch_scc1 {Lnp}')
        a(f's_lshl_b32 s{sT2}, s{sH}, 7'); a(f's_add_u32 s{sT2}, s{sT2}, {FL_PROG}')
        a(f'v_mov_b32 v32, s{sT2}'); a(f'v_mov_b32 v33, s{sS}')
        a('s_mov_b64 exec, 1')
        a(f'global_store_dword v32, v33, s[{mg["sFl"]}:{mg["sFl"]+1}] sc1')
        a('s_mov_b64 exec, -1')
        a(f'{Lnp}:')
    a(f'v_lshrrev_b32 v{vT+1}, 6, v{vL16}'); a(f'v_and_b32 v{vT+1}, 7, v{vT+1}'); a(f'v_mul_u32_u24 v{vT+1}, {ROWB}, v{vT+1}')
    a(f'v_and_b32 v32, 0x30, v{vL16}'); a(f'v_add_u32 v{vT+1}, v{vT+1}, v32'); a(f'v_lshl_add_u32 v{vT+1}, v{vFW}, 4, v{vT+1}')
    a(f'ds_read_b128 v[36:39], v{vT+1} offset:{L_KB}')
    vm_store(a, vT, 32)
    add64(a, sVm, sVm, 32 * 2048)
    a('s_waitcnt lgkmcnt(0)')
    a('s_mov_b64 exec, 0xffffffff')
    if not NOST[0]: a(f'global_store_dwordx4 v{vKmo}, v[36:39], s[{sKm}:{sKm+1}]{NOST[1]}')
    a('s_mov_b64 exec, -1')
    add64(a, sKm, sKm, 32 * 2048)
    a(f's_cmp_eq_u32 s{sS}, 63')
    a(f's_cbranch_scc1 {Ldone}')
    S()
    if mg:
        Lok = a.uid('cntok'); Lsp = a.uid('cntsp')
        a(f's_add_u32 s{mg["sCnt"]}, s{mg["sCnt"]}, 128')
        a(f'v_mov_b32 v15, s{mg["sCnt"]}')
        a(f's_cmp_ge_u32 s{sS}, {63 - opt.get("wdist", 1)}'); a(f's_cbranch_scc1 {Lok}')
        a(f's_mov_b32 s{sCnt}, 8000')
        a(f'{Lsp}:')
        a(f'v_and_b32 v{vDummy}, 0xff, v{vDummy}')
        a(f'v_cmp_eq_u32 vcc, 4, v{vDummy}')
        a(f's_cbranch_vccnz {Lok}')
        a(f'global_load_dword v{vDummy}, v15, s[{mg["sFl"]}:{mg["sFl"]+1}] offset:{128*opt.get("wdist", 1)} sc1')
        a(f's_sub_u32 s{sCnt}, s{sCnt}, 1'); a(f's_cbranch_scc1 {Lerr}')
        a('s_waitcnt vmcnt(0)')
        a(f's_branch {Lsp}')
        a(f'{Lok}:')
        a(f'global_load_dword v{vDummy}, v15, s[{mg["sFl"]}:{mg["sFl"]+1}] offset:{128*opt.get("wdist", 1) + 128} sc1')
    Lnr = a.uid('norearm')
    a(f's_cmp_eq_u32 s{sS}, 0')
    a(f's_cbranch_scc1 {Lnr}')
    a(f'v_mov_b64 {vr(32,2)}, -1')
    a(f's_mov_b64 exec, s[{sPubM}:{sPubM+1}]')
    a(f'global_store_dwordx2 v{vPub}, {vr(32,2)}, s[{sPrevM}:{sPrevM+1}]{st}')
    a('s_mov_b64 exec, -1')
    a(f'{Lnr}:')
    ACC = 48
    for i in range(0, 16, 2): a(f'v_mov_b64 {vr(ACC+i,2)}, 0')
    PB = 28; SA = 36; SI = 40; RD = 44; OA = 16
    a('s_waitcnt lgkmcnt(0)')
    S()
    a('s_barrier')
    a(f'ds_read_b128 {vr(OA,4)}, v{vRO}')
    a(f'ds_read_b128 {vr(OA+4,4)}, v{vRO} offset:128')
    a(f's_setprio {opt.get("prioBwo", 3)}')
    a('s_waitcnt lgkmcnt(1)')
    S()
    for t_ in range(4): smf(a, ACC + 4 * t_, OA, vr(WvR + t_ * 8, 8))
    a('s_waitcnt lgkmcnt(0)')
    for t_ in range(4): smf(a, ACC + 4 * t_, OA + 4, vr(WvR + (4 + t_) * 8, 8))
    epilogue_store(a, ACC, st)
    a(f's_setprio {opt.get("prioB", 0)}')
    S()
    kv_dma()
    cc_, n_, one = 41, 42, 43
    a(f'v_bfe_u32 v{cc_}, v{vL16}, 4, 2')
    a(f'v_bfe_u32 v{n_}, v{vL16}, 6, 2')
    a(f'v_cmp_eq_u32 vcc, 3, v{cc_}')
    a(f'v_mov_b32 v{one}, 0x3f80')
    a(f'v_mov_b32 v{RD}, 0x3f800000')
    a(f'v_cndmask_b32 v{one}, v{one}, v{RD}, vcc')
    a(f'v_cndmask_b32 v{cc_}, v{cc_}, 0, vcc')
    a(f'v_or_b32 v{cc_}, 12, v{cc_}')
    a(f'v_mul_u32_u24 v{SI}, 0x1111, v{cc_}')
    a(f'v_cmp_eq_u32 vcc, 0, v{n_}')
    a(f'v_cndmask_b32 v{SA}, 0, v{one}, vcc')
    a(f'v_cmp_eq_u32 vcc, 1, v{n_}')
    a(f'v_cndmask_b32 v{SA+1}, 0, v{one}, vcc')
    a(f'v_mov_b64 {vr(SA+2,2)}, {vr(SA,2)}')
    a(f'v_mov_b64 {vr(RD,2)}, 0')
    a(f'v_mov_b64 {vr(RD+2,2)}, 0')
    a(f's_mov_b64 s[{sEx}:{sEx+1}], s[{sMemW}:{sMemW+1}]')
    a(f's_mov_b32 s{sT0}, s{sTag}')
    a(f's_add_u32 s{sS}, s{sS}, 1')
    step_bases(a)
    for _ in range(opt.get('rdelay', 2)): a('s_nop 15')
    Lt1 = a.uid('tag1'); Ltd = a.uid('tagd')
    a(f's_cmp_lg_u32 s{sT0}, 0'); a(f's_cbranch_scc1 {Lt1}')
    poll2t(a, PB, PB + 4, vPR, sPrevR, -2048, 2048, Lerr, opt, 0)
    a(f's_branch {Ltd}')
    a(f'{Lt1}:')
    poll2t(a, PB, PB + 4, vPR, sPrevR, -2048, 2048, Lerr, opt, 1)
    a(f'{Ltd}:')
    S()
    smf(a, RD, SA, vr(PB, 8), idx=SI)
    for i in range(4): a(f'v_add_f32_dpp v{RD+i}, v{RD+i}, v{RD+i} row_ror:4 row_mask:0xf bank_mask:0xf')
    for i in range(4): a(f'v_add_f32_dpp v{RD+i}, v{RD+i}, v{RD+i} row_ror:8 row_mask:0xf bank_mask:0xf')
    a(f'v_cvt_pk_bf16_f32 v{RD}, v{RD}, v{RD+1}')
    a(f'v_cvt_pk_bf16_f32 v{RD+1}, v{RD+2}, v{RD+3}')
    a(f's_mov_b64 exec, s[{sPubM}:{sPubM+1}]')
    a(f'global_store_dwordx2 v{vPub}, {vr(RD,2)}, s[{sEx}:{sEx+1}]{st}')
    if debug:
        add64(a, sDbgM, sDbgM, 8192)
        a(f'global_store_dwordx2 v{vPub}, {vr(RD,2)}, s[{sDbgM}:{sDbgM+1}]')
    a('s_mov_b64 exec, -1')
    S()
    S.dump(41)
    a(f's_branch {Lloop}')

def build_rec_test(fast=True, debug=False, stamps=False, **opt):
    NOST[0] = bool(opt.get('nost')); NOST[1] = opt.get('stf', ' sc1')
    a = Asm()
    a.raw('; @launch kernel=rec_kernel grid=(256,1,1) block=(512,1,1) lds=163840')
    a.raw('.amdgcn_target "amdgcn-amd-amdhsa--gfx950"\n.text\n.globl rec_kernel\n.p2align 8\n.type rec_kernel,@function\nrec_kernel:')
    a('s_cmp_ge_u32 s2, 256')
    a('s_cbranch_scc1 L_end')
    a(f's_load_dwordx4 s[{sWq}:{sWq+3}], s[0:1], {KA["Wq"]}')
    a(f's_load_dwordx4 s[{sWv}:{sWv+3}], s[0:1], {KA["Wv"]}')
    a(f's_load_dwordx2 s[{sM0in}:{sM0in+1}], s[0:1], {KA["mem0"]}')
    a(f's_load_dwordx2 s[{sDbg}:{sDbg+1}], s[0:1], {KA["dbg"]}')
    a(f's_load_dwordx2 s[{sWs}:{sWs+1}], s[0:1], {KA["ws"]}')
    a(f'v_lshrrev_b32 v1, 6, v0')
    a(f'v_and_b32 v0, 63, v0')
    a(f'v_readfirstlane_b32 s{sWv8}, v1')
    a(f's_getreg_b32 s{sT2}, hwreg(HW_REG_XCC_ID, 0, 4)')
    a('s_waitcnt lgkmcnt(0)')
    a(f's_cmp_lg_u32 s{sT2}, 0')
    a('s_cbranch_scc1 L_end')
    a(f's_cmp_lg_u32 s{sWv8}, 0')
    a('s_cbranch_scc1 L_role_wait')
    a('v_mov_b32 v2, 0')
    a('v_mov_b32 v3, 1')
    a('s_mov_b64 exec, 1')
    a(f'global_atomic_add v4, v2, v3, s[{sDbg}:{sDbg+1}] sc0 sc1')
    a('s_waitcnt vmcnt(0)')
    a(f'v_mov_b32 v2, {L_MISC}')
    a('ds_write_b32 v2, v4')
    a('s_mov_b64 exec, -1')
    a('s_waitcnt lgkmcnt(0)')
    a('L_role_wait:')
    a('s_barrier')
    a(f'v_mov_b32 v2, {L_MISC}')
    a('ds_read_b32 v4, v2')
    a('s_waitcnt lgkmcnt(0)')
    a(f'v_readfirstlane_b32 s{sH}, v4')
    a('s_nop 3')
    a(f's_cmp_ge_u32 s{sH}, 32')
    a('s_cbranch_scc1 L_end')
    a(f's_memrealtime s[{sTm}:{sTm+1}]')
    emit_rec_setup(a)
    emit_heads_barrier(a, 'L_err')
    a(f's_memrealtime s[{sTm+2}:{sTm+3}]')
    a(f's_mov_b32 s{sS}, 0')
    a('s_waitcnt lgkmcnt(0)')
    a(f's_cmp_lg_u32 s{sRole}, 0')
    a('s_cbranch_scc1 L_roleB')
    emit_loop_A(a, 'L_err', 'L_done', fast, debug, stamps, opt)
    a('L_roleB:')
    emit_loop_B(a, 'L_err', 'L_done', fast, debug, stamps, opt)
    a('L_err:')
    a('s_mov_b64 exec, -1')
    a('v_mov_b32 v11, 40')
    a('v_mov_b32 v12, 1')
    a(f'global_atomic_add v11, v12, s[{sDbg}:{sDbg+1}] sc1')
    a('L_done:')
    a(f's_memrealtime s[100:101]')
    a('s_waitcnt vmcnt(0) lgkmcnt(0)')
    a(f's_cmp_lg_u32 s{sH}, 5')
    a('s_cbranch_scc1 L_end')
    a(f's_sub_u32 s{sT0}, s{sTm+2}, s{sTm}')
    a(f's_sub_u32 s{sT1}, s100, s{sTm+2}')
    a(f'v_mov_b32 v18, s{sT0}')
    a(f'v_mov_b32 v19, s{sT1}')
    a('v_mov_b32 v16, 64')
    a(f'global_store_dwordx2 v16, v[18:19], s[{sDbg}:{sDbg+1}]')
    a('L_end:')
    a('s_endpgm')
    a.raw(kernel_desc('rec_kernel', vgpr=256, accum=128))
    return a.text()

if __name__ == '__main__':
    open('rec_test.s', 'w').write(build_rec_test(debug=True))
    open('rec_test_nd.s', 'w').write(build_rec_test())
    open('rec_test_st.s', 'w').write(build_rec_test(stamps=True))
    for i, o in enumerate([dict(nost=1), dict(stf=''), dict(warmpos=9), dict(nost=1, warmpos=9)]):
        open(f'rec_x{i}.s', 'w').write(build_rec_test(**o))
```

```python
from asmlib import *
from layout import *
import pre, qkv, att, mlp
import rec8 as rec5
from pre import add64, f2u, unpack8, ln_stats
KNAME = 'adaLN_cond__memory_aug_recurrent_mem_tr__mixer_token_mlp__prompt_kernel'
sWid, sWave, sDbgP, sWsP, sFl, sLim = 90, 91, 92, 94, 96, 98
WLIM = 8000
SC = ' sc1'

def wave_poll(a, sbase, off_expr, cmp, val, Lerr, vt=10, mask=None, sleep=2, drain=True):
    L = a.uid('wp'); Lok = a.uid('wpok')
    a(f'v_mov_b32 v{vt}, {off_expr}')
    a(f's_mov_b32 s{sLim}, {WLIM}')
    a(f'{L}:')
    a(f'global_load_dword v{vt+1}, v{vt}, s[{sbase}:{sbase+1}] sc1')
    a('s_waitcnt vmcnt(0)')
    if mask is not None: a(f'v_and_b32 v{vt+1}, {mask}, v{vt+1}')
    a(f'v_cmp_{cmp}_u32 vcc, {val}, v{vt+1}')
    a(f's_cbranch_vccnz {Lok}')
    a(f's_sleep {sleep}')
    a(f's_sub_u32 s{sLim}, s{sLim}, 1')
    a(f's_cbranch_scc0 {L}')
    a(f's_branch {Lerr}')
    a(f'{Lok}:')

def wg_wait(a, polls, Lerr):
    L = a.uid('wgw')
    a(f's_cmp_lg_u32 s{sWave}, 0')
    a(f's_cbranch_scc1 {L}')
    polls()
    a(f'{L}:')
    a('s_barrier')

def signal(a, sbase, off_expr, val, vt=10):
    a(f'v_mov_b32 v{vt}, {off_expr}')
    a(f'v_mov_b32 v{vt+1}, {val}')
    a('s_mov_b64 exec, 1')
    a(f'global_atomic_add v{vt}, v{vt+1}, s[{sbase}:{sbase+1}] sc1')
    a('s_mov_b64 exec, -1')

def wg_signal(a, sbase, off_expr, val):
    a('s_waitcnt vmcnt(0)')
    a('s_barrier')
    L = a.uid('wgs')
    a(f's_cmp_lg_u32 s{sWave}, 0')
    a(f's_cbranch_scc1 {L}')
    signal(a, sbase, off_expr, val)
    a(f'{L}:')

def stamp(a, idx, on):
    if not on: return
    L = a.uid('stp')
    a(f's_cmp_lg_u32 s{sWave}, 0'); a(f's_cbranch_scc1 {L}')
    a('s_memrealtime s[100:101]')
    a(f's_lshl_b32 s99, s{sWid}, 7')
    a(f's_add_u32 s99, s99, {WS_MEMDBG + 4*idx}')
    a('v_mov_b32 v11, s99')
    a('s_waitcnt lgkmcnt(0)')
    a('v_mov_b32 v12, s100')
    a(f'global_store_dword v11, v12, s[{sWsP}:{sWsP+1}]')
    a(f'{L}:')

def touch_code(a, wave, vt):
    L = a.uid('tc'); Lp = a.uid('tcp')
    a(f's_cmp_lg_u32 s{sWave}, {wave}'); a(f's_cbranch_scc1 {L}')
    a('s_getpc_b64 s[86:87]')
    a(f'{Lp}:')
    a.raw(f'    s_sub_u32 s86, s86, {Lp}-{KNAME}')
    a('s_subb_u32 s87, s87, 0')
    a(f'v_lshlrev_b32 v{vt}, 7, v0')
    a.raw(f'    s_mov_b32 s88, (L_code_end-{KNAME}+8191)/8192')
    Lq = a.uid('tcl')
    a(f'{Lq}:')
    a.raw(f'    v_min_u32 v{vt+1}, L_code_end-{KNAME}-4, v{vt}')
    a(f'global_load_dword v{vt+2}, v{vt+1}, s[86:87]')
    a(f'v_add_u32 v{vt}, 8192, v{vt}')
    a('s_sub_u32 s88, s88, 1'); a('s_cmp_lg_u32 s88, 0'); a(f's_cbranch_scc1 {Lq}')
    a('s_waitcnt vmcnt(0)')
    a(f'{L}:')

def build(stamps=False, recopt=None, psleep=1):
    recopt = dict(mdepth=2, mgap=3, **(recopt or {}))
    a = Asm()
    a.raw(f'; @launch grid=(256,1,1) block=(512,1,1) lds=163840')
    a.raw('.amdgcn_target "amdgcn-amd-amdhsa--gfx950"\n.text')
    pre.header(a, KNAME)
    a('s_cmp_ge_u32 s2, 256'); a('s_cbranch_scc1 L_end')
    a(f's_load_dwordx4 s[{sDbgP}:{sDbgP+3}], s[0:1], {KA["dbg"]}')
    a('v_lshrrev_b32 v1, 6, v0'); a('v_and_b32 v0, 63, v0'); a(f'v_readfirstlane_b32 s{sWave}, v1')
    a('s_getreg_b32 s20, hwreg(HW_REG_XCC_ID, 0, 4)')
    a('s_waitcnt lgkmcnt(0)')
    add64(a, sFl, sWsP, WS_FL)
    LM = 163840 - 64
    a(f's_load_dwordx4 s[12:15], s[0:1], {KA["c"]}')
    a(f's_load_dwordx2 s[16:17], s[0:1], {KA["x"]}')
    a(f's_mov_b32 s{sWid}, s2')
    stamp(a, 0, stamps)
    off, m_, r, t = 61, 62, 63, 64
    R, X, SA, CA = 68, 72, 80, 88
    a('s_waitcnt lgkmcnt(0)')
    touch_code(a, 6, 2)
    a(f's_cmp_lg_u32 s{sWave}, 7'); a('s_cbranch_scc1 L_role_skip')
    a('s_and_b32 s20, s20, 7')
    a('v_mov_b32 v2, 0'); a('v_mov_b32 v3, 1')
    a('s_mov_b64 exec, 1')
    a(f's_cmp_lg_u32 s20, {9 if recopt.get("noxcd") else 0}'); a('s_cbranch_scc1 L_role_worker')
    a(f'global_atomic_add v4, v2, v3, s[{sDbgP}:{sDbgP+1}] sc0 sc1')
    a('s_waitcnt vmcnt(0)')
    a('v_readfirstlane_b32 s22, v4')
    a('s_cmp_lt_u32 s22, 32'); a('s_cbranch_scc1 L_role_done')
    a('L_role_worker:')
    a('v_mov_b32 v2, 128')
    a(f'global_atomic_add v4, v2, v3, s[{sDbgP}:{sDbgP+1}] sc0 sc1')
    a('s_waitcnt vmcnt(0)')
    a('v_readfirstlane_b32 s22, v4')
    a('s_sub_u32 s23, 255, s22')
    a('s_add_u32 s22, s22, 32')
    a('s_cmp_lt_u32 s22, 256')
    a('s_cselect_b32 s22, s22, s23')
    a('L_role_done:')
    a('v_mov_b32 v4, s22'); a(f'v_mov_b32 v2, {LM}')
    a('ds_write_b32 v2, v4')
    a('s_mov_b64 exec, -1')
    a('s_waitcnt lgkmcnt(0)')
    a('L_role_skip:')
    a('s_cmp_ge_u32 s2, 64'); a('s_cbranch_scc1 L_nomod')
    a('s_and_b32 s19, s2, 7'); a('s_sub_u32 s19, s19, 1'); a('s_cmp_ge_u32 s19, 6'); a('s_cbranch_scc1 L_nomod')
    a('s_lshr_b32 s18, s2, 3'); a('s_mul_i32 s18, s18, 6'); a('s_add_u32 s18, s18, s19')
    a('v_lshlrev_b32 v2, 4, v0'); a('s_lshl_b32 s19, s18, 10'); a('v_add_u32 v2, s19, v2')
    for i in range(4): a(f'v_mov_b32 v{4+i}, 0')
    a(f'global_store_dwordx4 v2, v[4:7], s[{sFl}:{sFl+1}] sc1')
    add64(a, 20, sWsP, WS_MOD)
    pre.emit_mod_task(a, 18, sWave, 12, 14, 20, SC, lds_base=16384)
    wg_signal(a, sDbgP, 44, 1)
    a('L_nomod:')
    a('s_barrier')
    a(f'v_mov_b32 v2, {LM}')
    a('ds_read_b32 v4, v2')
    a('s_waitcnt lgkmcnt(0)')
    a(f'v_readfirstlane_b32 s{sWid}, v4')
    a('s_nop 3')
    a(f's_cmp_ge_u32 s{sWid}, 256')
    a('s_cbranch_scc1 L_end')
    a(f's_cmp_lt_u32 s{sWid}, 32')
    a('s_cbranch_scc1 L_head')
    a(f's_sub_u32 s{sWid}, s{sWid}, 32')
    add64(a, 20, sWsP, WS_MOD); add64(a, 22, sWsP, WS_H)
    a(f's_load_dwordx4 s[4:7], s[0:1], {KA["Wq"]}')
    a(f's_load_dwordx2 s[8:9], s[0:1], {KA["Wv"]}')
    g = qkv.QKV(a, 4, 6, 8, sWsP, sWave, st=SC)
    g.vDma, g.vTr0, g.vTr1, g.vSK, g.vSV, g.vT = 100, 101, 102, 103, 104, 105
    WT = 32768
    sGrp = 18
    a(f's_mov_b32 s{sGrp}, s{sWid}')
    g.setup()
    a(f'v_add_u32 v{g.vTr0}, {WT}, v{g.vTr0}'); a(f'v_add_u32 v{g.vTr1}, {WT}, v{g.vTr1}')
    a(f's_mov_b32 s{g.sBuf}, {WT}')
    a('L_ln_loop:')
    a(f's_lshl_b32 s40, s{sGrp}, 3'); a(f's_add_u32 s40, s40, s{sWave}'); a('s_lshl_b32 s40, s40, 10')
    a(f'v_lshlrev_b32 v{t}, 4, v0'); a(f'v_add_u32 v{off}, s40, v{t}')
    a(f'global_load_dwordx4 {vr(R,4)}, v{off}, s[16:17]')
    a('s_waitcnt lgkmcnt(0)')
    a(f's_cmp_ge_u32 s{sWid}, 192'); a('s_cbranch_scc1 L_now')
    g.dma(sWid)
    a('s_waitcnt vmcnt(8)')
    a('s_branch L_now2')
    a('L_now:')
    a('s_waitcnt vmcnt(0)')
    a('L_now2:')
    unpack8(a, R, X)
    ln_stats(a, X, m_, r, t)
    wg_wait(a, lambda: wave_poll(a, sDbgP, 44, 'le', 48, 'L_err', vt=44, sleep=1), 'L_err')
    a(f'v_lshlrev_b32 v{t}, 5, v0')
    a(f'global_load_dwordx4 {vr(SA,4)}, v{t}, s[20:21] sc1')
    a(f'global_load_dwordx4 {vr(SA+4,4)}, v{t}, s[20:21] offset:16 sc1')
    a(f'global_load_dwordx4 {vr(CA,4)}, v{t}, s[20:21] offset:2048 sc1')
    a(f'global_load_dwordx4 {vr(CA+4,4)}, v{t}, s[20:21] offset:2064 sc1')
    a('s_waitcnt vmcnt(0)')
    for i in range(8):
        a(f'v_add_f32 v{CA+i}, 1.0, v{CA+i}')
        a(f'v_fma_f32 v{X+i}, v{X+i}, v{CA+i}, v{SA+i}')
    for i in range(4): a(f'v_cvt_pk_bf16_f32 v{R+i}, v{X+2*i}, v{X+2*i+1}')
    a(f's_mul_i32 s40, s{sWave}, 1040')
    a(f'v_lshlrev_b32 v{t}, 4, v0'); a(f'v_add_u32 v{t}, s40, v{t}')
    a(f'ds_write_b128 v{t}, {vr(R,4)}')
    a(f'v_and_b32 v{t}, 7, v0'); a(f'v_mul_u32_u24 v{m_}, 1040, v{t}')
    a(f'v_lshrrev_b32 v{r}, 3, v0'); a(f's_lshl_b32 s40, s{sWave}, 3'); a(f'v_add_u32 v{r}, s40, v{r}')
    a(f'v_lshl_add_u32 v{m_}, v{r}, 4, v{m_}')
    a('s_waitcnt lgkmcnt(0)'); a('s_barrier')
    a(f'ds_read_b128 {vr(R,4)}, v{m_}')
    a(f'v_lshlrev_b32 v{r}, 9, v{r}'); a(f'v_lshl_add_u32 v{r}, v{t}, 4, v{r}')
    a(f's_lshr_b32 s40, s{sGrp}, 2'); a('s_lshl_b32 s40, s40, 15'); a(f's_and_b32 s41, s{sGrp}, 3'); a('s_lshl_b32 s41, s41, 7'); a('s_add_u32 s40, s40, s41')
    a(f'v_add_u32 v{r}, s40, v{r}')
    a('s_waitcnt lgkmcnt(0)')
    a(f'global_store_dwordx4 v{r}, {vr(R,4)}, s[22:23] sc1')
    a(f's_lshr_b32 s40, s{sGrp}, 2'); a('s_lshl_b32 s40, s40, 6'); a(f's_add_u32 s40, s40, {FL_HD}')
    a('s_waitcnt vmcnt(0)')
    signal(a, sFl, 's40', 1, vt=44)
    a(f's_add_u32 s{sGrp}, s{sGrp}, 32')
    a(f's_cmp_lt_u32 s{sGrp}, 224'); a('s_cbranch_scc1 L_ln_done')
    a(f's_cmp_lt_u32 s{sGrp}, 256'); a('s_cbranch_scc1 L_ln_loop')
    a('L_ln_done:')
    stamp(a, 1, stamps)
    a(f's_cmp_lt_u32 s{sWid}, 192'); a('s_cbranch_scc1 L_qkv_go')
    a(f's_load_dwordx2 s[4:5], s[0:1], {KA["w1"]}')
    a(f's_load_dwordx2 s[6:7], s[0:1], {KA["w2"]}')
    a(f's_sub_u32 s40, s{sWid}, 192'); a('s_lshl_b32 s40, s40, 3'); a(f's_add_u32 s40, s40, s{sWave}')
    a(f's_mul_i32 s40, s40, {7340032 // 256}')
    a('v_lshlrev_b32 v2, 6, v0'); a('v_add_u32 v2, s40, v2')
    a('s_waitcnt lgkmcnt(0)')
    for i in range(7):
        a('global_load_dword v3, v2, s[4:5]'); a('global_load_dword v4, v2, s[6:7]')
        if i < 6: a('v_add_u32 v2, 4096, v2')
    a('s_branch L_qkv_done')
    a('L_qkv_go:')
    a('s_barrier')
    sRb, sSeg = 18, 19
    vH = 106
    a(f'v_lshlrev_b32 v110, 4, v0')
    for i in range(1, 8): a(f'v_add_u32 v{110+i}, {4096*i}, v110')
    hld = lambda ks: a(f'global_load_dwordx4 {ar(4*ks,4)}, v{110 + (ks >> 2)}, s[24:25] offset:{1024*(ks & 3)} sc1')
    a(f's_lshl_b32 s40, s{sWave}, 15'); a(f's_add_u32 s40, s40, {WS_H}')
    add64(a, 24, sWsP, 's40')
    a(f's_lshl_b32 s40, s{sWave}, 6'); a(f's_add_u32 s26, s40, {FL_HD}')
    wave_poll(a, sFl, 's26', 'le', 32, 'L_err', vt=108)
    for ks in range(32): hld(ks)
    a(f's_mov_b32 s{sRb}, 0')
    a(f's_cmp_lt_u32 s{sWid}, 128'); a('s_cselect_b32 s27, 1, 0x100')
    a(f's_bfe_u32 s28, s{sWid}, 0x50001'); a('s_lshl_b32 s28, s28, 2')
    a(f's_lshl_b32 s40, s{sWave}, 7'); a('s_add_u32 s28, s28, s40')
    for isV in (False, True):
        tag = 'v' if isV else 'k'
        if not isV:
            a(f's_sub_u32 s40, s{sWid}, 64'); a('s_cmp_lt_u32 s40, 64'); a('s_cbranch_scc1 L_qkv_loop_v')
        a(f'L_qkv_loop_{tag}:')
        add64(a, 24, 24, 8 * 32768)
        a('s_add_u32 s26, s26, 512')
        Lnp = a.uid('nopoll')
        a(f's_cmp_eq_u32 s{sRb}, 7'); a(f's_cbranch_scc1 {Lnp}')
        wave_poll(a, sFl, 's26', 'le', 32, 'L_err', vt=108)
        a(f'{Lnp}:')
        a('s_waitcnt vmcnt(0)')
        a(f's_cmp_eq_u32 s{sRb}, 7')
        a(f's_cselect_b32 s40, {8*32768}, 0')
        a('s_sub_u32 s24, s24, s40'); a('s_subb_u32 s25, s25, 0')
        NS = 4
        def rd(ks):
            for nt in range(2):
                for j in range(2):
                    d = g.WF + ((ks % NS) * 2 + nt) * 4 + 2 * j
                    a(f'ds_read_b64_tr_b16 {vr(d,2)}, v{g.vTr0 if nt == 0 else g.vTr1} offset:{ks*2048 + j*512}')
        for ks in range(NS - 1): rd(ks)
        for ks in range(32):
            if ks + NS - 1 < 32: rd(ks + NS - 1)
            a(f's_waitcnt lgkmcnt({4*min(31 - ks, NS - 1)})')
            for nt in range(2):
                W = vr(g.WF + ((ks % NS) * 2 + nt) * 4, 4); H = ar(4 * ks, 4); D = vr(g.ACC + 16 * nt, 16)
                A_, B_ = (H, W) if isV else (W, H)
                a(f'v_mfma_f32_32x32x16_bf16 {D}, {A_}, {B_}, {"0" if ks == 0 else D}')
            if ks >= 1: hld(ks - 1)
        g.out_base(sWid, sRb, isV)
        hld(31)
        g.epilogue(isV)
        a('s_waitcnt vmcnt(0)')
        signal(a, sFl, 's28', 's27', vt=108)
        a('s_add_u32 s28, s28, 1024')
        a(f's_add_u32 s{sRb}, s{sRb}, 1')
        a(f's_cmp_lt_u32 s{sRb}, 8')
        a(f's_cbranch_scc1 L_qkv_loop_{tag}')
        if not isV: a('s_branch L_qkv_done')
    a('L_qkv_done:')
    a('s_waitcnt vmcnt(0)')
    a('s_barrier')
    stamp(a, 2, stamps)
    a(f's_load_dwordx2 s[4:5], s[0:1], {KA["Wo"]}')
    a(f's_load_dwordx4 s[8:11], s[0:1], {KA["w1"]}')
    sH, sSeg, sG1, sFt, sDt, sKh, sTile = 13, 14, 15, 18, 19, 20, 21
    a(f's_and_b32 s{sH}, s{sWid}, 31'); a(f's_lshr_b32 s{sSeg}, s{sWid}, 5')
    a(f's_lshr_b32 s{sFt}, s{sWid}, 3'); a(f's_and_b32 s{sDt}, s{sWid}, 7')
    a(f's_lshr_b32 s{sKh}, s{sWave}, 2'); a(f's_and_b32 s{sTile}, s{sWave}, 3')
    a(f's_mov_b32 s{sG1}, 0')
    a('s_waitcnt lgkmcnt(0)')
    A_ = att.ATT(a, 4, sWsP, sWave, sH, st=SC, ld=SC)
    A_.setup()
    vDm, vTA, vTB = 124, 125, 126
    G1L = 32768
    Lh = a.uid('g1h'); Le = a.uid('g1e')
    a(f's_cmp_lg_u32 s{sKh}, 0'); a(f's_cbranch_scc1 {Lh}')
    mlp.dma_lane(a, vDm, 16, 3584)
    a(f's_mul_i32 s40, s{sTile}, {8*3584}'); a(f's_lshl_b32 s41, s{sFt}, 7'); a('s_add_u32 s40, s40, s41')
    add64(a, 22, 8, 's40')
    a(f's_mov_b32 s24, {32*3584}')
    a(f's_branch {Le}')
    a(f'{Lh}:')
    mlp.dma_lane(a, vDm, 16, 1024)
    a(f's_lshl_b32 s40, s{sTile}, 13'); a(f's_lshl_b32 s41, s{sDt}, 7'); a('s_add_u32 s40, s40, s41'); a(f's_add_u32 s40, s40, {WS_H2}')
    add64(a, 22, sWsP, 's40')
    a(f's_mov_b32 s24, {32*1024}')
    a(f'{Le}:')
    a(f's_lshl_b32 s25, s{sWave}, 10'); a(f's_add_u32 s25, s25, {G1L}')
    mlp.tr_lane_base(a, vTA, 16, True); mlp.tr_lane_base(a, vTB, 16, False)
    a(f's_lshr_b32 s40, s{sTile}, 1'); a('s_lshl_b32 s40, s40, 6'); a(f'v_xor_b32 v{vTA}, s40, v{vTA}')
    a(f's_and_b32 s40, s{sTile}, 1'); a('s_lshl_b32 s40, s40, 6'); a(f'v_xor_b32 v{vTB}, s40, v{vTB}')
    a(f's_lshl_b32 s40, s{sKh}, 11'); a(f's_add_u32 s40, s40, {G1L}')
    a(f'v_add_u32 v{vTA}, s40, v{vTA}'); a('s_add_u32 s40, s40, 4096'); a(f'v_add_u32 v{vTB}, s40, v{vTB}')
    for i in range(16): a(f'v_accvgpr_write_b32 a{64+i}, 0')
    LN = 163840 - 64

    def g1_batch(blocking, prog=False):
        Lx = a.uid('g1x'); Lw = a.uid('g1w'); Lp = a.uid('g1p')
        a(f's_cmp_lg_u32 s{sWave}, 0'); a(f's_cbranch_scc1 {Lw}')
        a(f's_mov_b32 s{sLim}, {WLIM}')
        a(f'{Lp}:')
        a(f'v_and_b32 v64, 7, v0'); a(f'v_add_u32 v64, s{sG1}, v64')
        a(f'v_cmp_gt_u32 s[40:41], 64, v64')
        a(f'v_min_u32 v64, 63, v64'); a('v_lshlrev_b32 v64, 7, v64')
        a(f'v_add_u32 v64, {FL_H2D}, v64')
        a(f'global_load_dword v65, v64, s[{sFl}:{sFl+1}] sc1')
        if prog:
            a(f's_lshl_b32 s43, s{sH}, 7'); a(f's_add_u32 s43, s43, {FL_PROG}'); a('v_mov_b32 v66, s43')
            a(f'global_load_dword v67, v66, s[{sFl}:{sFl+1}] sc1')
        a('s_waitcnt vmcnt(0)')
        a('v_cmp_le_u32 vcc, 32, v65')
        a('s_and_b32 s40, s40, vcc_lo')
        a('s_and_b32 s40, s40, 0xff')
        a('s_not_b32 s40, s40')
        a('s_ff1_i32_b32 s42, s40')
        if prog:
            Lgo = a.uid('g1go')
            a('v_readfirstlane_b32 s43, v67')
            a('s_add_u32 s44, s43, 1'); a(f's_cmp_ge_u32 s44, s{sSeg}'); a('s_cselect_b32 s42, 0, s42')
            a(f's_cmp_gt_u32 s43, s{sSeg}'); a('s_cselect_b32 s42, 0x100, s42')
            a('s_cmp_lg_u32 s42, 0'); a(f's_cbranch_scc1 {Lgo}')
            a('s_sleep 1'); a(f's_sub_u32 s{sLim}, s{sLim}, 1'); a(f's_cbranch_scc0 {Lp}'); a('s_branch L_err')
            a(f'{Lgo}:')
        if blocking:
            Lgo = a.uid('g1go')
            a('s_cmp_lg_u32 s42, 0'); a(f's_cbranch_scc1 {Lgo}')
            a('s_sleep 1'); a(f's_sub_u32 s{sLim}, s{sLim}, 1'); a(f's_cbranch_scc0 {Lp}'); a('s_branch L_err')
            a(f'{Lgo}:')
        a('v_mov_b32 v64, s42'); a(f'v_mov_b32 v65, {LN}')
        a('ds_write_b32 v65, v64'); a('s_waitcnt lgkmcnt(0)')
        a(f'{Lw}:')
        a('s_barrier')
        a(f'v_mov_b32 v65, {LN}'); a('ds_read_b32 v64, v65'); a('s_waitcnt lgkmcnt(0)')
        a('v_readfirstlane_b32 s42, v64')
        a('s_barrier')
        a('s_and_b32 s43, s42, 0xff'); a(f's_cbranch_scc0 {Lx}')
        Ld = a.uid('g1d'); Lm = a.uid('g1m')
        a('s_mov_b32 s43, 0'); a('s_mov_b32 s44, s25')
        a(f'{Ld}:')
        a('s_mov_b32 m0, s44')
        a(f'global_load_lds_dwordx4 v{vDm}, s[22:23] sc1')
        add64(a, 22, 22, 's24')
        a('s_add_u32 s44, s44, 8192'); a('s_add_u32 s43, s43, 1'); a('s_cmp_lt_u32 s43, s42'); a(f's_cbranch_scc1 {Ld}')
        a('s_waitcnt vmcnt(0)'); a('s_barrier')
        a(f'v_mov_b32 v64, v{vTA}'); a(f'v_mov_b32 v65, v{vTB}'); a('s_mov_b32 s43, 0')
        a(f'{Lm}:')
        for j in range(2):
            a(f'ds_read_b64_tr_b16 {vr(68+2*j,2)}, v64 offset:{j*512}')
            a(f'ds_read_b64_tr_b16 {vr(72+2*j,2)}, v65 offset:{j*512}')
        a('v_add_u32 v64, 8192, v64'); a('v_add_u32 v65, 8192, v65')
        a('s_waitcnt lgkmcnt(0)')
        a(f'v_mfma_f32_32x32x16_bf16 {ar(64,16)}, {vr(68,4)}, {vr(72,4)}, {ar(64,16)}')
        a('s_add_u32 s43, s43, 1'); a('s_cmp_lt_u32 s43, s42'); a(f's_cbranch_scc1 {Lm}')
        a(f's_add_u32 s{sG1}, s{sG1}, s42')
        a(f'{Lx}:')

    a('L_att_loop:')
    a(f's_cmp_lt_u32 s{sSeg}, 57'); a('s_cbranch_scc1 L_notouch')
    touch_code(a, 6, 16)
    a('L_notouch:')
    def polls():
        a(f's_lshl_b32 s40, s{sSeg}, 7'); a(f's_lshl_b32 s41, s{sH}, 2'); a('s_add_u32 s40, s40, s41')
        wave_poll(a, sFl, 's40', 'eq', 0x204, 'L_err', vt=16)
    wg_wait(a, polls, 'L_err')
    def mid():
        Lm = a.uid('midl')
        a(f'{Lm}:')
        g1_batch(False, prog=True)
        a('s_cmp_lg_u32 s42, 0x100'); a(f's_cbranch_scc1 {Lm}')
        stamp(a, 8, stamps)
    A_.mid = mid; A_.wide = True
    A_.task(sSeg)
    stamp(a, 9, stamps)
    a(f's_lshl_b32 s26, s{sSeg}, 7'); a(f's_add_u32 s26, s26, {FL_ATTD}')
    wg_signal(a, sFl, 's26', 1)
    stamp(a, 10, stamps)
    a(f's_cmp_ge_u32 s{sSeg}, 50'); a('s_cbranch_scc1 L_skip_g1')
    g1_batch(False)
    a('L_skip_g1:')
    wg_wait(a, lambda: wave_poll(a, sFl, 's26', 'le', 32, 'L_err', vt=16, sleep=1), 'L_err')
    stamp(a, 11, stamps)
    emit_red_row(a, sSeg, sH)
    stamp(a, 12, stamps)
    a(f's_add_u32 s{sSeg}, s{sSeg}, 7')
    a(f's_cmp_lt_u32 s{sSeg}, 64'); a('s_cbranch_scc1 L_att_loop')
    D, FA, FB, t = 16, 32, 48, 6
    a(f'v_lshrrev_b32 v{t+2}, 5, v0'); a(f'v_lshlrev_b32 v{t+2}, 5, v{t+2}')
    a(f's_lshr_b32 s40, s{sTile}, 1'); a('s_lshl_b32 s40, s40, 6'); a(f's_lshl_b32 s41, s{sFt}, 7'); a('s_add_u32 s40, s40, s41')
    a(f'v_add_u32 v{t+2}, s40, v{t+2}')
    a(f's_lshl_b32 s40, s{sKh}, 4'); a(f'v_add_u32 v{t+1}, s40, v{t+2}')
    a(f'global_load_dwordx4 {vr(FB,4)}, v{t+1}, s[10:11]')
    x, y = 10, 11
    a(f'v_bfe_u32 v{x}, v0, 2, 2'); a(f'v_lshlrev_b32 v{x}, 3, v{x}')
    a(f'v_bfe_u32 v{y}, v0, 4, 1'); a(f'v_lshl_add_u32 v{x}, v{y}, 2, v{x}')
    a(f'v_and_b32 v{y}, 3, v0'); a(f'v_add_u32 v{x}, v{x}, v{y}'); a(f'v_lshlrev_b32 v{x}, 4, v{x}')
    a(f'v_lshl_add_u32 v{x}, v{t+2}, 5, v{x}')
    a(f's_and_b32 s40, s{sTile}, 1'); a(f's_lshl_b32 s41, s{sDt}, 1'); a('s_add_u32 s40, s40, s41'); a(f's_mul_i32 s40, s40, {112*1024}')
    a(f's_lshl_b32 s41, s{sKh}, 9'); a('s_add_u32 s40, s40, s41')
    a(f'v_add_u32 v13, s40, v{x}')
    a('L_g1_tail:')
    g1_batch(True)
    a(f's_cmp_lt_u32 s{sG1}, 64'); a('s_cbranch_scc1 L_g1_tail')
    stamp(a, 3, stamps)
    a.fence(12)
    Lk1 = a.uid('gk1'); Lk2 = a.uid('gk2')
    a(f's_cmp_lg_u32 s{sKh}, 0'); a(f's_cbranch_scc1 {Lk1}')
    for i in range(8): a(f'v_accvgpr_read_b32 v{D+i}, a{64+i}'); a(f'v_accvgpr_read_b32 v{D+8+i}, a{72+i}')
    a(f's_branch {Lk2}')
    a(f'{Lk1}:')
    for i in range(8): a(f'v_accvgpr_read_b32 v{D+i}, a{72+i}'); a(f'v_accvgpr_read_b32 v{D+8+i}, a{64+i}')
    a(f'{Lk2}:')
    a(f's_lshl_b32 s40, s{sWave}, 11'); a(f'v_lshlrev_b32 v{t}, 4, v0'); a(f'v_add_u32 v{t+1}, s40, v{t}')
    a(f'ds_write_b128 v{t+1}, {vr(D+8,4)}'); a(f'ds_write_b128 v{t+1}, {vr(D+12,4)} offset:1024')
    a(f'v_xor_b32 v{t+1}, 8192, v{t+1}')
    a('s_waitcnt lgkmcnt(0)'); a('s_barrier')
    a(f'ds_read_b128 {vr(FA,4)}, v{t+1}'); a(f'ds_read_b128 {vr(FA+4,4)}, v{t+1} offset:1024')
    a(f's_mov_b32 s42, {hex(f2u(0.044715))}')
    a(f's_mov_b32 s43, {hex(f2u(-2 * pre.LOG2E * 0.7978845608028654))}')
    a('s_waitcnt vmcnt(0) lgkmcnt(0)')
    for i in range(8):
        a(f'v_add_f32 v{D+i}, v{D+i}, v{FA+i}')
        if i % 2 == 0: a(f'v_lshlrev_b32 v{FA+i}, 16, v{FB+i//2}')
        else: a(f'v_and_b32 v{FA+i}, 0xffff0000, v{FB+i//2}')
        a(f'v_add_f32 v{D+i}, v{D+i}, v{FA+i}')
    for i in range(8): a(f'v_mul_f32 v{FA+i}, v{D+i}, v{D+i}')
    for i in range(8): a(f'v_fma_f32 v{FA+i}, v{FA+i}, s42, 1.0')
    for i in range(8): a(f'v_mul_f32 v{FA+i}, v{FA+i}, v{D+i}')
    for i in range(8): a(f'v_mul_f32 v{FA+i}, s43, v{FA+i}')
    for i in range(8): a(f'v_exp_f32 v{FA+i}, v{FA+i}')
    for i in range(8): a(f'v_add_f32 v{FA+i}, 1.0, v{FA+i}')
    for i in range(8): a(f'v_rcp_f32 v{FA+i}, v{FA+i}')
    for i in range(8): a(f'v_mul_f32 v{D+i}, v{D+i}, v{FA+i}')
    for i in range(4): a(f'v_cvt_pk_bf16_f32 v{FB+i}, v{D+2*i}, v{D+2*i+1}')
    add64(a, 44, sWsP, WS_G)
    a(f'global_store_dwordx4 v13, {vr(FB,4)}, s[44:45] sc1')
    a(f's_lshl_b32 s26, s{sDt}, 7'); a(f's_add_u32 s26, s26, {FL_GD}')
    wg_signal(a, sFl, 's26', 1)
    a('L_g2:')
    emit_g2(a, stamps)
    a('s_branch L_end')
    a('L_head:')
    emit_head(a, recopt, stamps)
    a('L_err:')
    a('s_mov_b64 exec, -1')
    a('v_mov_b32 v11, 40'); a('v_mov_b32 v12, 1')
    a(f'global_atomic_add v11, v12, s[{sDbgP}:{sDbgP+1}] sc1')
    a('L_end:')
    a('s_endpgm')
    a('L_code_end:')
    a.raw(kernel_desc(KNAME, vgpr=256, accum=128))
    return a.text()

def emit_red_row(a, sSeg, sH):
    L16, t, m, r = 1, 8, 9, 10
    P, ACC, XR, MD = 16, 80, 88, 96
    RL = 16384
    a(f's_load_dwordx2 s[46:47], s[0:1], {KA["x"]}')
    a(f's_lshl_b32 s41, s{sSeg}, 20')
    a(f's_lshl_b32 s43, s{sWave}, 17'); a('s_add_u32 s41, s41, s43')
    a(f's_lshl_b32 s43, s{sH}, 10'); a('s_add_u32 s41, s41, s43')
    a(f's_add_u32 s41, s41, {WS_ATTP}')
    add64(a, 44, sWsP, 's41')
    for i in range(4):
        a(f'global_load_dwordx4 {vr(P+4*i,4)}, v{L16}, s[44:45] sc1')
        if i < 3: add64(a, 44, 44, 32768)
    a(f's_lshl_b32 s41, s{sSeg}, 15'); a('s_add_u32 s41, s41, s43')
    a(f'v_add_u32 v11, s41, v{L16}')
    a('s_waitcnt lgkmcnt(0)')
    a(f'global_load_dwordx4 {vr(XR,4)}, v11, s[46:47]')
    add64(a, 44, sWsP, WS_MOD + 4096 + 2048)
    a(f'v_lshlrev_b32 v{t}, 5, v0')
    for k, off in enumerate((-2048, 0, 2048)):
        a(f'global_load_dwordx4 {vr(MD+8*k,4)}, v{t}, s[44:45] offset:{off} sc1')
        a(f'global_load_dwordx4 {vr(MD+8*k+4,4)}, v{t}, s[44:45] offset:{off+16} sc1')
    a('s_mov_b32 s46, 0x00003f80'); a('s_mov_b32 s47, 0x3f800000')
    for i in range(8): a(f'v_mov_b32 v{ACC+i}, 0')
    for i in range(4):
        a(f's_waitcnt vmcnt({3 - i + 7})')
        for d in range(4):
            a(f'v_dot2_f32_bf16 v{ACC+2*d}, v{P+4*i+d}, s46, v{ACC+2*d}')
            a(f'v_dot2_f32_bf16 v{ACC+2*d+1}, v{P+4*i+d}, s47, v{ACC+2*d+1}')
    a(f's_lshl_b32 s41, s{sWave}, 11')
    a(f'v_add_u32 v{t}, s41, v{L16}')
    a.fence(3)
    a(f'ds_write_b128 v{t}, {vr(ACC,4)} offset:{RL}')
    a(f'ds_write_b128 v{t}, {vr(ACC+4,4)} offset:{RL+1024}')
    a('s_waitcnt lgkmcnt(0)')
    a('s_barrier')
    Lend = a.uid('redr_end')
    a(f's_cmp_lg_u32 s{sWave}, 0'); a(f's_cbranch_scc1 {Lend}')
    for w in range(1, 8):
        a(f'ds_read_b128 {vr(P+8*(w-1),4)}, v{L16} offset:{RL + 2048*w}')
        a(f'ds_read_b128 {vr(P+8*(w-1)+4,4)}, v{L16} offset:{RL + 2048*w + 1024}')
    X = 72
    a('s_waitcnt vmcnt(0)')
    unpack8(a, XR, X)
    for w in range(1, 8):
        a(f's_waitcnt lgkmcnt({2*(7-w)})')
        for i in range(8): a(f'v_add_f32 v{ACC+i}, v{ACC+i}, v{P+8*(w-1)+i}')
    for i in range(8): a(f'v_fmac_f32 v{X+i}, v{ACC+i}, v{MD+i}')
    for i in range(4): a(f'v_cvt_pk_bf16_f32 v{XR+i}, v{X+2*i}, v{X+2*i+1}')
    add64(a, 44, sWsP, WS_X1)
    a(f'global_store_dwordx4 v11, {vr(XR,4)}, s[44:45] sc1')
    unpack8(a, XR, X)
    ln_stats(a, X, m, r, t)
    for i in range(8):
        a(f'v_add_f32 v{MD+16+i}, 1.0, v{MD+16+i}')
        a(f'v_fma_f32 v{X+i}, v{X+i}, v{MD+16+i}, v{MD+8+i}')
    ln_stats(a, X, m, r, t)
    for i in range(4): a(f'v_cvt_pk_bf16_f32 v{P+i}, v{X+2*i}, v{X+2*i+1}')
    add64(a, 44, sWsP, WS_H2)
    a(f'global_store_dwordx4 v11, {vr(P,4)}, s[44:45] sc1')
    a(f's_lshl_b32 s41, s{sSeg}, 7'); a(f's_add_u32 s41, s41, {FL_H2D}')
    a('s_waitcnt vmcnt(0)')
    signal(a, sFl, 's41', 1, vt=16)
    a(f'{Lend}:')

def emit_g2(a, stamps):
    a(f's_load_dwordx4 s[4:7], s[0:1], {KA["w2"]}')
    a(f's_load_dwordx2 s[8:9], s[0:1], {KA["out"]}')
    sSt, sDt, sKq, sMt = 13, 14, 15, 16
    a(f's_lshr_b32 s{sSt}, s{sWid}, 3'); a(f's_and_b32 s{sDt}, s{sWid}, 7')
    a(f's_lshr_b32 s{sKq}, s{sWave}, 1'); a(f's_and_b32 s{sMt}, s{sWave}, 1')
    vDW, vG, vTB, t = 1, 2, 4, 6
    mlp.dma_lane(a, vDW, t, 4096)
    mlp.tr_lane_base(a, vTB, t, False)
    a(f's_lshl_b32 s40, s{sKq}, 11')
    a(f'v_add_u32 v{vTB}, s40, v{vTB}')
    a(f's_lshl_b32 s41, s{sDt}, 1'); a(f's_add_u32 s40, s{sMt}, s41')
    a(f's_mul_i32 s40, s40, {112*1024}'); a(f's_lshl_b32 s41, s{sKq}, 10'); a('s_add_u32 s40, s40, s41')
    a(f'v_lshlrev_b32 v{vG}, 4, v0'); a(f'v_add_u32 v{vG}, s40, v{vG}')
    add64(a, 22, sWsP, WS_G)
    a('s_waitcnt lgkmcnt(0)')
    a(f's_lshl_b32 s40, s{sWave}, 17'); a(f's_lshl_b32 s41, s{sSt}, 7'); a('s_add_u32 s40, s40, s41')
    add64(a, 20, 4, 's40')
    a(f's_lshl_b32 s24, s{sWave}, 12')
    NB = 5
    def dmaw(c):
        b = (c % NB) * 32768
        for i in range(4):
            a(f's_add_u32 m0, s24, {b + i*1024}')
            a(f'global_load_lds_dwordx4 v{vDW}, s[20:21]')
            add64(a, 20, 20, 8 * 4096 if i < 3 else (256 - 24) * 4096)
    a('s_barrier')
    for c in range(NB): dmaw(c)
    X1, GB, B2, vO = 96, 100, 108, 9
    a(f'v_and_b32 v{vO}, 31, v0')
    a(f's_lshr_b32 s40, s{sKq}, 1'); a('s_lshl_b32 s40, s40, 5'); a(f's_lshl_b32 s41, s{sSt}, 6'); a('s_add_u32 s40, s40, s41')
    a(f'v_add_u32 v{vO}, s40, v{vO}')
    a(f'v_lshlrev_b32 v{vO+1}, 1, v{vO}')
    a(f'global_load_ushort v{B2}, v{vO+1}, s[6:7]')
    a(f'v_lshrrev_b32 v{vO+1}, 5, v0'); a(f'v_lshlrev_b32 v{vO+1}, 4, v{vO+1}')
    a(f's_lshl_b32 s40, s{sMt}, 5'); a(f's_lshl_b32 s41, s{sDt}, 6'); a('s_add_u32 s40, s40, s41')
    a(f's_and_b32 s41, s{sKq}, 1'); a('s_lshl_b32 s41, s41, 3'); a('s_add_u32 s40, s40, s41')
    a(f'v_add_u32 v{vO+1}, s40, v{vO+1}')
    a(f'v_lshlrev_b32 v{vO}, 10, v{vO}'); a(f'v_lshl_add_u32 v{vO}, v{vO+1}, 1, v{vO}')
    a(f'v_lshlrev_b32 v{vO+1}, 2, v{vO+1}')
    add64(a, 44, sWsP, WS_MOD + 10240)
    for i in range(2): a(f'global_load_dwordx4 {vr(GB+4*i,4)}, v{vO+1}, s[44:45] offset:{16*i} sc1')
    a(f's_lshl_b32 s26, s{sDt}, 7'); a(f's_add_u32 s26, s26, {FL_GD}')
    wg_wait(a, lambda: wave_poll(a, sFl, 's26', 'le', 28, 'L_err', vt=16, sleep=1), 'L_err')
    stamp(a, 4, stamps)
    order = []
    for f in range(28):
        a(f'global_load_dwordx4 {ar(4*f, 4)}, v{vG}, s[22:23] sc1')
        add64(a, 22, 22, 4096); order.append(f // 4)
    add64(a, 44, sWsP, WS_X1)
    a(f'global_load_dwordx4 {vr(X1,4)}, v{vO}, s[44:45] sc1'); order.append('e')
    D, FB = 16, 48
    a(f'v_xor_b32 v{vTB+1}, 64, v{vTB}')
    for c in range(7):
        last = max(i for i, o in enumerate(order) if o == c)
        a(f's_waitcnt vmcnt({min(63, len(order) - 1 - last)})')
        if c == 0 or c >= 5: a('s_barrier')
        b = (c % NB) * 32768
        a(f'v_add_u32 v{t}, {b}, v{vTB}'); a(f'v_add_u32 v{t+1}, {b}, v{vTB+1}')
        for i in range(4):
            for nt in range(2):
                for j in range(2):
                    a(f'ds_read_b64_tr_b16 {vr(FB+8*i+4*nt+2*j,2)}, v{t+nt} offset:{i*8192 + j*512}')
        for i in range(4):
            for nt in range(2):
                a(f's_waitcnt lgkmcnt({min(15, 14 - 4*i - 2*nt)})')
                a(f'v_mfma_f32_32x32x16_bf16 {vr(D+16*nt,16)}, {ar(16*c + 4*i,4)}, {vr(FB+8*i+4*nt,4)}, {"0" if (c == 0 and i == 0) else vr(D+16*nt,16)}')
        if c < 2:
            a('s_barrier')
            dmaw(c + 5); order += [c + 5] * 4
    a('s_barrier')
    a(f's_lshl_b32 s40, s{sMt}, 15'); a(f's_lshl_b32 s41, s{sKq}, 11'); a('s_add_u32 s40, s40, s41')
    a(f'v_lshlrev_b32 v{t}, 4, v0'); a(f'v_add_u32 v{t+1}, s40, v{t}')
    for p in range(4):
        for k in range(2): a(f'ds_write_b128 v{t+1}, {vr(D+8*p+4*k,4)} offset:{p*8192 + k*1024}')
    a(f's_lshl_b32 s40, s{sMt}, 15'); a(f's_lshl_b32 s41, s{sKq}, 13'); a('s_add_u32 s40, s40, s41')
    a(f'v_add_u32 v{t+1}, s40, v{t}')
    a('s_waitcnt lgkmcnt(0)'); a('s_barrier')
    for q in range(4):
        for k in range(2): a(f'ds_read_b128 {vr(FB+8*q+4*k,4)}, v{t+1} offset:{q*2048 + k*1024}')
    a('s_waitcnt vmcnt(0) lgkmcnt(0)')
    a(f'v_lshlrev_b32 v{B2}, 16, v{B2}')
    for i in range(8):
        a(f'v_add_f32 v{FB+i}, v{FB+i}, v{FB+8+i}'); a(f'v_add_f32 v{FB+16+i}, v{FB+16+i}, v{FB+24+i}')
        a(f'v_add_f32 v{FB+i}, v{FB+i}, v{FB+16+i}'); a(f'v_add_f32 v{FB+i}, v{FB+i}, v{B2}')
        if i % 2 == 0: a(f'v_lshlrev_b32 v{t}, 16, v{X1+i//2}')
        else: a(f'v_and_b32 v{t}, 0xffff0000, v{X1+i//2}')
        a(f'v_fma_f32 v{FB+i}, v{FB+i}, v{GB+i}, v{t}')
    for i in range(4): a(f'v_cvt_pk_bf16_f32 v{X1+i}, v{FB+2*i}, v{FB+2*i+1}')
    a(f'global_store_dwordx4 v{vO}, {vr(X1,4)}, s[8:9]')
    stamp(a, 5, stamps)

def emit_head(a, opt, stamps):
    R = rec5
    a(f's_load_dwordx4 s[{R.sWq}:{R.sWq+3}], s[0:1], {KA["Wq"]}')
    a(f's_load_dwordx4 s[{R.sWv}:{R.sWv+3}], s[0:1], {KA["Wv"]}')
    a(f's_load_dwordx2 s[{R.sM0in}:{R.sM0in+1}], s[0:1], {KA["mem0"]}')
    a(f's_mov_b64 s[{R.sDbg}:{R.sDbg+1}], s[{sDbgP}:{sDbgP+1}]')
    a(f's_mov_b64 s[{R.sWs}:{R.sWs+1}], s[{sWsP}:{sWsP+1}]')
    a(f's_mov_b32 s{R.sH}, s{sWid}'); a(f's_mov_b32 s{R.sWv8}, s{sWave}')
    a(f's_add_u32 s{sWid}, s{sWid}, 224')
    a('s_waitcnt lgkmcnt(0)')
    a('s_barrier')
    R.emit_rec_setup(a, SC, early_arrive=True)
    stamp(a, 1, stamps)
    a(f's_lshl_b32 s62, s{R.sH}, 2')
    Lw = a.uid('hw'); L1 = a.uid('hw1')
    a(f's_cmp_ge_u32 s{sWave}, 3'); a(f's_cbranch_scc1 {Lw}')
    a(f's_cmp_lg_u32 s{sWave}, 0'); a(f's_cbranch_scc1 {L1}')
    wave_poll(a, sDbgP, 36, 'le', 32, 'L_err', vt=11, sleep=1)
    a('v_mov_b32 v11, 0')
    a(f'global_load_dword v12, v11, s[{sDbgP}:{sDbgP+1}] sc1')
    a(f'v_mov_b32 v11, {R.L_MISC}')
    a('s_waitcnt vmcnt(0)')
    a('ds_write_b32 v11, v12')
    a(f's_branch {Lw}')
    a(f'{L1}:')
    wave_poll(a, sDbgP, 44, 'le', 48, 'L_err', vt=11, sleep=1)
    a(f's_lshl_b32 s63, s{sWave}, 7'); a('s_add_u32 s63, s63, s62'); a('s_sub_u32 s63, s63, 128')
    wave_poll(a, sFl, 's63', 'eq', 4, 'L_err', vt=11, mask=0xff, sleep=1)
    a(f'{Lw}:')
    a('s_waitcnt vmcnt(0) lgkmcnt(0)')
    a('s_barrier')
    a(f'v_mov_b32 v11, {R.L_MISC}')
    a('ds_read_b32 v12, v11')
    a('s_waitcnt lgkmcnt(0)')
    a('v_readfirstlane_b32 s63, v12')
    stamp(a, 2, stamps)
    if opt.get('force_slow'): a('s_mov_b32 s63, 0')
    a(f's_mov_b32 s{R.sS}, 0')
    o = dict(opt); o['mega'] = dict(sFl=sFl, sCnt=62)
    a('s_cmp_lt_u32 s63, 32'); a('s_cbranch_scc1 L_slow')
    for fast in (True, False):
        tag = 'f' if fast else 's'
        if not fast: a('L_slow:')
        a(f's_cmp_lg_u32 s{R.sRole}, 0'); a(f's_cbranch_scc1 L_roleB_{tag}')
        R.emit_loop_A(a, 'L_err', 'L_rec_done', fast, False, False, o)
        a(f'L_roleB_{tag}:')
        R.emit_loop_B(a, 'L_err', 'L_rec_done', fast, False, False, o)
    a('L_rec_done:')
    a('s_setprio 0')
    a('s_waitcnt vmcnt(0) lgkmcnt(0)')
    a('s_barrier')
    L = a.uid('fin')
    a(f's_cmp_lg_u32 s{sWave}, 0'); a(f's_cbranch_scc1 {L}')
    a(f's_lshl_b32 s40, s{R.sH}, 7'); a(f's_add_u32 s40, s40, {FL_PROG}')
    a('v_mov_b32 v11, s40'); a('v_mov_b32 v12, 64')
    a(f'global_store_dword v11, v12, s[{sFl}:{sFl+1}] sc1')
    a(f'{L}:')
    stamp(a, 3, stamps)
    a('v_mbcnt_lo_u32_b32 v0, -1, 0'); a('v_mbcnt_hi_u32_b32 v0, -1, v0')
    a('s_branch L_g2')

if __name__ == '__main__':
    open('mega.s', 'w').write(build())
    open('mega_st.s', 'w').write(build(stamps=True))
    open('mega_slow.s', 'w').write(build(recopt=dict(noxcd=1)))
```
